```python
import torch

def _softmax(x, axis=-1):
    return torch.softmax(x, dim=axis)
def _gelu(x):
    return torch.nn.functional.gelu(x, approximate="tanh")
def _silu(x):
    return torch.nn.functional.silu(x)
def _sigmoid(x):
    return torch.sigmoid(x)
def _layernorm(x, axis=-1, eps=1e-5):
    m = x.mean(dim=axis, keepdim=True)
    v = x.var(dim=axis, keepdim=True, unbiased=False)
    return (x - m) / torch.sqrt(v + eps)
def _scatter_add(tgt, idx, src, axis=0):
    return tgt.clone().index_add_(axis, idx, src)
def _segment_sum(src, seg, n):
    out = torch.zeros((n,) + src.shape[1:], dtype=src.dtype)
    return out.index_add_(0, seg, src)
def _pad(x, pw):
    flat = tuple(v for pair in reversed(pw) for v in pair)
    return torch.nn.functional.pad(x, flat)

kernel_name = 'concat_heads__sliding_block_cached__compressed_kv_cla__decode'

def setup_inputs():

    _w = (lambda a: (lambda t: t.to(torch.bfloat16) if t.is_floating_point() else t)(torch.as_tensor(a)))
    def _A_setup():
        B, Sq, D = 2, 1, 512
        Hq, Hkv, Sk, Dh = 32, 32, 8192, 128
        assert Hq % Hkv == 0, (Hq, Hkv)
        return {
            "x": _w((lambda *s: torch.randn(*s, dtype=torch.bfloat16) * 1.6)(B, Sq, D)),
            "k_cache": _w((lambda *s: torch.randn(*s, dtype=torch.bfloat16) * 1.6)(B, Hkv, Sk, Dh)),
            "v_cache": _w((lambda *s: torch.randn(*s, dtype=torch.bfloat16) * 0.05)(B, Hkv, Sk, Dh)),
            "wq": _w((lambda *s: torch.randn(*s, dtype=torch.bfloat16) * 1.6)(D, Hq * Dh) * (D ** -0.5)),
            "wo": _w((lambda *s: torch.randn(*s, dtype=torch.bfloat16) * 0.05)(Hq * Dh, D) * ((Hq * Dh) ** -0.5)),
        }
    _A_in = _A_setup()

    def _B_setup():
        B, H, Sq, Sk, D, M = 2, 32, 1, 8192, 128, 512
        Dc = 4 * D
        return {
            "x": _w((lambda *s: torch.randn(*s, dtype=torch.bfloat16) * 3.2)(B, Sq, M)),
            "c_kv": _w((lambda *s: torch.randn(*s, dtype=torch.bfloat16) * 0.1)(B, Sk, Dc)),
            "w_q": _w((lambda *s: torch.randn(*s, dtype=torch.bfloat16) * 6.4)(M, H, D) * (M ** -0.5)),
            "w_uk": _w((lambda *s: torch.randn(*s, dtype=torch.bfloat16) * 6.4)(Dc, H, D) * (Dc ** -0.5)),
            "w_uv": _w((lambda *s: torch.randn(*s, dtype=torch.bfloat16) * 0.1)(Dc, H, D) * (Dc ** -0.5)),
            "w_o": _w((lambda *s: torch.randn(*s, dtype=torch.bfloat16) * 0.1)(H, D, M) * ((H * D) ** -0.5)),
        }
    _B_in = _B_setup()

    return {
        "A_x": _A_in["x"],
        "A_k_cache": _A_in["k_cache"],
        "A_v_cache": _A_in["v_cache"],
        "A_wq": _A_in["wq"],
        "A_wo": _A_in["wo"],
        "B_x": _B_in["x"],
        "B_c_kv": _B_in["c_kv"],
        "B_w_q": _B_in["w_q"],
        "B_w_uk": _B_in["w_uk"],
        "B_w_uv": _B_in["w_uv"],
        "B_w_o": _B_in["w_o"],
    }

def reference(A_x, A_k_cache, A_v_cache, A_wq, A_wo, B_x, B_c_kv, B_w_q, B_w_uk, B_w_uv, B_w_o):
    def _A_ref(x, k_cache, v_cache, wq, wo):
        B, Sq, D = x.shape
        Hq, Dh = 32, 128
        Hkv, Sk = k_cache.shape[1], k_cache.shape[2]
        W = min(4096, max(256, Sk // 4))
        rep = Hq // Hkv
        q = (lambda x, *d: x.permute(*d))((x @ wq).reshape(B, Sq, Hq, Dh), 0, 2, 1, 3)
        k = (lambda x, n, axis: torch.repeat_interleave(x, n, dim=axis))(k_cache[:, :, Sk - W:, :], rep, axis=1)
        v = (lambda x, n, axis: torch.repeat_interleave(x, n, dim=axis))(v_cache[:, :, Sk - W:, :], rep, axis=1)
        scores = torch.einsum("bhqd,bhkd->bhqk", q, k) * (Dh ** -0.5)
        p = _softmax(scores, axis=-1)
        o = torch.einsum("bhqk,bhkd->bhqd", p, v)
        return (lambda x, *d: x.permute(*d))(o, 0, 2, 1, 3).reshape(B, Sq, Hq * Dh) @ wo

    def _B_ref(x, c_kv, w_q, w_uk, w_uv, w_o):
        B, Sq, M = x.shape[0], x.shape[1], x.shape[2]
        Sk = c_kv.shape[1]
        H, D = w_q.shape[1], w_q.shape[2]
        q = torch.einsum("bqm,mhd->bhqd", x, w_q)
        k = torch.einsum("bkc,chd->bhkd", c_kv, w_uk)
        v = torch.einsum("bkc,chd->bhkd", c_kv, w_uv)
        scores = torch.einsum("bhqd,bhkd->bhqk", q, k) * (D ** -0.5)
        off = Sk - Sq
        qi = torch.arange(Sq)[:, None]
        kj = torch.arange(Sk)[None, :]
        cmask = kj <= (qi + off)
        scores = torch.where(cmask[None, None], scores, -1e9)
        p = _softmax(scores, axis=-1)
        ctx = torch.einsum("bhqk,bhkd->bhqd", p, v)
        return torch.einsum("bhqd,hdm->bqm", ctx, w_o)

    a = _A_ref(A_x, A_k_cache, A_v_cache, A_wq, A_wo)
    b = _B_ref(B_x, B_c_kv, B_w_q, B_w_uk, B_w_uv, B_w_o)
    return torch.concatenate([a, b], axis=-1)
```

```python
import re

REG = re.compile(r"\b([vas])(\d+)\b|\b([vas])\[(\d+):(\d+)\]|\b(vcc|exec|m0)\b")
TRANS = ("v_exp_f32", "v_log_f32", "v_rcp_f32", "v_rsq_f32", "v_sqrt_f32")


def regs_of(op):
    out = set()
    for m in REG.finditer(op):
        if m.group(1):
            out.add((m.group(1), int(m.group(2))))
        elif m.group(3):
            out.update((m.group(3), i) for i in range(int(m.group(4)), int(m.group(5)) + 1))
        else:
            out.add((m.group(6), 0))
    return out


def split_ops(rest):
    ops, depth, cur = [], 0, ""
    for ch in rest:
        if ch in "[(":
            depth += 1
        if ch in "])":
            depth -= 1
        if ch == "," and depth == 0:
            ops.append(cur.strip()); cur = ""
        else:
            cur += ch
    if cur.strip():
        ops.append(cur.strip())
    return ops


class Ins:
    def __init__(self, text):
        self.text = text
        t = text.split(";")[0].strip()
        self.label = t.endswith(":")
        self.directive = t.startswith(".") and not self.label
        self.empty = not t
        self.mn = ""
        self.w, self.r = set(), set()
        self.kind = None
        if self.label or self.directive or self.empty:
            return
        p = t.split(None, 1)
        mn = self.mn = p[0]
        ops = split_ops(p[1]) if len(p) > 1 else []
        self.ops = ops
        R = [regs_of(o) for o in ops]
        allr = set().union(*R) if R else set()
        self.dpp = "_dpp" in mn
        if mn.startswith("v_mfma"):
            self.kind = "mfma"
            self.passes = 8 if "32x32" in mn else 4
            self.w = R[0]; self.ab = R[1] | R[2]; self.c = R[3]; self.r = self.ab | self.c
        elif mn.startswith("v_permlane"):
            self.kind = "valu"; self.w = allr; self.r = allr
        elif mn.startswith("v_"):
            self.kind = "valu"
            self.w = set(R[0]); self.r = set().union(*R[1:]) if len(R) > 1 else set()
            if mn.startswith(("v_fmac", "v_dot2c")) or self.dpp:
                self.r |= R[0]
            if mn.startswith(("v_add_co", "v_addc_co", "v_sub_co")):
                self.w |= R[1]
        elif mn.startswith(("buffer_load", "global_load")):
            self.kind = "vmem"
            if t.rstrip().endswith(" lds") or "_lds_" in mn:
                self.r = allr | {("m0", 0)}; self.dma = True
            else:
                self.w = R[0]; self.r = set().union(*R[1:])
        elif mn.startswith(("buffer_store", "global_store", "buffer_atomic", "global_atomic")):
            self.kind = "vmem"; self.r = allr
            if mn.endswith(("x3", "x4")):
                self.wide_data = R[0] if mn.startswith("buffer") else R[1]
        elif mn.startswith("ds_read"):
            self.kind = "ds"; self.w = R[0]; self.r = set().union(*R[1:])
        elif mn.startswith("ds_"):
            self.kind = "ds"; self.r = allr
        elif mn.startswith("s_"):
            self.kind = "salu"
            if mn.startswith(("s_cmp", "s_cbranch", "s_branch", "s_waitcnt", "s_nop", "s_barrier", "s_endpgm", "s_sleep", "s_setprio")):
                self.r = allr
            else:
                self.w = R[0] if R else set(); self.r = set().union(*R[1:]) if len(R) > 1 else set()
        else:
            raise ValueError("unknown instruction: " + text)

    def states(self):
        if self.mn == "s_nop":
            return int(self.ops[0]) + 1
        return 0 if (self.label or self.directive or self.empty) else 1


def opcode(mn):
    return mn.replace("_dpp", "").replace("_e32", "").replace("_e64", "")


def need(p, c):
    n = 0
    vw = {x for x in p.w if x[0] in "va"}
    sw = {x for x in p.w if x[0] in ("s", "vcc")}
    if p.kind == "valu":
        isdot = p.mn.startswith("v_dot")
        if c.kind == "mfma" and vw & c.r:
            n = max(n, 3 if isdot else 2)
        if c.kind == "valu":
            if (c.dpp or c.mn.startswith("v_permlane")) and vw & c.r:
                n = max(n, 2)
            if c.mn.startswith(("v_readfirstlane", "v_readlane")) and vw & c.r:
                n = max(n, 1)
            if opcode(p.mn) in TRANS and vw & c.r:
                n = max(n, 1)
            if sw & c.r:
                n = max(n, 2)
        if isdot and vw & (c.r | c.w):
            same = opcode(c.mn) == opcode(p.mn)
            if same:
                srcab = set().union(*[regs_of(o) for o in c.ops[1:3]])
                if vw & srcab:
                    n = max(n, 3)
            else:
                n = max(n, 3)
        if c.kind == "vmem" and sw & c.r:
            n = max(n, 5)
    if p.kind == "mfma":
        big = 12 if p.passes == 8 else 8
        if c.kind == "mfma":
            if p.w & c.ab:
                n = max(n, big)
            if p.w & c.c and not (p.w == c.c and p.passes == c.passes):
                n = max(n, big - 2)
            if p.w & c.w and not (p.w == c.c and p.passes == c.passes):
                n = max(n, big)
        elif c.kind in ("valu", "vmem", "ds"):
            if p.w & (c.r | c.w):
                n = max(n, big)
            if c.kind == "valu" and p.c & c.w:
                n = max(n, 7 if p.passes == 8 else 3)
    if p.kind == "salu" and ("m0", 0) in p.w and getattr(c, "dma", False):
        n = max(n, 1)
    if hasattr(p, "wide_data") and p.wide_data & c.w:
        n = max(n, 2 if c.kind == "valu" else 1)
    return n


def pad_hazards(lines, window=14):
    out = []
    for text in lines:
        c = Ins(text)
        if c.kind:
            dist, req = 0, 0
            for p in reversed(out):
                if dist >= window:
                    break
                if p.mn in ("s_branch", "s_endpgm"):
                    break
                if p.kind:
                    req = max(req, need(p, c) - dist)
                dist += p.states()
            while req > 0:
                k = min(req, 16)
                out.append(Ins(f"    s_nop {k - 1}"))
                req -= k
        out.append(c)
    return [i.text for i in out]


class Asm:
    def __init__(self):
        self.lines = []
        self.q = []
        self.uid = 0

    def __call__(self, text):
        for ln in text.split("\n"):
            s = ln.strip()
            if not s:
                continue
            self.lines.append(s if s.endswith(":") else "    " + s)

    def label(self, base):
        self.uid += 1
        return f"L_{base}_{self.uid}"

    def vm(self, text, tag=None):
        self(text)
        self.q.append(tag)

    def vmreset(self):
        self.q = []

    def vmwait(self, tag):
        idx = [i for i, t in enumerate(self.q) if t == tag]
        if not idx:
            return
        n = len(self.q) - 1 - idx[-1]
        self(f"s_waitcnt vmcnt({min(n, 63)})")
        self.q = self.q[idx[-1] + 1:]

    def vmlimit(self, n):
        if len(self.q) > n:
            self(f"s_waitcnt vmcnt({n})")
            self.q = self.q[len(self.q) - n:]

    def text(self):
        return "\n".join(pad_hazards(self.lines)) + "\n"
```

```python
import sys, math
from asmlib import Asm

NAME = "concat_heads__sliding_block_cached__compressed_kv_cla__decode"
KERNEL = NAME + "_kernel"

WS_FLAGB = 0x1000
WS_STATA = 0x2000
WS_QP = 0x10000
WS_QA = 0x50000
WS_STATB = 0x60000
WS_YA = 0x80000
WS_YB = 0x100000
WS_PART = 0x200000
WS_SIZE = 0x400000
WS_STAMP = 0x1000000

P_AX, P_K, P_V, P_WQ, P_WO, P_BX, P_CKV, P_BQ, P_UK, P_UV, P_BO, P_OUT, P_DBG, P_WS = [8 + 2 * i for i in range(14)]
R0, R1, R2, RWS, R4, R5 = 36, 40, 44, 48, 52, 4
sW, sH, sB, sT3, sTAG, sOFF, sA, sC, sSPIN, sLOW, sHIGH, sCST, sOF2, sI = range(56, 70)
sEX = 70
sSTAMP = 72
vL, vN, vG, vTAG = 1, 2, 3, 9
vM, vS, vA0, vD = 10, 14, 24, 32
vL16 = 22

LOG2E = math.log2(math.e)
SCALE = 128 ** -0.5
import struct
def fbits(x): return "0x%08x" % struct.unpack("<I", struct.pack("<f", x))[0]
def vr(b, n=4): return f"v[{b}:{b + n - 1}]"
def ar(b, n=4): return f"a[{b}:{b + n - 1}]"
def sr(b, n=4): return f"s[{b}:{b + n - 1}]"

DEF = dict(stamps=False, D0=12, D1=12, D2=12, spin=200000, mimicA=True, qpos=8, extra=6)


class Gen:
    def __init__(self, **kw):
        self.o = dict(DEF); self.o.update(kw)
        self.a = Asm()

    def stamp(self, i):
        if self.o["stamps"]:
            self.a(f"s_memrealtime s[{sSTAMP + 2 * i}:{sSTAMP + 2 * i + 1}]\ns_waitcnt lgkmcnt(0)")

    def finish(self):
        a = self.a
        if self.o["stamps"]:
            self.stamp(14)
            a(f"s_lshl_b32 s3, s2, 2\ns_add_u32 s3, s3, s{sW}\ns_lshl_b32 s3, s3, 6\ns_add_u32 s3, s3, {WS_STAMP}")
            a("s_mov_b64 exec, 1\nv_mov_b32 v4, s3")
            for i in range(15):
                a(f"v_mov_b32 v5, s{sSTAMP + 2 * i}\nglobal_store_dword v4, v5, s[{P_WS}:{P_WS + 1}] offset:{4 * i}")
            a(f"s_getreg_b32 s3, hwreg(HW_REG_XCC_ID)\nv_mov_b32 v5, s3\nglobal_store_dword v4, v5, s[{P_WS}:{P_WS + 1}] offset:60")
        a("s_endpgm")

    def srd(self, r, ptr, size, off_lo=None, off_hi=None):
        a = self.a
        if off_lo is None:
            a(f"s_mov_b32 s{r}, s{ptr}\ns_and_b32 s{r + 1}, s{ptr + 1}, 0xffff")
        else:
            a(f"s_add_u32 s{r}, s{ptr}, {off_lo}\ns_addc_u32 s{r + 1}, s{ptr + 1}, {off_hi or 0}\ns_and_b32 s{r + 1}, s{r + 1}, 0xffff")
        a(f"s_mov_b32 s{r + 2}, {size}\ns_mov_b32 s{r + 3}, 0x20000")

    def consts(self, cst):
        a = self.a
        self.srd(RWS, P_WS, WS_SIZE)
        a(f"""
        s_mov_b32 s{sSPIN}, {self.o['spin']}
        s_movk_i32 s{sLOW}, 0xfff
        s_mov_b32 s{sHIGH}, 0xfffff000
        s_mov_b32 s{sCST}, {fbits(cst)}
        v_lshlrev_b32 v{vL16}, 4, v{vL}
        """)

    def selectors(self, perm=True):
        a = self.a
        a(f"""
        v_and_b32 v4, 1, v{vN}
        v_bfe_u32 v5, v{vN}, 1, 2
        v_cmp_eq_u32 vcc, 1, v4
        v_mov_b32 v6, 0xffff
        v_mov_b32 v7, 0xffff0000
        v_cndmask_b32 v8, v6, v7, vcc
        """)
        if perm:
            a(f"""
            v_mov_b32 v6, 0x0c0c0100
            v_mov_b32 v7, 0x01000c0c
            v_cndmask_b32 v{vA0}, v6, v7, vcc
            v_mov_b32 v6, 0x0c0c0302
            v_mov_b32 v7, 0x03020c0c
            v_cndmask_b32 v{vA0 + 1}, v6, v7, vcc
            v_mov_b32 v6, 0x0c0c0c0c
            """)
        for jj in range(4):
            a(f"v_cmp_eq_u32 vcc, {jj}, v5\nv_cndmask_b32 v{vM + jj}, 0, v8, vcc")
            if perm:
                a(f"v_cndmask_b32 v{vS + 2 * jj}, v6, v{vA0}, vcc\nv_cndmask_b32 v{vS + 2 * jj + 1}, v6, v{vA0 + 1}, vcc")

    def get_tag(self):
        self.a(f"s_waitcnt lgkmcnt(0)\ns_add_u32 s{sTAG}, s{sTAG}, 1\nv_mov_b32 v{vTAG}, s{sTAG}")

    def build_perm(self, x):
        def f(j, A):
            for jj in range(4):
                self.a(f"v_perm_b32 v{A + jj}, v{x + j // 2}, v{x + j // 2}, v{vS + 2 * jj + j % 2}")
        return f

    def build_dpp(self, src):
        def f(j, A):
            reg, lane = src(j)
            for jj in range(4):
                self.a(f"v_and_b32_dpp v{A + jj}, v{reg}, v{vM + jj} row_newbcast:{lane} row_mask:0xf bank_mask:0xf")
        return f

    def selgemv(self, j0, j1, build, B, D, zero, before=None):
        a = self.a
        build(j0, vA0 + 4 * (j0 % 2))
        for j in range(j0, j1):
            if j + 1 < j1:
                build(j + 1, vA0 + 4 * ((j + 1) % 2))
            if before:
                before(j)
            c = "0" if (zero and j == j0) else vr(D)
            a(f"v_mfma_f32_16x16x32_bf16 {vr(D)}, {vr(vA0 + 4 * (j % 2))}, {B(j)}, {c}")

    def tag4(self, r):
        for i in range(4):
            self.a(f"v_add_u32 v{r + i}, 0x800, v{r + i}")
        for i in range(4):
            self.a(f"v_bfi_b32 v{r + i}, s{sLOW}, v{vTAG}, v{r + i}")

    def poll(self, issue, regs, full, tracked_tag=None):
        a = self.a
        chk, ok = a.label("chk"), a.label("ok")
        if tracked_tag is None:
            issue()
            a("s_waitcnt vmcnt(0)")
            a.vmreset()
        else:
            a.vmwait(tracked_tag)
        a(f"{chk}:")
        a(f"v_xor_b32 v4, s{sTAG}, v{regs[0]}")
        for r in regs[1:]:
            a(f"v_bitop3_b32 v4, v4, v{r}, s{sTAG} bitop3:0xf6")
        if not full:
            a(f"v_and_b32 v4, s{sLOW}, v4")
        a(f"v_cmp_ne_u32 vcc, 0, v4\ns_cbranch_vccz {ok}\ns_cmp_eq_u32 s{sSPIN}, 0\ns_cbranch_scc1 {ok}\ns_sub_u32 s{sSPIN}, s{sSPIN}, 1")
        issue()
        a(f"s_waitcnt vmcnt(0)\ns_branch {chk}\n{ok}:")

    def q_issue(self, mat, g0, track):
        a = self.a
        def issue(tr=False):
            for q in range(4):
                t = f"buffer_load_dwordx4 {vr(g0 + 4 * q)}, v{vL16}, {sr(RWS)}, s{sOF2} offen offset:{1024 * q} sc1"
                if tr: a.vm(t, track)
                else: a(t)
        a(f"s_lshl_b32 s{sOF2}, s{sH}, 12\ns_add_u32 s{sOF2}, s{sOF2}, {WS_QP + mat * 32 * 4096}")
        return issue

    def q_finish(self, g0, lds_base):
        a = self.a
        for i in range(16):
            a(f"v_and_b32 v{g0 + i}, s{sHIGH}, v{g0 + i}")
        for i in range(4):
            a(f"v_add_f32 v{g0 + i}, v{g0 + i}, v{g0 + 4 + i}\nv_add_f32 v{g0 + 8 + i}, v{g0 + 8 + i}, v{g0 + 12 + i}")
        for i in range(4):
            a(f"v_add_f32 v{g0 + i}, v{g0 + i}, v{g0 + 8 + i}")
        a(f"""
        v_cvt_pk_bf16_f32 v{g0}, v{g0}, v{g0 + 1}
        v_cvt_pk_bf16_f32 v{g0 + 1}, v{g0 + 2}, v{g0 + 3}
        s_lshl_b32 s3, s{sW}, 9
        s_add_u32 s3, s3, {lds_base}
        v_lshrrev_b32 v4, 1, v{vG}
        v_and_b32 v6, 1, v{vG}
        v_lshlrev_b32 v4, 8, v4
        v_lshl_add_u32 v4, v6, 3, v4
        v_lshl_add_u32 v4, v{vN}, 4, v4
        v_add_u32 v4, s3, v4
        ds_write_b64 v4, {vr(g0, 2)}
        """)

    def role_a(self, typ):
        a, o = self.a, self.o
        a.vmreset()
        NL = 44 if typ == 1 else 40
        NG = NL // 4
        vQ, vP, vSC, vGA, vK, vX0, vX1 = 36, 40, 44, 56, 72, 248, 252
        vO1, vO2 = 23, 55
        RED0, RED1, QT, QT2, QO, MX, LS, OP = 0, 4096, 8192, 10240, 12288, 13312, 13440, 14336
        a("s_waitcnt lgkmcnt(0)")
        a(f"s_load_dword s{sTAG}, s[{P_WS}:{P_WS + 1}], 0")
        if typ == 1:
            self.srd(R0, P_BQ, 1 << 22)
            self.srd(R1, P_WQ, 1 << 22)
            a(f"""
            s_sub_u32 s{sI}, s{sI}, 2
            s_lshl_b32 s3, s{sI}, 2
            s_add_u32 s3, s3, s{sW}
            s_lshl_b32 s{sOFF}, s3, 18
            s_lshl_b32 s{sA}, s{sH}, 8
            s_add_u32 s{sOFF}, s{sOFF}, s{sA}
            s_lshl_b32 s3, s3, 6
            v_lshrrev_b32 v4, 3, v{vN}
            v_lshlrev_b32 v4, 10, v4
            v_lshl_add_u32 v4, v{vG}, 4, v4
            v_add_u32 v4, s3, v4
            v_lshlrev_b32 v5, 16, v{vG}
            v_lshl_add_u32 v5, v{vN}, 4, v5
            s_mov_b32 s{sOF2}, s{sOFF}
            """)
            a.vm(f"global_load_dwordx4 {vr(vX0)}, v4, s[{P_BX}:{P_BX + 1}]", "w0")
            for j in range(8):
                a.vm(f"buffer_load_dwordx4 {ar(128 + 4 * j)}, v5, {sr(R0)}, s{sOFF} offen nt", "w0")
                if j < 7: a(f"s_add_u32 s{sOFF}, s{sOFF}, 0x2000")
            a.vm(f"global_load_dwordx4 {vr(vX1)}, v4, s[{P_AX}:{P_AX + 1}]", "w1")
            for j in range(8):
                a.vm(f"buffer_load_dwordx4 {ar(160 + 4 * j)}, v5, {sr(R1)}, s{sOF2} offen nt", "w1")
                if j < 7: a(f"s_add_u32 s{sOF2}, s{sOF2}, 0x2000")
        else:
            self.srd(R0, P_UK, 1 << 22)
            a(f"""
            s_lshl_b32 s3, s{sB}, 2
            s_add_u32 s3, s3, s{sW}
            s_lshl_b32 s{sOFF}, s3, 19
            s_lshl_b32 s{sA}, s{sH}, 8
            s_add_u32 s{sOFF}, s{sOFF}, s{sA}
            v_lshlrev_b32 v5, 13, v{vN}
            v_lshl_add_u32 v5, v{vG}, 4, v5
            """)
            for u in range(4):
                for s in range(4):
                    a.vm(f"buffer_load_dwordx4 {ar(128 + 16 * u + 4 * s)}, v5, {sr(R0)}, s{sOFF} offen offset:{64 * s} nt", "w0")
                if u < 3: a(f"s_add_u32 s{sOFF}, s{sOFF}, 0x20000")
        self.stamp(1)
        a(f"s_lshl_b32 s3, s{sH}, 17")
        self.srd(R2, P_WO, 1 << 17, "s3")
        a(f"""
        s_lshl_b32 s3, s{sB}, 5
        s_add_u32 s3, s3, s{sH}
        s_lshl_b32 s3, s3, 21
        """)
        if typ == 1:
            a(f"s_mul_i32 s{sA}, s{sT3}, {704 * 256}\ns_add_u32 s3, s3, s{sA}\ns_add_u32 s3, s3, {(6144 - 64) * 256}")
        else:
            a(f"s_add_u32 s3, s3, {6144 * 256}")
        self.srd(R4, P_K, NL * 4096, "s3")
        self.srd(R5, P_V, NL * 4096, "s3")
        self.consts(LOG2E if o["mimicA"] else LOG2E * SCALE)
        a(f"""
        s_lshl_b32 s3, s{sW}, 8
        v_lshlrev_b32 v{vO1}, 15, v{vG}
        v_lshl_add_u32 v{vO1}, v{vN}, 4, v{vO1}
        v_add_u32 v{vO1}, s3, v{vO1}
        s_lshl_b32 s3, s{sW}, 10
        v_add_u32 v{vO2}, s3, v{vL16}
        """)
        self.selectors(perm=(typ == 1))
        self.get_tag()

        stream = []
        def ld_wo(j):
            def f():
                if j % 4 == 0: a(f"s_movk_i32 s{sOFF}, {j * 1024}")
                a.vm(f"buffer_load_dwordx4 {ar(4 * j)}, v{vO1}, {sr(R2)}, s{sOFF} offen offset:{(j % 4) * 1024} nt", "wo")
            return f
        def vreg(j):
            return ar(128 + 4 * j) if j < 32 else vr(vK + 4 * (j - 32))
        def ld_kv(which, j):
            def f():
                a(f"s_mov_b32 s{sOFF}, {j * 4096}")
                if which == "K":
                    a.vm(f"buffer_load_dwordx4 {vr(vK + 4 * j)}, v{vO2}, {sr(R4)}, s{sOFF} offen nt", f"K{j}")
                else:
                    a.vm(f"buffer_load_dwordx4 {vreg(j)}, v{vO2}, {sr(R5)}, s{sOFF} offen nt", f"V{j}")
            return f
        stream += [ld_wo(j) for j in range(32)]
        stream += [ld_kv("K", j) for j in range(NL)]
        stream += [ld_kv("V", j) for j in range(NL)]
        pos = [0]
        def pump(upto, depth):
            while pos[0] < min(upto, len(stream)):
                a.vmlimit(depth - 1)
                stream[pos[0]]()
                pos[0] += 1

        if typ == 1:
            for mat, tag, x, base, red, pw in ((1, "w0", vX0, 128, RED0, 0), (0, "w1", vX1, 160, RED1, 1)):
                a.vmwait(tag)
                if mat == 1: self.stamp(2)
                self.selgemv(0, 8, self.build_perm(x), lambda j: ar(base + 4 * j), vD, True)
                a(f"ds_write_b128 v{vO2}, {vr(vD)} offset:{red}")
                a("s_waitcnt lgkmcnt(0)\ns_barrier")
                skip = a.label("nopub")
                a(f"s_cmp_lg_u32 s{sW}, {pw}\ns_cbranch_scc1 {skip}")
                for q in range(4):
                    a(f"ds_read_b128 {vr(vGA + 4 * q)}, v{vL16} offset:{red + 1024 * q}")
                a(f"""
                s_lshl_b32 s3, s{sH}, 2
                s_add_u32 s3, s3, s{sI}
                s_lshl_b32 s3, s3, 10
                s_add_u32 s3, s3, {WS_QP + mat * 32 * 4096}
                s_waitcnt lgkmcnt(0)
                """)
                for i in range(4):
                    a(f"v_add_f32 v{vGA + i}, v{vGA + i}, v{vGA + 4 + i}\nv_add_f32 v{vGA + 8 + i}, v{vGA + 8 + i}, v{vGA + 12 + i}")
                for i in range(4):
                    a(f"v_add_f32 v{vGA + i}, v{vGA + i}, v{vGA + 8 + i}")
                self.tag4(vGA)
                a(f"buffer_store_dwordx4 {vr(vGA)}, v{vL16}, {sr(RWS)}, s3 offen sc1")
                a(f"s_nop 1\n{skip}:")
                if mat == 1:
                    self.stamp(3)
                    pump(8, 32)
            self.stamp(4)
        else:
            issue = self.q_issue(1, vGA, None)
            self.poll(issue, list(range(vGA, vGA + 16)), False)
            self.stamp(2)
            pump(o["D0"], 32)
            self.q_finish(vGA, QT2)
            a(f"""
            v_and_b32 v4, 1, v{vN}
            v_lshlrev_b32 v4, 8, v4
            v_lshl_add_u32 v4, v{vG}, 4, v4
            v_add_u32 v4, s3, v4
            s_waitcnt lgkmcnt(0)
            """)
            for s in range(4):
                a(f"ds_read_b128 {vr(vGA + 4 * s)}, v4 offset:{64 * s}")
            a("s_waitcnt lgkmcnt(0)")
            DU = 72
            for u in range(4):
                for s in range(4):
                    c = "0" if s == 0 else vr(DU + 4 * u)
                    a(f"v_mfma_f32_16x16x32_bf16 {vr(DU + 4 * u)}, {ar(128 + 16 * u + 4 * s)}, {vr(vGA + 4 * s)}, {c}")
            a(f"""
            s_lshl_b32 s3, s{sW}, 7
            v_and_b32 v4, 1, v{vN}
            v_lshlrev_b32 v4, 9, v4
            v_lshl_add_u32 v4, v{vG}, 3, v4
            v_add_u32 v4, s3, v4
            """)
            for u in range(4):
                a(f"v_cvt_pk_bf16_f32 v{DU + 4 * u}, v{DU + 4 * u}, v{DU + 4 * u + 1}")
                a(f"v_cvt_pk_bf16_f32 v{DU + 4 * u + 1}, v{DU + 4 * u + 2}, v{DU + 4 * u + 3}")
                a(f"ds_write_b64 v4, {vr(DU + 4 * u, 2)} offset:{QO + 32 * u}")
            a("s_waitcnt lgkmcnt(0)\ns_barrier")
            skip = a.label("nopub")
            a(f"""
            s_cmp_lg_u32 s{sW}, 0
            s_cbranch_scc1 {skip}
            ds_read_b128 {vr(vGA)}, v{vL16} offset:{QO}
            v_lshrrev_b32 v4, 5, v{vL}
            v_and_b32 v5, 31, v{vL}
            v_lshlrev_b32 v4, 15, v4
            v_lshl_add_u32 v4, v5, 4, v4
            s_lshl_b32 s3, s{sH}, 1
            s_add_u32 s{sA}, s3, s{sB}
            s_lshl_b32 s3, s{sA}, 9
            s_add_u32 s3, s3, {WS_QA}
            s_waitcnt lgkmcnt(0)
            buffer_store_dwordx4 {vr(vGA)}, v4, {sr(RWS)}, s3 offen sc1
            s_lshl_b32 s3, s{sA}, 4
            s_add_u32 s3, s3, {WS_FLAGB}
            v_mov_b32 v4, s{sTAG}
            v_mov_b32 v5, s{sTAG}
            v_mov_b32 v6, s{sTAG}
            v_mov_b32 v7, s{sTAG}
            v_mov_b32 v8, 0
            s_mov_b64 exec, 1
            s_waitcnt vmcnt(0)
            buffer_store_dwordx4 v[4:7], v8, {sr(RWS)}, s3 offen sc1
            s_mov_b64 exec, -1
            s_nop 1
            {skip}:
            """)
            self.stamp(3)

        pump(32 + o["qpos"], o["D0"])
        issue = self.q_issue(0, vGA, "q")
        issue(True)
        pump(32 + o["qpos"] + o["D1"] - 4, o["D1"] + 4)
        self.poll(issue, list(range(vGA, vGA + 16)), False, "q")
        self.stamp(5)
        self.q_finish(vGA, QT)
        a(f"""
        s_lshl_b32 s{sA}, s{sB}, 8
        s_add_u32 s3, s3, s{sA}
        v_lshl_add_u32 v4, v{vN}, 4, s3
        s_waitcnt lgkmcnt(0)
        ds_read_b128 {vr(vQ)}, v4
        s_waitcnt lgkmcnt(0)
        """)
        dm = "row_mask:0xf bank_mask"
        for G in range(NG):
            pump(32 + 4 * G + 4 + o["D1"], 63)
            a.vmwait(f"K{4 * G + 3}")
            for e in range(4):
                for jj in range(4):
                    k = vK + 4 * (4 * G + jj) + e
                    if e == 0: a(f"v_dot2_f32_bf16 v{vP + jj}, v{k}, v{vQ}, 0")
                    else: a(f"v_dot2c_f32_bf16 v{vP + jj}, v{k}, v{vQ + e}")
            S = vSC + G
            a(f"""
            v_add_f32_dpp v{vP}, v{vP}, v{vP} row_ror:8 {dm}:0x3
            v_add_f32_dpp v{vP + 1}, v{vP + 1}, v{vP + 1} row_ror:8 {dm}:0x3
            v_add_f32_dpp v{vP}, v{vP + 2}, v{vP + 2} row_ror:8 {dm}:0xc
            v_add_f32_dpp v{vP + 1}, v{vP + 3}, v{vP + 3} row_ror:8 {dm}:0xc
            v_add_f32_dpp v{S}, v{vP}, v{vP} row_shl:4 {dm}:0x5
            v_add_f32_dpp v{S}, v{vP + 1}, v{vP + 1} row_shr:4 {dm}:0xa
            v_add_f32_dpp v{S}, v{S}, v{S} quad_perm:[1,0,3,2] {dm}:0xf
            v_add_f32_dpp v{S}, v{S}, v{S} quad_perm:[2,3,0,1] {dm}:0xf
            """)
            if o["mimicA"]:
                a(f"""
                v_cvt_pk_bf16_f32 v{S}, v{S}, v{S}
                v_and_b32 v{S}, 0xffff0000, v{S}
                v_mul_f32 v{S}, {fbits(SCALE)}, v{S}
                v_cvt_pk_bf16_f32 v{S}, v{S}, v{S}
                v_and_b32 v{S}, 0xffff0000, v{S}
                """)
            a(f"v_mov_b32 v8, v{S}" if G == 0 else f"v_max_f32 v8, v8, v{S}")
        self.stamp(6)
        pump(32 + NL + o["D2"] + o["extra"], 63)
        a(f"""
        v_max_f32_dpp v8, v8, v8 row_ror:4 {dm}:0xf
        v_max_f32_dpp v8, v8, v8 row_ror:8 {dm}:0xf
        s_lshl_b32 s3, s{sW}, 4
        v_lshl_add_u32 v7, v{vG}, 2, s3
        v_mov_b32 v6, 0
        ds_write_b32 v7, v8 offset:{MX}
        s_waitcnt lgkmcnt(0)
        s_barrier
        """)
        for q in range(4):
            a(f"ds_read_b128 {vr(vGA + 4 * q)}, v6 offset:{MX + 16 * q}")
        a("s_waitcnt lgkmcnt(0)")
        a(f"v_max3_f32 v8, v{vGA}, v{vGA + 1}, v{vGA + 2}")
        for i in range(3, 15, 2):
            a(f"v_max3_f32 v8, v8, v{vGA + i}, v{vGA + i + 1}")
        a(f"v_max_f32 v8, v8, v{vGA + 15}\nv_mul_f32 v8, s{sCST}, v8")
        for G in range(NG):
            a(f"v_fma_f32 v{vSC + G}, v{vSC + G}, s{sCST}, -v8")
        for G in range(NG):
            a(f"v_exp_f32 v{vSC + G}, v{vSC + G}")
        a(f"v_add_f32 v5, v{vSC}, v{vSC + 1}")
        for G in range(2, NG):
            a(f"v_add_f32 v5, v5, v{vSC + G}")
        for G in range(NG):
            a(f"v_cvt_pk_bf16_f32 v{vSC + G}, v{vSC + G}, v{vSC + G}")
        skip = a.label("nostat")
        a(f"""
        v_add_f32_dpp v5, v5, v5 row_ror:4 {dm}:0xf
        v_add_f32_dpp v5, v5, v5 row_ror:8 {dm}:0xf
        ds_write_b32 v7, v5 offset:{LS}
        s_waitcnt lgkmcnt(0)
        s_barrier
        s_cmp_lg_u32 s{sW}, 0
        s_cbranch_scc1 {skip}
        """)
        for q in range(4):
            a(f"ds_read_b128 {vr(vGA + 4 * q)}, v6 offset:{LS + 16 * q}")
        a(f"""
        s_mul_i32 s3, s{sB}, 3
        s_add_u32 s3, s3, s{sT3}
        s_lshl_b32 s3, s3, 5
        s_add_u32 s3, s3, s{sH}
        s_lshl_b32 s3, s3, 4
        s_add_u32 s3, s3, {WS_STATA}
        s_waitcnt lgkmcnt(0)
        v_add_f32 v5, v{vGA}, v{vGA + 1}
        """)
        for i in range(2, 16):
            a(f"v_add_f32 v5, v5, v{vGA + i}")
        a(f"""
        v_mov_b32 v4, v8
        v_mov_b32 v7, s{sTAG}
        v_mov_b32 v8, 0
        v_mov_b32 v6, s{sTAG}
        s_mov_b64 exec, 1
        buffer_store_dwordx4 v[4:7], v8, {sr(RWS)}, s3 offen sc1
        s_mov_b64 exec, -1
        s_nop 1
        {skip}:
        """)
        self.stamp(7)
        def before(j):
            if j % 4 == 0:
                pump(32 + NL + j + 4 + o["D2"], 63)
            if j >= NL - 4: a.vmwait(f"V{j}")
            elif j % 4 == 0: a.vmwait(f"V{j + 3}")
        a(f"""
        v_and_b32 v4, 1, v{vG}
        v_lshlrev_b32 v5, 5, v{vN}
        v_lshl_add_u32 v5, v4, 4, v5
        s_lshl_b32 s3, s{sW}, 9
        v_add_u32 v5, s3, v5
        v_lshlrev_b32 v6, 3, v{vL}
        s_lshl_b32 s3, s{sB}, 2
        s_add_u32 s3, s3, s{sW}
        s_mul_i32 s3, s3, {4 * 12288}
        s_lshl_b32 s{sA}, s{sT3}, 5
        s_add_u32 s{sA}, s{sA}, s{sH}
        s_lshl_b32 s{sA}, s{sA}, 7
        s_add_u32 s3, s3, s{sA}
        s_add_u32 s{sOF2}, s3, {WS_YA}
        v_lshrrev_b32 v7, 3, v{vL}
        v_mul_u32_u24 v7, 12288, v7
        v_and_b32 v8, 7, v{vL}
        v_lshl_add_u32 v7, v8, 4, v7
        """)
        self.selgemv(0, NL, self.build_dpp(lambda j: (vSC + j // 4, 4 * (j % 4))), vreg, vD, True, before)
        self.stamp(8)
        a(f"ds_write_b128 v5, {vr(vD)} offset:{OP}\ns_waitcnt lgkmcnt(0)\ns_barrier")
        for q in range(4):
            a(f"ds_read_b64 {vr(vGA + 2 * q, 2)}, v6 offset:{OP + 512 * q}")
        a(f"""
        s_waitcnt lgkmcnt(0)
        v_add_f32 v{vGA}, v{vGA}, v{vGA + 2}
        v_add_f32 v{vGA + 1}, v{vGA + 1}, v{vGA + 3}
        v_add_f32 v{vGA + 4}, v{vGA + 4}, v{vGA + 6}
        v_add_f32 v{vGA + 5}, v{vGA + 5}, v{vGA + 7}
        v_add_f32 v{vGA}, v{vGA}, v{vGA + 4}
        v_add_f32 v{vGA + 1}, v{vGA + 1}, v{vGA + 5}
        v_cvt_pk_bf16_f32 v{vGA}, v{vGA}, v{vGA}
        v_cvt_pk_bf16_f32 v{vGA + 1}, v{vGA + 1}, v{vGA + 1}
        """)
        self.selgemv(0, 32, self.build_dpp(lambda j: (vGA + j % 2, j // 2)), lambda j: ar(4 * j), vD, True)
        self.tag4(vD)
        a(f"s_mov_b32 exec_hi, 0\nbuffer_store_dwordx4 {vr(vD)}, v7, {sr(RWS)}, s{sOF2} offen sc1")
        self.finish()

    def role_b(self):
        a, o = self.a, self.o
        a.vmreset()
        vDM, vH1, vQK, vTR, vW1, vMX, vLS, vHL, vHD = 36, 40, 44, 52, 60, 63, 64, 65, 66
        vSS, vFR, vO, vUV, vQQ, vPK = 72, 88, 112, 176, 240, 248
        QB = 131072
        PB, MXB, LSB, XC, RED, XT, FIN = QB, QB + 8192, QB + 9216, QB + 10240, QB + 12288, QB + 16384, QB + 20480
        dm = "row_mask:0xf bank_mask"
        sS = sT3
        a(f"""
        s_lshl_b32 s3, s{sW}, 2
        s_lshl_b32 s{sA}, s{sW}, 10
        v_xor_b32 v4, s3, v{vL}
        s_lshl_b32 s{sC}, s{sW}, 8
        v_lshlrev_b32 v5, 2, v{vG}
        v_xor_b32 v5, v5, v{vN}
        v_lshlrev_b32 v6, 10, v{vG}
        v_add_u32 v6, s{sC}, v6
        """)
        for j in range(4):
            a(f"v_xor_b32 v7, {j}, v4\nv_lshl_add_u32 v{vDM + j}, v7, 4, s{sA}")
            a(f"v_xor_b32 v7, {j}, v5\nv_lshl_add_u32 v{vH1 + j}, v7, 4, v6")
        a(f"v_lshl_add_u32 v{vW1}, v{vN}, 4, v6")
        a("s_waitcnt lgkmcnt(0)")
        a(f"s_load_dword s{sTAG}, s[{P_WS}:{P_WS + 1}], 0")
        a(f"s_lshl_b32 s3, s{sI}, 18")
        self.srd(R0, P_CKV, 1 << 18, "s3")
        a(f"s_mov_b32 s{sOFF}, 0")
        for j in range(32):
            a(f"s_add_u32 m0, s{sOFF}, s{sA}")
            a.vm(f"buffer_load_dwordx4 v{vDM + j % 4}, {sr(R0)}, s{sOFF} offen nt lds", "c0")
            a(f"s_add_u32 s{sOFF}, s{sOFF}, 0x1000")
        self.stamp(1)
        for j in range(32):
            a.vmlimit(60)
            a.vm(f"buffer_load_dwordx4 {ar(128 + 4 * j)}, v{vH1 + j % 4}, {sr(R0)}, s{sOFF} offen nt", "c1")
            if j < 31: a(f"s_add_u32 s{sOFF}, s{sOFF}, 0x1000")
        self.consts(LOG2E * SCALE)
        self.selectors()
        a(f"""
        s_lshr_b32 s{sB}, s{sI}, 5
        s_and_b32 s{sS}, s{sI}, 31
        s_lshr_b32 s{sH}, s{sI}, 1
        v_add_u32 v{vW1 + 1}, 0x10000, v{vW1}
        v_lshrrev_b32 v{vHL}, 5, v{vL}
        v_and_b32 v{vHD}, 31, v{vL}
        v_and_b32 v4, 3, v{vL}
        v_bfe_u32 v5, v{vL}, 2, 2
        v_lshl_add_u32 v6, v4, 2, v5
        v_xor_b32 v6, v6, v{vHL}
        v_lshlrev_b32 v7, 10, v{vHD}
        s_lshl_b32 s3, s{sW}, 15
        """)
        for s in range(8):
            a(f"v_xor_b32 v8, {2 * s}, v6\nv_lshl_add_u32 v8, v8, 4, v7\nv_add_u32 v{vQK + s}, s3, v8\nv_add_u32 v{vQQ + s}, {QB}, v8")
        a(f"""
        v_bfe_u32 v6, v{vL}, 4, 1
        v_lshrrev_b32 v7, 1, v4
        v_lshl_add_u32 v6, v6, 1, v7
        v_xor_b32 v6, v6, v{vHL}
        v_lshl_add_u32 v6, v5, 2, v6
        v_lshl_add_u32 v7, v{vHL}, 2, v5
        v_lshlrev_b32 v7, 10, v7
        v_and_b32 v8, 1, v{vL}
        v_lshl_add_u32 v7, v8, 3, v7
        v_add_u32 v7, s{sC}, v7
        """)
        for T in range(4):
            for z in range(2):
                a(f"v_xor_b32 v8, {4 * T + 2 * z}, v6\nv_lshl_add_u32 v{vTR + 2 * T + z}, v8, 4, v7")
                if z: a(f"v_add_u32 v{vTR + 2 * T + z}, 0x2000, v{vTR + 2 * T + z}")
        self.get_tag()
        self.srd(R1, P_UV, 1 << 22)
        a(f"s_lshl_b32 s3, s{sH}, 17")
        self.srd(R2, P_BO, 1 << 17, "s3")
        skip = a.label("nopoll")
        a(f"s_cmp_lg_u32 s{sW}, 0\ns_cbranch_scc1 {skip}\ns_movk_i32 s3, {WS_FLAGB}")
        saved = list(a.q)
        self.poll(lambda: a(f"buffer_load_dwordx4 {vr(vSS)}, v{vL16}, {sr(RWS)}, s3 offen sc1"), list(range(vSS, vSS + 4)), True)
        a.q = saved
        a(f"{skip}:\ns_barrier")
        self.stamp(2)
        a(f"s_lshl_b32 s{sOFF}, s{sB}, 15\ns_add_u32 s{sOFF}, s{sOFF}, {WS_QA}\ns_add_u32 s3, s{sA}, {QB}")
        for j in range(8):
            a(f"s_add_u32 m0, s3, {4096 * j}")
            a.vm(f"buffer_load_dwordx4 v{vDM + j % 4}, {sr(RWS)}, s{sOFF} offen sc1 lds", "q")
            if j < 7: a(f"s_add_u32 s{sOFF}, s{sOFF}, 0x1000")
        a(f"""
        s_and_b32 s3, s{sI}, 1
        s_lshl_b32 s3, s3, 2
        s_add_u32 s3, s3, s{sW}
        s_lshl_b32 s{sOFF}, s3, 19
        s_lshl_b32 s3, s{sH}, 8
        s_add_u32 s{sOFF}, s{sOFF}, s3
        v_lshlrev_b32 v4, 17, v{vG}
        v_lshl_add_u32 v4, v{vN}, 4, v4
        """)
        for j in range(16):
            a.vmlimit(60)
            a.vm(f"buffer_load_dwordx4 {vr(vUV + 4 * j)}, v4, {sr(R1)}, s{sOFF} offen nt", "uv")
            if j < 15: a(f"s_add_u32 s{sOFF}, s{sOFF}, 0x2000")
        a.vmwait("q")
        a("s_barrier")
        self.stamp(3)

        for rnd in range(2):
            PF = 3 if rnd == 0 else 5
            def rd(s):
                if rnd == 0:
                    a(f"ds_read_b128 {ar(4 * s)}, v{vQQ + s % 8} offset:{256 * (s // 8)}")
                a(f"ds_read_b128 {vr(vFR + 4 * (s % 6))}, v{vQK + s % 8} offset:{256 * (s // 8)}")
            per = 2 if rnd == 0 else 1
            for s in range(PF): rd(s)
            for s in range(32):
                if s + PF < 32: rd(s + PF)
                left = min(PF, 31 - s)
                a(f"s_waitcnt lgkmcnt({left * per})")
                c = "0" if s == 0 else vr(vSS, 16)
                a(f"v_mfma_f32_32x32x16_bf16 {vr(vSS, 16)}, {vr(vFR + 4 * (s % 6))}, {ar(4 * s)}, {c}")
            if rnd == 0:
                a("s_barrier")
            a(f"""
            v_lshlrev_b32 v6, 4, v{vHD}
            v_add_u32 v6, {MXB + 512 * rnd}, v6
            s_lshl_b32 s3, s{sW}, 2
            v_add_u32 v7, s3, v6
            v_max3_f32 v4, v{vSS}, v{vSS + 1}, v{vSS + 2}
            """)
            for i in range(3, 15, 2):
                a(f"v_max3_f32 v4, v4, v{vSS + i}, v{vSS + i + 1}")
            a(f"""
            v_max_f32 v4, v4, v{vSS + 15}
            v_mov_b32 v5, v4
            v_permlane32_swap_b32 v4, v5
            v_max_f32 v4, v4, v5
            ds_write_b32 v7, v4
            s_waitcnt lgkmcnt(0)
            s_barrier
            ds_read_b128 {vr(vPK)}, v6
            s_lshl_b32 s3, s{sW}, 11
            s_add_u32 s3, s3, {PB}
            v_add_u32 v7, s3, v{vL16}
            s_waitcnt lgkmcnt(0)
            v_max3_f32 v4, v{vPK}, v{vPK + 1}, v{vPK + 2}
            v_max_f32 v4, v4, v{vPK + 3}
            v_mul_f32 v4, s{sCST}, v4
            """)
            if rnd == 0:
                a(f"v_mov_b32 v{vMX}, v4")
            else:
                a(f"v_max_f32 v4, v4, v{vMX}\nv_sub_f32 v8, v{vMX}, v4\nv_exp_f32 v8, v8\nv_mov_b32 v{vMX}, v4\nv_mul_f32 v{vLS}, v{vLS}, v8")
            for i in range(16):
                a(f"v_fma_f32 v{vSS + i}, v{vSS + i}, s{sCST}, -v4")
            for i in range(16):
                a(f"v_exp_f32 v{vSS + i}, v{vSS + i}")
            for i in range(8):
                a(f"v_cvt_pk_bf16_f32 v{vPK + i}, v{vSS + 2 * i}, v{vSS + 2 * i + 1}")
            a(f"ds_write_b128 v7, {vr(vPK)}\nds_write_b128 v7, {vr(vPK + 4)} offset:1024")
            for i in range(16):
                if rnd == 0 and i == 0: continue
                if rnd == 0 and i == 1: a(f"v_add_f32 v{vLS}, v{vSS}, v{vSS + 1}")
                else: a(f"v_add_f32 v{vLS}, v{vLS}, v{vSS + i}")
            a(f"v_add_u32 v7, {PB}, v{vL16}")
            a("s_waitcnt lgkmcnt(0)\ns_barrier")
            if rnd == 0: a.vmwait("c1")
            self.stamp(4 + 2 * rnd)
            def reads(ks):
                b = vSS + 20 * (ks % 2)
                L = [f"ds_read_b128 {vr(b)}, v7 offset:{1024 * ks}"]
                for T in range(4):
                    for z in range(2):
                        L.append(f"ds_read_b64_tr_b16 {vr(b + 4 + 4 * T + 2 * z, 2)}, v{vTR + 2 * T + z} offset:{16384 * (ks % 4)}")
                return L
            def bump(d):
                for i in range(8):
                    a(f"v_add_u32 v{vTR + i}, {d}, v{vTR + i}")
            for t in reads(0): a(t)
            if rnd == 1:
                for i in range(64):
                    a(f"v_mul_f32 v{vO + i}, v{vO + i}, v8")
            pend = 0
            for ks in range(8):
                a(f"s_waitcnt lgkmcnt({pend})")
                if ks == 3: bump("0x10000")
                nx = reads(ks + 1) if ks < 7 else []
                wr = []
                if rnd == 0:
                    for j in range(4 * ks, 4 * ks + 4):
                        wr.append(f"ds_write_b128 v{vW1 + j // 16}, {ar(128 + 4 * j)} offset:{4096 * (j % 16)}")
                seq = nx + wr
                pend = len(wr)
                b = vSS + 20 * (ks % 2)
                cut = [0, 3, 6, 9, len(seq)]
                for T in range(4):
                    c = "0" if (rnd == 0 and ks == 0) else vr(vO + 16 * T, 16)
                    a(f"v_mfma_f32_32x32x16_bf16 {vr(vO + 16 * T, 16)}, {vr(b + 4 + 4 * T)}, {vr(b)}, {c}")
                    for t in seq[cut[T]:cut[T + 1]]: a(t)
            if rnd == 0:
                bump("0xffff0000")
                a(f"""
                s_lshl_b32 s3, s{sW}, 8
                v_lshlrev_b32 v4, 15, v{vG}
                v_lshl_add_u32 v4, v{vN}, 4, v4
                v_add_u32 v4, s3, v4
                s_waitcnt lgkmcnt(0)
                s_barrier
                """)
                for j in range(32):
                    if j % 4 == 0: a(f"s_movk_i32 s{sOFF}, {j * 1024}")
                    a.vm(f"buffer_load_dwordx4 {ar(128 + 4 * j)}, v4, {sr(R2)}, s{sOFF} offen offset:{(j % 4) * 1024} nt", "bo")
            self.stamp(5 + 2 * rnd)

        a(f"""
        v_mov_b32 v5, v{vLS}
        v_lshlrev_b32 v6, 4, v{vHD}
        v_add_u32 v6, {LSB}, v6
        v_permlane32_swap_b32 v5, v{vLS}
        s_lshl_b32 s3, s{sW}, 2
        v_add_f32 v5, v5, v{vLS}
        v_add_u32 v7, s3, v6
        ds_write_b32 v7, v5
        v_lshlrev_b32 v7, 10, v{vHD}
        v_lshl_add_u32 v7, v{vHL}, 3, v7
        v_add_u32 v7, s{sC}, v7
        """)
        for T in range(4):
            for rq in range(4):
                r = vO + 16 * T + 4 * rq
                a(f"""
                v_xor_b32 v8, {4 * T + rq}, v{vN}
                v_cvt_pk_bf16_f32 v{r}, v{r}, v{r + 1}
                v_cvt_pk_bf16_f32 v{r + 1}, v{r + 2}, v{r + 3}
                v_lshl_add_u32 v8, v8, 4, v7
                ds_write_b64 v8, {vr(r, 2)}
                """)
        a(f"""
        v_lshlrev_b32 v7, 10, v{vG}
        v_add_u32 v7, s{sC}, v7
        v_xor_b32 v4, v{vG}, v{vN}
        """)
        for jj in range(8):
            a(f"v_xor_b32 v8, {4 * (jj % 4)}, v4\nv_lshl_add_u32 v8, v8, 4, v7\nds_read_b128 {vr(vSS + 4 * jj)}, v8 offset:{4096 * jj}")
        a(f"""
        s_lshl_b32 s3, s{sW}, 14
        s_lshl_b32 s{sOFF}, s{sI}, 8
        s_add_u32 s{sOFF}, s{sOFF}, s3
        s_add_u32 s{sOFF}, s{sOFF}, {WS_PART}
        v_lshlrev_b32 v7, 16, v{vG}
        v_lshl_add_u32 v7, v{vN}, 4, v7
        """)
        for jj in range(8):
            a(f"s_waitcnt lgkmcnt({7 - jj})")
            a.vm(f"buffer_store_dwordx4 {vr(vSS + 4 * jj)}, v7, {sr(RWS)}, s{sOFF} offen sc1", "part")
            if jj < 7: a(f"s_add_u32 s{sOFF}, s{sOFF}, 0x40000")
        self.stamp(8)
        skip = a.label("nostat")
        a(f"""
        s_waitcnt vmcnt(0)
        s_barrier
        s_cmp_lg_u32 s{sW}, 0
        s_cbranch_scc1 {skip}
        ds_read_b128 {vr(vPK)}, v6
        v_mov_b32 v4, v{vMX}
        v_mov_b32 v7, s{sTAG}
        v_lshlrev_b32 v8, 10, v{vHD}
        s_lshl_b32 s3, s{sI}, 4
        s_add_u32 s3, s3, {WS_STATB}
        s_waitcnt lgkmcnt(0)
        v_mov_b32 v6, s{sTAG}
        v_add_f32 v5, v{vPK}, v{vPK + 1}
        v_add_f32 v5, v5, v{vPK + 2}
        v_add_f32 v5, v5, v{vPK + 3}
        s_mov_b32 exec_hi, 0
        buffer_store_dwordx4 v[4:7], v8, {sr(RWS)}, s3 offen sc1
        s_mov_b64 exec, -1
        s_nop 1
        {skip}:
        """)
        a.vmreset()
        self.stamp(9)
        a(f"""
        s_lshr_b32 s{sA}, s{sW}, 1
        s_lshl_b32 s3, s{sH}, 1
        s_add_u32 s3, s3, s{sA}
        s_lshl_b32 s3, s3, 9
        s_add_u32 s{sOF2}, s3, {WS_STATB}
        v_and_b32 v5, 7, v{vN}
        v_lshl_add_u32 v5, v5, 2, v{vG}
        v_lshlrev_b32 v5, 4, v5
        s_and_b32 s3, s{sW}, 1
        s_lshl_b32 s{sOFF}, s{sI}, 1
        s_add_u32 s{sOFF}, s{sOFF}, s3
        s_lshl_b32 s{sOFF}, s{sOFF}, 1
        s_add_u32 s{sOFF}, s{sOFF}, s{sA}
        s_lshl_b32 s{sOFF}, s{sOFF}, 13
        s_add_u32 s{sOFF}, s{sOFF}, {WS_PART}
        """)
        self.poll(lambda: a(f"buffer_load_dwordx4 {vr(vPK)}, v5, {sr(RWS)}, s{sOF2} offen sc1"), [vPK + 2, vPK + 3], True)
        self.stamp(10)
        for j in range(8):
            if j == 4: a(f"s_add_u32 s{sOFF}, s{sOFF}, 0x1000")
            a.vm(f"buffer_load_dwordx4 {vr(vSS + 4 * j)}, v{vL16}, {sr(RWS)}, s{sOFF} offen offset:{1024 * (j % 4)} sc1", f"p{j}")
        def allred(op, r, t):
            for k in (1, 2, 4):
                a(f"{op}_dpp v{r}, v{r}, v{r} row_ror:{k} {dm}:0xf")
            for sw in ("v_permlane16_swap_b32", "v_permlane32_swap_b32"):
                a(f"v_mov_b32 v{t}, v{r}\n{sw} v{t}, v{r}\n{op} v{r}, v{r}, v{t}")
        a(f"v_mov_b32 v4, v{vPK}")
        allred("v_max_f32", 4, 6)
        a(f"v_sub_f32 v4, v{vPK}, v4\nv_exp_f32 v4, v4\nv_mul_f32 v5, v4, v{vPK + 1}")
        allred("v_add_f32", 5, 6)
        a(f"""
        v_rcp_f32 v5, v5
        v_mul_f32 v4, v4, v5
        v_cvt_pk_bf16_f32 v{vPK}, v4, v4
        s_lshl_b32 s3, s{sW}, 8
        s_add_u32 s3, s3, {XC}
        v_and_b32 v6, 1, v{vG}
        v_lshlrev_b32 v6, 3, v6
        v_lshl_add_u32 v6, v{vN}, 4, v6
        v_add_u32 v7, s3, v6
        s_lshl_b32 s3, s{sW}, 7
        s_add_u32 s3, s3, {XC}
        v_lshrrev_b32 v5, 3, v{vN}
        v_lshlrev_b32 v4, 9, v5
        v_lshl_add_u32 v4, v{vG}, 5, v4
        v_add_u32 v4, s3, v4
        """)
        self.selgemv(0, 8, self.build_dpp(lambda j: (vPK, j)), lambda j: vr(vSS + 4 * j), vD, True, lambda j: a.vmwait(f"p{j}"))
        a(f"""
        v_cvt_pk_bf16_f32 v{vD}, v{vD}, v{vD + 1}
        v_cvt_pk_bf16_f32 v{vD + 1}, v{vD + 2}, v{vD + 3}
        ds_write_b64 v7, {vr(vD, 2)}
        s_waitcnt lgkmcnt(0)
        s_barrier
        ds_read_b128 {vr(vSS)}, v4
        ds_read_b128 {vr(vSS + 4)}, v4 offset:16
        """)
        skip = a.label("noepoch")
        a(f"""
        s_or_b32 s3, s{sI}, s{sW}
        s_cmp_lg_u32 s3, 0
        s_cbranch_scc1 {skip}
        v_mov_b32 v8, 0
        s_mov_b64 exec, 1
        buffer_store_dword v{vTAG}, v8, {sr(RWS)}, 0 offen sc1
        s_mov_b64 exec, -1
        {skip}:
        s_lshl_b32 s3, s{sW}, 10
        s_add_u32 s3, s3, {RED}
        v_add_u32 v7, s3, v{vL16}
        v_add_u32 v8, {RED}, v{vL16}
        s_lshl_b32 s3, s{sW}, 9
        s_add_u32 s3, s3, {XT}
        v_lshrrev_b32 v4, 1, v{vG}
        v_lshl_add_u32 v6, v4, 8, v6
        v_add_u32 v6, s3, v6
        v_lshlrev_b32 v5, 8, v5
        v_lshl_add_u32 v5, v{vG}, 6, v5
        v_add_u32 v5, s3, v5
        s_waitcnt lgkmcnt(0)
        """)
        self.stamp(11)
        self.selgemv(0, 16, self.build_perm(vSS), lambda j: vr(vUV + 4 * j), vD, True)
        a(f"ds_write_b128 v7, {vr(vD)}\ns_waitcnt lgkmcnt(0)\ns_barrier")
        for q in range(4):
            a(f"ds_read_b128 {vr(vSS + 4 * q)}, v8 offset:{1024 * q}")
        a("s_waitcnt lgkmcnt(0)")
        for i in range(4):
            a(f"v_add_f32 v{vSS + i}, v{vSS + i}, v{vSS + 4 + i}\nv_add_f32 v{vSS + 8 + i}, v{vSS + 8 + i}, v{vSS + 12 + i}")
        for i in range(4):
            a(f"v_add_f32 v{vSS + i}, v{vSS + i}, v{vSS + 8 + i}")
        a(f"""
        v_cvt_pk_bf16_f32 v{vSS}, v{vSS}, v{vSS + 1}
        v_cvt_pk_bf16_f32 v{vSS + 1}, v{vSS + 2}, v{vSS + 3}
        ds_write_b64 v6, {vr(vSS, 2)}
        s_waitcnt lgkmcnt(0)
        """)
        for q in range(4):
            a(f"ds_read_b128 {vr(vSS + 4 * q)}, v5 offset:{16 * q}")
        a(f"""
        s_lshl_b32 s3, s{sW}, 15
        s_lshl_b32 s{sOFF}, s{sI}, 7
        s_add_u32 s{sOFF}, s{sOFF}, s3
        s_add_u32 s{sOFF}, s{sOFF}, {WS_YB}
        v_bfe_u32 v7, v{vL}, 3, 2
        v_lshlrev_b32 v7, 13, v7
        v_lshl_add_u32 v7, v{vHL}, 17, v7
        v_and_b32 v8, 7, v{vL}
        v_lshl_add_u32 v7, v8, 4, v7
        s_waitcnt lgkmcnt(0)
        """)
        self.selgemv(0, 32, self.build_perm(vSS), lambda j: ar(128 + 4 * j), vD, True)
        self.tag4(vD)
        a(f"buffer_store_dwordx4 {vr(vD)}, v7, {sr(RWS)}, s{sOFF} offen sc1")
        self.stamp(12)

        redb, join = a.label("redb"), a.label("join")
        self.srd(R0, P_OUT, 4096)
        a(f"""
        s_lshr_b32 s{sB}, s{sH}, 4
        s_and_b32 s{sA}, s{sH}, 15
        s_lshr_b32 s3, s{sA}, 2
        s_lshl_b32 s{sC}, s3, 8
        s_bfe_u32 s3, s{sA}, 0x10001
        s_lshl_b32 s3, s3, 3
        s_add_u32 s{sC}, s{sC}, s3
        s_and_b32 s3, s{sA}, 1
        s_lshl_b32 s3, s3, 7
        s_add_u32 s{sC}, s{sC}, s3
        s_lshl_b32 s3, s{sB}, 11
        s_add_u32 s{sC}, s{sC}, s3
        v_lshlrev_b32 v{vW1}, 1, v{vG}
        v_lshl_add_u32 v{vW1}, v8, 4, v{vW1}
        s_lshl_b32 s3, s{sW}, 8
        s_add_u32 s3, s3, {FIN}
        v_lshlrev_b32 v{vQK + 1}, 2, v{vL}
        v_add_u32 v{vQK}, s3, v{vQK + 1}
        v_add_u32 v{vQK + 1}, {FIN}, v{vQK + 1}
        s_bitcmp1_b32 s{sI}, 0
        s_cbranch_scc1 {redb}
        s_mul_i32 s3, s{sB}, 1536
        s_lshl_b32 s{sOF2}, s{sW}, 7
        s_add_u32 s{sOF2}, s{sOF2}, s3
        s_add_u32 s{sOF2}, s{sOF2}, {WS_STATA}
        v_lshrrev_b32 v5, 3, v{vL}
        v_lshlrev_b32 v5, 4, v5
        """)
        def st():
            for t in range(3):
                a(f"buffer_load_dwordx4 {vr(vSS + 4 * t)}, v5, {sr(RWS)}, s{sOF2} offen offset:{512 * t} sc1")
        self.poll(st, [vSS + 2, vSS + 3, vSS + 6, vSS + 7, vSS + 10, vSS + 11], True)
        a(f"""
        v_max3_f32 v4, v{vSS}, v{vSS + 4}, v{vSS + 8}
        v_sub_f32 v{vPK}, v{vSS}, v4
        v_sub_f32 v{vPK + 1}, v{vSS + 4}, v4
        v_sub_f32 v{vPK + 2}, v{vSS + 8}, v4
        v_exp_f32 v{vPK}, v{vPK}
        v_exp_f32 v{vPK + 1}, v{vPK + 1}
        v_exp_f32 v{vPK + 2}, v{vPK + 2}
        v_mul_f32 v4, v{vPK}, v{vSS + 1}
        v_fmac_f32 v4, v{vPK + 1}, v{vSS + 5}
        v_fmac_f32 v4, v{vPK + 2}, v{vSS + 9}
        v_rcp_f32 v4, v4
        v_mul_f32 v{vPK}, v{vPK}, v4
        v_mul_f32 v{vPK + 1}, v{vPK + 1}, v4
        v_mul_f32 v{vPK + 2}, v{vPK + 2}, v4
        s_mul_i32 s{sOF2}, s{sH}, 12288
        s_lshl_b32 s3, s{sW}, 10
        s_add_u32 s{sOF2}, s{sOF2}, s3
        s_add_u32 s{sOF2}, s{sOF2}, {WS_YA}
        s_add_u32 s{sOFF}, s{sOF2}, 0x1000
        s_add_u32 s{sA}, s{sOF2}, 0x2000
        """)
        def ya():
            for t, s in enumerate((sOF2, sOFF, sA)):
                a(f"buffer_load_dwordx4 {vr(vSS + 4 * t)}, v{vL16}, {sr(RWS)}, s{s} offen sc1")
        self.poll(ya, list(range(vSS, vSS + 12)), False)
        for i in range(12):
            a(f"v_and_b32 v{vSS + i}, s{sHIGH}, v{vSS + i}")
        for i in range(4):
            a(f"v_mul_f32 v{vD + i}, v{vPK}, v{vSS + i}")
        for t in (1, 2):
            for i in range(4):
                a(f"v_fmac_f32 v{vD + i}, v{vPK + t}, v{vSS + 4 * t + i}")
        a(f"""
        s_branch {join}
        {redb}:
        s_add_u32 s{sC}, s{sC}, 1024
        s_lshl_b32 s{sOF2}, s{sH}, 13
        s_lshl_b32 s3, s{sW}, 11
        s_add_u32 s{sOF2}, s{sOF2}, s3
        s_add_u32 s{sOF2}, s{sOF2}, {WS_YB}
        """)
        def yb():
            for t in range(2):
                a(f"buffer_load_dwordx4 {vr(vSS + 4 * t)}, v{vL16}, {sr(RWS)}, s{sOF2} offen offset:{1024 * t} sc1")
        self.poll(yb, list(range(vSS, vSS + 8)), False)
        for i in range(8):
            a(f"v_and_b32 v{vSS + i}, s{sHIGH}, v{vSS + i}")
        for i in range(4):
            a(f"v_add_f32 v{vD + i}, v{vSS + i}, v{vSS + 4 + i}")
        a(f"{join}:\ns_nop 1")
        self.stamp(13)
        for i in range(4):
            a(f"v_add_f32_dpp v{vD + i}, v{vD + i}, v{vD + i} row_ror:8 {dm}:0xf")
        done = a.label("done")
        a(f"""
        v_permlane16_swap_b32 v{vD}, v{vD + 1}
        v_permlane16_swap_b32 v{vD + 2}, v{vD + 3}
        v_add_f32 v{vD}, v{vD}, v{vD + 1}
        v_add_f32 v{vD + 2}, v{vD + 2}, v{vD + 3}
        v_permlane32_swap_b32 v{vD}, v{vD + 2}
        v_add_f32 v{vD}, v{vD}, v{vD + 2}
        ds_write_b32 v{vQK}, v{vD}
        s_waitcnt lgkmcnt(0)
        s_barrier
        s_cmp_lg_u32 s{sW}, 0
        s_cbranch_scc1 {done}
        """)
        for q in range(4):
            a(f"ds_read_b32 v{vD + q}, v{vQK + 1} offset:{256 * q}")
        a(f"""
        s_mov_b32 exec_lo, 0x00ff00ff
        s_mov_b32 exec_hi, 0x00ff00ff
        s_waitcnt lgkmcnt(0)
        v_add_f32 v{vD}, v{vD}, v{vD + 1}
        v_add_f32 v{vD + 2}, v{vD + 2}, v{vD + 3}
        v_add_f32 v{vD}, v{vD}, v{vD + 2}
        v_cvt_pk_bf16_f32 v{vD}, v{vD}, v{vD}
        buffer_store_short v{vD}, v{vW1}, {sr(R0)}, s{sC} offen
        {done}:
        """)
        self.finish()

    def build(self, header):
        a = self.a
        a(f"""
        s_load_dwordx16 s[8:23], s[0:1], 0
        s_load_dwordx8 s[24:31], s[0:1], 64
        s_load_dwordx4 s[32:35], s[0:1], 96
        s_cmp_ge_u32 s2, 256
        s_cbranch_scc1 L_exit
        """)
        if self.o["stamps"]:
            for i in range(1, 15):
                a(f"s_mov_b32 s{sSTAMP + 2 * i}, 0")
            a(f"s_memrealtime s[{sSTAMP}:{sSTAMP + 1}]")
        a(f"""
        v_lshrrev_b32 v4, 6, v0
        v_and_b32 v{vL}, 63, v0
        v_readfirstlane_b32 s{sW}, v4
        v_and_b32 v{vN}, 15, v0
        v_bfe_u32 v{vG}, v0, 4, 2
        s_and_b32 s{sA}, s2, 7
        s_lshr_b32 s{sC}, s2, 3
        s_lshl_b32 s{sI}, s{sA}, 3
        s_add_u32 s{sI}, s{sI}, s{sC}
        s_sub_u32 s{sI}, s{sI}, 24
        s_cmp_ge_u32 s{sC}, 24
        s_cbranch_scc1 L_role_b
        s_mul_i32 s3, s{sC}, 43
        s_lshr_b32 s3, s3, 8
        s_lshl_b32 s{sH}, s{sA}, 2
        s_add_u32 s{sH}, s{sH}, s3
        s_mul_i32 s3, s3, 6
        s_sub_u32 s{sI}, s{sC}, s3
        s_and_b32 s{sB}, s{sI}, 1
        s_lshr_b32 s{sT3}, s{sI}, 1
        s_cmp_eq_u32 s{sT3}, 0
        s_cbranch_scc1 L_role_a2
        """)
        self.role_a(1)
        a("L_exit:\ns_endpgm\nL_role_a2:")
        self.role_a(2)
        a("L_role_b:")
        self.role_b()
        body = a.text()
        return (header + f"""; @launch grid=(256,1,1) block=(256,1,1) lds=163840
.amdgcn_target "amdgcn-amd-amdhsa--gfx950"
.text
.globl {KERNEL}
.p2align 8
.type {KERNEL},@function
{KERNEL}:
""" + body + f""".section .rodata,"a"
.p2align 6
.amdhsa_kernel {KERNEL}
  .amdhsa_next_free_vgpr 512
  .amdhsa_next_free_sgpr 102
  .amdhsa_accum_offset 256
  .amdhsa_group_segment_fixed_size 0
  .amdhsa_kernarg_size 112
  .amdhsa_user_sgpr_count 2
  .amdhsa_user_sgpr_kernarg_segment_ptr 1
  .amdhsa_system_sgpr_workgroup_id_x 1
.end_amdhsa_kernel
""")


def header():
    ref = open(f"cdna_kernels/{NAME}.s.ref").read().split("\n")
    return "\n".join(l for l in ref if l.startswith(";") and "@launch" not in l) + "\n"


if __name__ == "__main__":
    out = sys.argv[1]
    kw = eval("dict(" + (sys.argv[2] if len(sys.argv) > 2 else "") + ")")
    open(out, "w").write(Gen(**kw).build(header()))
```

```python
import sys, math
from asmlib import Asm

NAME = "concat_heads__sliding_block_cached__compressed_kv_cla__decode"
KERNEL = NAME + "_kernel"

WS_FLAGB = 0x1000
WS_STATA = 0x2000
WS_QP = 0x10000
WS_QA = 0x50000
WS_STATB = 0x60000
WS_YA = 0x80000
WS_YB = 0x100000
WS_PART = 0x200000
WS_SIZE = 0x400000
WS_STAMP = 0x1000000

P_AX, P_K, P_V, P_WQ, P_WO, P_BX, P_CKV, P_BQ, P_UK, P_UV, P_BO, P_OUT, P_DBG, P_WS = [8 + 2 * i for i in range(14)]
R0, R1, R2, RWS, R4, R5 = 36, 40, 44, 48, 52, 4
sW, sH, sB, sT3, sTAG, sOFF, sA, sC, sSPIN, sLOW, sHIGH, sCST, sOF2, sI = range(56, 70)
sEX = 70
sSTAMP = 72
vL, vN, vG, vTAG = 1, 2, 3, 9
vM, vS, vA0, vD = 10, 14, 24, 32
vL16 = 22

LOG2E = math.log2(math.e)
SCALE = 128 ** -0.5
import struct
def fbits(x): return "0x%08x" % struct.unpack("<I", struct.pack("<f", x))[0]
def vr(b, n=4): return f"v[{b}:{b + n - 1}]"
def ar(b, n=4): return f"a[{b}:{b + n - 1}]"
def sr(b, n=4): return f"s[{b}:{b + n - 1}]"

DEF = dict(stamps=False, D0=12, D1=12, D2=12, spin=200000, mimicA=True, qpos=8, extra=6)


class Gen:
    def __init__(self, **kw):
        self.o = dict(DEF); self.o.update(kw)
        self.a = Asm()

    def stamp(self, i):
        if self.o["stamps"]:
            self.a(f"s_memrealtime s[{sSTAMP + 2 * i}:{sSTAMP + 2 * i + 1}]\ns_waitcnt lgkmcnt(0)")

    def finish(self):
        a = self.a
        if self.o.get("hold"):
            lp = a.label("hold")
            a(f"{lp}:\ns_memrealtime s[74:75]\ns_waitcnt lgkmcnt(0)\ns_sub_u32 s3, s74, s72\ns_cmp_lt_u32 s3, {self.o['hold'] * 100}\ns_cbranch_scc1 {lp}")
        if self.o["stamps"]:
            self.stamp(14)
            a(f"s_lshl_b32 s3, s2, 2\ns_add_u32 s3, s3, s{sW}\ns_lshl_b32 s3, s3, 6\ns_add_u32 s3, s3, {WS_STAMP}")
            a("s_mov_b64 exec, 1\nv_mov_b32 v4, s3")
            for i in range(15):
                a(f"v_mov_b32 v5, s{sSTAMP + 2 * i}\nglobal_store_dword v4, v5, s[{P_WS}:{P_WS + 1}] offset:{4 * i}")
            a(f"s_getreg_b32 s3, hwreg(HW_REG_XCC_ID)\nv_mov_b32 v5, s3\nglobal_store_dword v4, v5, s[{P_WS}:{P_WS + 1}] offset:60")
        a("s_endpgm")

    def srd(self, r, ptr, size, off_lo=None, off_hi=None):
        a = self.a
        if off_lo is None:
            a(f"s_mov_b32 s{r}, s{ptr}\ns_and_b32 s{r + 1}, s{ptr + 1}, 0xffff")
        else:
            a(f"s_add_u32 s{r}, s{ptr}, {off_lo}\ns_addc_u32 s{r + 1}, s{ptr + 1}, {off_hi or 0}\ns_and_b32 s{r + 1}, s{r + 1}, 0xffff")
        a(f"s_mov_b32 s{r + 2}, {size}\ns_mov_b32 s{r + 3}, 0x20000")

    def consts(self, cst):
        a = self.a
        self.srd(RWS, P_WS, WS_SIZE)
        a(f"""
        s_mov_b32 s{sSPIN}, {self.o['spin']}
        s_movk_i32 s{sLOW}, 0xfff
        s_mov_b32 s{sHIGH}, 0xfffff000
        s_mov_b32 s{sCST}, {fbits(cst)}
        v_lshlrev_b32 v{vL16}, 4, v{vL}
        """)

    def selectors(self, perm=True):
        a = self.a
        a(f"""
        v_and_b32 v4, 1, v{vN}
        v_bfe_u32 v5, v{vN}, 1, 2
        v_cmp_eq_u32 vcc, 1, v4
        v_mov_b32 v6, 0xffff
        v_mov_b32 v7, 0xffff0000
        v_cndmask_b32 v8, v6, v7, vcc
        """)
        if perm:
            a(f"""
            v_mov_b32 v6, 0x0c0c0100
            v_mov_b32 v7, 0x01000c0c
            v_cndmask_b32 v{vA0}, v6, v7, vcc
            v_mov_b32 v6, 0x0c0c0302
            v_mov_b32 v7, 0x03020c0c
            v_cndmask_b32 v{vA0 + 1}, v6, v7, vcc
            v_mov_b32 v6, 0x0c0c0c0c
            """)
        for jj in range(4):
            a(f"v_cmp_eq_u32 vcc, {jj}, v5\nv_cndmask_b32 v{vM + jj}, 0, v8, vcc")
            if perm:
                a(f"v_cndmask_b32 v{vS + 2 * jj}, v6, v{vA0}, vcc\nv_cndmask_b32 v{vS + 2 * jj + 1}, v6, v{vA0 + 1}, vcc")

    def get_tag(self):
        self.a(f"s_waitcnt lgkmcnt(0)\ns_add_u32 s{sTAG}, s{sTAG}, 1\nv_mov_b32 v{vTAG}, s{sTAG}")

    def build_perm(self, x):
        def f(j, A):
            for jj in range(4):
                self.a(f"v_perm_b32 v{A + jj}, v{x + j // 2}, v{x + j // 2}, v{vS + 2 * jj + j % 2}")
        return f

    def build_dpp(self, src):
        def f(j, A):
            reg, lane = src(j)
            for jj in range(4):
                self.a(f"v_and_b32_dpp v{A + jj}, v{reg}, v{vM + jj} row_newbcast:{lane} row_mask:0xf bank_mask:0xf")
        return f

    def selgemv(self, j0, j1, build, B, D, zero, before=None):
        a = self.a
        build(j0, vA0 + 4 * (j0 % 2))
        for j in range(j0, j1):
            if j + 1 < j1:
                build(j + 1, vA0 + 4 * ((j + 1) % 2))
            if before:
                before(j)
            c = "0" if (zero and j == j0) else vr(D)
            a(f"v_mfma_f32_16x16x32_bf16 {vr(D)}, {vr(vA0 + 4 * (j % 2))}, {B(j)}, {c}")

    def tag4(self, r):
        for i in range(4):
            self.a(f"v_add_u32 v{r + i}, 0x800, v{r + i}")
        for i in range(4):
            self.a(f"v_bfi_b32 v{r + i}, s{sLOW}, v{vTAG}, v{r + i}")

    def poll(self, issue, regs, full, tracked_tag=None):
        a = self.a
        chk, ok = a.label("chk"), a.label("ok")
        if tracked_tag is None:
            issue()
            a("s_waitcnt vmcnt(0)")
            a.vmreset()
        else:
            a.vmwait(tracked_tag)
        a(f"{chk}:")
        a(f"v_xor_b32 v4, s{sTAG}, v{regs[0]}")
        for r in regs[1:]:
            a(f"v_bitop3_b32 v4, v4, v{r}, s{sTAG} bitop3:0xf6")
        if not full:
            a(f"v_and_b32 v4, s{sLOW}, v4")
        a(f"v_cmp_ne_u32 vcc, 0, v4\ns_cbranch_vccz {ok}\ns_cmp_eq_u32 s{sSPIN}, 0\ns_cbranch_scc1 {ok}\ns_sub_u32 s{sSPIN}, s{sSPIN}, 1")
        issue()
        a(f"s_waitcnt vmcnt(0)\ns_branch {chk}\n{ok}:")

    def q_issue(self, mat, g0, track):
        a = self.a
        def issue(tr=False):
            for q in range(4):
                t = f"buffer_load_dwordx4 {vr(g0 + 4 * q)}, v{vL16}, {sr(RWS)}, s{sOF2} offen offset:{1024 * q} sc1"
                if tr: a.vm(t, track)
                else: a(t)
        a(f"s_lshl_b32 s{sOF2}, s{sH}, 12\ns_add_u32 s{sOF2}, s{sOF2}, {WS_QP + mat * 32 * 4096}")
        return issue

    def q_finish(self, g0, lds_base):
        a = self.a
        for i in range(16):
            a(f"v_and_b32 v{g0 + i}, s{sHIGH}, v{g0 + i}")
        for i in range(4):
            a(f"v_add_f32 v{g0 + i}, v{g0 + i}, v{g0 + 4 + i}\nv_add_f32 v{g0 + 8 + i}, v{g0 + 8 + i}, v{g0 + 12 + i}")
        for i in range(4):
            a(f"v_add_f32 v{g0 + i}, v{g0 + i}, v{g0 + 8 + i}")
        a(f"""
        v_cvt_pk_bf16_f32 v{g0}, v{g0}, v{g0 + 1}
        v_cvt_pk_bf16_f32 v{g0 + 1}, v{g0 + 2}, v{g0 + 3}
        s_lshl_b32 s3, s{sW}, 9
        s_add_u32 s3, s3, {lds_base}
        v_lshrrev_b32 v4, 1, v{vG}
        v_and_b32 v6, 1, v{vG}
        v_lshlrev_b32 v4, 8, v4
        v_lshl_add_u32 v4, v6, 3, v4
        v_lshl_add_u32 v4, v{vN}, 4, v4
        v_add_u32 v4, s3, v4
        ds_write_b64 v4, {vr(g0, 2)}
        """)

    def role_a(self, typ):
        a, o = self.a, self.o
        a.vmreset()
        NL = 44 if typ == 1 else 40
        NG = NL // 4
        vQ, vP, vSC, vGA, vK, vX0, vX1 = 36, 40, 44, 56, 72, 248, 252
        vO1, vO2 = 23, 55
        RED0, RED1, QT, QT2, QO, MX, LS, OP = 0, 4096, 8192, 10240, 12288, 13312, 13440, 14336
        a("s_waitcnt lgkmcnt(0)")
        a(f"s_load_dword s{sTAG}, s[{P_WS}:{P_WS + 1}], 0")
        if typ == 1:
            self.srd(R0, P_BQ, 1 << 22)
            self.srd(R1, P_WQ, 1 << 22)
            a(f"""
            s_sub_u32 s{sI}, s{sI}, 2
            s_lshl_b32 s3, s{sI}, 2
            s_add_u32 s3, s3, s{sW}
            s_lshl_b32 s{sOFF}, s3, 18
            s_lshl_b32 s{sA}, s{sH}, 8
            s_add_u32 s{sOFF}, s{sOFF}, s{sA}
            s_lshl_b32 s3, s3, 6
            v_lshrrev_b32 v4, 3, v{vN}
            v_lshlrev_b32 v4, 10, v4
            v_lshl_add_u32 v4, v{vG}, 4, v4
            v_add_u32 v4, s3, v4
            v_lshlrev_b32 v5, 16, v{vG}
            v_lshl_add_u32 v5, v{vN}, 4, v5
            s_mov_b32 s{sOF2}, s{sOFF}
            """)
            a.vm(f"global_load_dwordx4 {vr(vX0)}, v4, s[{P_BX}:{P_BX + 1}]", "w0")
            for j in range(8):
                a.vm(f"buffer_load_dwordx4 {ar(128 + 4 * j)}, v5, {sr(R0)}, s{sOFF} offen nt", "w0")
                if j < 7: a(f"s_add_u32 s{sOFF}, s{sOFF}, 0x2000")
            a.vm(f"global_load_dwordx4 {vr(vX1)}, v4, s[{P_AX}:{P_AX + 1}]", "w1")
            for j in range(8):
                a.vm(f"buffer_load_dwordx4 {ar(160 + 4 * j)}, v5, {sr(R1)}, s{sOF2} offen nt", "w1")
                if j < 7: a(f"s_add_u32 s{sOF2}, s{sOF2}, 0x2000")
        else:
            self.srd(R0, P_UK, 1 << 22)
            a(f"""
            s_lshl_b32 s3, s{sB}, 2
            s_add_u32 s3, s3, s{sW}
            s_lshl_b32 s{sOFF}, s3, 19
            s_lshl_b32 s{sA}, s{sH}, 8
            s_add_u32 s{sOFF}, s{sOFF}, s{sA}
            v_lshlrev_b32 v5, 13, v{vN}
            v_lshl_add_u32 v5, v{vG}, 4, v5
            """)
            for u in range(4):
                for s in range(4):
                    a.vm(f"buffer_load_dwordx4 {ar(128 + 16 * u + 4 * s)}, v5, {sr(R0)}, s{sOFF} offen offset:{64 * s} nt", "w0")
                if u < 3: a(f"s_add_u32 s{sOFF}, s{sOFF}, 0x20000")
        self.stamp(1)
        a(f"s_lshl_b32 s3, s{sH}, 17")
        self.srd(R2, P_WO, 1 << 17, "s3")
        a(f"""
        s_lshl_b32 s3, s{sB}, 5
        s_add_u32 s3, s3, s{sH}
        s_lshl_b32 s3, s3, 21
        """)
        if typ == 1:
            a(f"s_mul_i32 s{sA}, s{sT3}, {704 * 256}\ns_add_u32 s3, s3, s{sA}\ns_add_u32 s3, s3, {(6144 - 64) * 256}")
        else:
            a(f"s_add_u32 s3, s3, {6144 * 256}")
        self.srd(R4, P_K, NL * 4096, "s3")
        self.srd(R5, P_V, NL * 4096, "s3")
        self.consts(LOG2E if o["mimicA"] else LOG2E * SCALE)
        a(f"""
        s_lshl_b32 s3, s{sW}, 8
        v_lshlrev_b32 v{vO1}, 15, v{vG}
        v_lshl_add_u32 v{vO1}, v{vN}, 4, v{vO1}
        v_add_u32 v{vO1}, s3, v{vO1}
        s_lshl_b32 s3, s{sW}, 10
        v_add_u32 v{vO2}, s3, v{vL16}
        """)
        self.selectors(perm=(typ == 1))
        self.get_tag()

        stream = []
        def ld_wo(j):
            def f():
                if j % 4 == 0: a(f"s_movk_i32 s{sOFF}, {j * 1024}")
                a.vm(f"buffer_load_dwordx4 {ar(4 * j)}, v{vO1}, {sr(R2)}, s{sOFF} offen offset:{(j % 4) * 1024} nt", "wo")
            return f
        def vreg(j):
            return ar(128 + 4 * j) if j < 32 else vr(vK + 4 * (j - 32))
        def ld_kv(which, j):
            def f():
                a(f"s_mov_b32 s{sOFF}, {j * 4096}")
                if which == "K":
                    a.vm(f"buffer_load_dwordx4 {vr(vK + 4 * j)}, v{vO2}, {sr(R4)}, s{sOFF} offen nt", f"K{j}")
                else:
                    a.vm(f"buffer_load_dwordx4 {vreg(j)}, v{vO2}, {sr(R5)}, s{sOFF} offen nt", f"V{j}")
            return f
        stream += [ld_wo(j) for j in range(32)]
        stream += [ld_kv("K", j) for j in range(NL)]
        stream += [ld_kv("V", j) for j in range(NL)]
        pos = [0]
        def pump(upto, depth):
            while pos[0] < min(upto, len(stream)):
                a.vmlimit(depth - 1)
                stream[pos[0]]()
                pos[0] += 1

        if typ == 1:
            for mat, tag, x, base, red, pw in ((1, "w0", vX0, 128, RED0, 0), (0, "w1", vX1, 160, RED1, 1)):
                a.vmwait(tag)
                if mat == 1: self.stamp(2)
                self.selgemv(0, 8, self.build_perm(x), lambda j: ar(base + 4 * j), vD, True)
                a(f"ds_write_b128 v{vO2}, {vr(vD)} offset:{red}")
                a("s_waitcnt lgkmcnt(0)\ns_barrier")
                skip = a.label("nopub")
                a(f"s_cmp_lg_u32 s{sW}, {pw}\ns_cbranch_scc1 {skip}")
                for q in range(4):
                    a(f"ds_read_b128 {vr(vGA + 4 * q)}, v{vL16} offset:{red + 1024 * q}")
                a(f"""
                s_lshl_b32 s3, s{sH}, 2
                s_add_u32 s3, s3, s{sI}
                s_lshl_b32 s3, s3, 10
                s_add_u32 s3, s3, {WS_QP + mat * 32 * 4096}
                s_waitcnt lgkmcnt(0)
                """)
                for i in range(4):
                    a(f"v_add_f32 v{vGA + i}, v{vGA + i}, v{vGA + 4 + i}\nv_add_f32 v{vGA + 8 + i}, v{vGA + 8 + i}, v{vGA + 12 + i}")
                for i in range(4):
                    a(f"v_add_f32 v{vGA + i}, v{vGA + i}, v{vGA + 8 + i}")
                self.tag4(vGA)
                a(f"buffer_store_dwordx4 {vr(vGA)}, v{vL16}, {sr(RWS)}, s3 offen sc1")
                a(f"s_nop 1\n{skip}:")
                if mat == 1:
                    self.stamp(3)
                    pump(8, 32)
            self.stamp(4)
        else:
            issue = self.q_issue(1, vGA, None)
            self.poll(issue, list(range(vGA, vGA + 16)), False)
            self.stamp(2)
            pump(o["D0"], 32)
            self.q_finish(vGA, QT2)
            a(f"""
            v_and_b32 v4, 1, v{vN}
            v_lshlrev_b32 v4, 8, v4
            v_lshl_add_u32 v4, v{vG}, 4, v4
            v_add_u32 v4, s3, v4
            s_waitcnt lgkmcnt(0)
            """)
            for s in range(4):
                a(f"ds_read_b128 {vr(vGA + 4 * s)}, v4 offset:{64 * s}")
            a("s_waitcnt lgkmcnt(0)")
            DU = 72
            for u in range(4):
                for s in range(4):
                    c = "0" if s == 0 else vr(DU + 4 * u)
                    a(f"v_mfma_f32_16x16x32_bf16 {vr(DU + 4 * u)}, {ar(128 + 16 * u + 4 * s)}, {vr(vGA + 4 * s)}, {c}")
            a(f"""
            s_lshl_b32 s3, s{sW}, 7
            v_and_b32 v4, 1, v{vN}
            v_lshlrev_b32 v4, 9, v4
            v_lshl_add_u32 v4, v{vG}, 3, v4
            v_add_u32 v4, s3, v4
            """)
            for u in range(4):
                a(f"v_cvt_pk_bf16_f32 v{DU + 4 * u}, v{DU + 4 * u}, v{DU + 4 * u + 1}")
                a(f"v_cvt_pk_bf16_f32 v{DU + 4 * u + 1}, v{DU + 4 * u + 2}, v{DU + 4 * u + 3}")
                a(f"ds_write_b64 v4, {vr(DU + 4 * u, 2)} offset:{QO + 32 * u}")
            a("s_waitcnt lgkmcnt(0)\ns_barrier")
            skip = a.label("nopub")
            a(f"""
            s_cmp_lg_u32 s{sW}, 0
            s_cbranch_scc1 {skip}
            ds_read_b128 {vr(vGA)}, v{vL16} offset:{QO}
            v_lshrrev_b32 v4, 5, v{vL}
            v_and_b32 v5, 31, v{vL}
            v_lshlrev_b32 v4, 15, v4
            v_lshl_add_u32 v4, v5, 4, v4
            s_lshl_b32 s3, s{sH}, 1
            s_add_u32 s{sA}, s3, s{sB}
            s_lshl_b32 s3, s{sA}, 9
            s_add_u32 s3, s3, {WS_QA}
            s_waitcnt lgkmcnt(0)
            buffer_store_dwordx4 {vr(vGA)}, v4, {sr(RWS)}, s3 offen sc1
            s_lshl_b32 s3, s{sA}, 4
            s_add_u32 s3, s3, {WS_FLAGB}
            v_mov_b32 v4, s{sTAG}
            v_mov_b32 v5, s{sTAG}
            v_mov_b32 v6, s{sTAG}
            v_mov_b32 v7, s{sTAG}
            v_mov_b32 v8, 0
            s_mov_b64 exec, 1
            s_waitcnt vmcnt(0)
            buffer_store_dwordx4 v[4:7], v8, {sr(RWS)}, s3 offen sc1
            s_mov_b64 exec, -1
            s_nop 1
            {skip}:
            """)
            self.stamp(3)

        pump(32 + o["qpos"], o["D0"])
        issue = self.q_issue(0, vGA, "q")
        issue(True)
        pump(32 + o["qpos"] + o["D1"] - 4, o["D1"] + 4)
        self.poll(issue, list(range(vGA, vGA + 16)), False, "q")
        self.stamp(5)
        self.q_finish(vGA, QT)
        a(f"""
        s_lshl_b32 s{sA}, s{sB}, 8
        s_add_u32 s3, s3, s{sA}
        v_lshl_add_u32 v4, v{vN}, 4, s3
        s_waitcnt lgkmcnt(0)
        ds_read_b128 {vr(vQ)}, v4
        s_waitcnt lgkmcnt(0)
        """)
        dm = "row_mask:0xf bank_mask"
        for G in range(NG):
            pump(32 + 4 * G + 4 + o["D1"], 63)
            a.vmwait(f"K{4 * G + 3}")
            for e in range(4):
                for jj in range(4):
                    k = vK + 4 * (4 * G + jj) + e
                    if e == 0: a(f"v_dot2_f32_bf16 v{vP + jj}, v{k}, v{vQ}, 0")
                    else: a(f"v_dot2c_f32_bf16 v{vP + jj}, v{k}, v{vQ + e}")
            S = vSC + G
            a(f"""
            v_add_f32_dpp v{vP}, v{vP}, v{vP} row_ror:8 {dm}:0x3
            v_add_f32_dpp v{vP + 1}, v{vP + 1}, v{vP + 1} row_ror:8 {dm}:0x3
            v_add_f32_dpp v{vP}, v{vP + 2}, v{vP + 2} row_ror:8 {dm}:0xc
            v_add_f32_dpp v{vP + 1}, v{vP + 3}, v{vP + 3} row_ror:8 {dm}:0xc
            v_add_f32_dpp v{S}, v{vP}, v{vP} row_shl:4 {dm}:0x5
            v_add_f32_dpp v{S}, v{vP + 1}, v{vP + 1} row_shr:4 {dm}:0xa
            v_add_f32_dpp v{S}, v{S}, v{S} quad_perm:[1,0,3,2] {dm}:0xf
            v_add_f32_dpp v{S}, v{S}, v{S} quad_perm:[2,3,0,1] {dm}:0xf
            """)
            if o["mimicA"]:
                a(f"""
                v_cvt_pk_bf16_f32 v{S}, v{S}, v{S}
                v_and_b32 v{S}, 0xffff0000, v{S}
                v_mul_f32 v{S}, {fbits(SCALE)}, v{S}
                v_cvt_pk_bf16_f32 v{S}, v{S}, v{S}
                v_and_b32 v{S}, 0xffff0000, v{S}
                """)
            a(f"v_mov_b32 v8, v{S}" if G == 0 else f"v_max_f32 v8, v8, v{S}")
        self.stamp(6)
        pump(32 + NL + o["D2"] + o["extra"], 63)
        a(f"""
        v_max_f32_dpp v8, v8, v8 row_ror:4 {dm}:0xf
        v_max_f32_dpp v8, v8, v8 row_ror:8 {dm}:0xf
        s_lshl_b32 s3, s{sW}, 4
        v_lshl_add_u32 v7, v{vG}, 2, s3
        v_mov_b32 v6, 0
        ds_write_b32 v7, v8 offset:{MX}
        s_waitcnt lgkmcnt(0)
        s_barrier
        """)
        for q in range(4):
            a(f"ds_read_b128 {vr(vGA + 4 * q)}, v6 offset:{MX + 16 * q}")
        a("s_waitcnt lgkmcnt(0)")
        a(f"v_max3_f32 v8, v{vGA}, v{vGA + 1}, v{vGA + 2}")
        for i in range(3, 15, 2):
            a(f"v_max3_f32 v8, v8, v{vGA + i}, v{vGA + i + 1}")
        a(f"v_max_f32 v8, v8, v{vGA + 15}\nv_mul_f32 v8, s{sCST}, v8")
        for G in range(NG):
            a(f"v_fma_f32 v{vSC + G}, v{vSC + G}, s{sCST}, -v8")
        for G in range(NG):
            a(f"v_exp_f32 v{vSC + G}, v{vSC + G}")
        a(f"v_add_f32 v5, v{vSC}, v{vSC + 1}")
        for G in range(2, NG):
            a(f"v_add_f32 v5, v5, v{vSC + G}")
        for G in range(NG):
            a(f"v_cvt_pk_bf16_f32 v{vSC + G}, v{vSC + G}, v{vSC + G}")
        skip = a.label("nostat")
        a(f"""
        v_add_f32_dpp v5, v5, v5 row_ror:4 {dm}:0xf
        v_add_f32_dpp v5, v5, v5 row_ror:8 {dm}:0xf
        ds_write_b32 v7, v5 offset:{LS}
        s_waitcnt lgkmcnt(0)
        s_barrier
        s_cmp_lg_u32 s{sW}, 0
        s_cbranch_scc1 {skip}
        """)
        for q in range(4):
            a(f"ds_read_b128 {vr(vGA + 4 * q)}, v6 offset:{LS + 16 * q}")
        a(f"""
        s_mul_i32 s3, s{sB}, 3
        s_add_u32 s3, s3, s{sT3}
        s_lshl_b32 s3, s3, 5
        s_add_u32 s3, s3, s{sH}
        s_lshl_b32 s3, s3, 4
        s_add_u32 s3, s3, {WS_STATA}
        s_waitcnt lgkmcnt(0)
        v_add_f32 v5, v{vGA}, v{vGA + 1}
        """)
        for i in range(2, 16):
            a(f"v_add_f32 v5, v5, v{vGA + i}")
        a(f"""
        v_mov_b32 v4, v8
        v_mov_b32 v7, s{sTAG}
        v_mov_b32 v8, 0
        v_mov_b32 v6, s{sTAG}
        s_mov_b64 exec, 1
        buffer_store_dwordx4 v[4:7], v8, {sr(RWS)}, s3 offen sc1
        s_mov_b64 exec, -1
        s_nop 1
        {skip}:
        """)
        self.stamp(7)
        def before(j):
            if j % 4 == 0:
                pump(32 + NL + j + 4 + o["D2"], 63)
            if j >= NL - 4: a.vmwait(f"V{j}")
            elif j % 4 == 0: a.vmwait(f"V{j + 3}")
        a(f"""
        v_and_b32 v4, 1, v{vG}
        v_lshlrev_b32 v5, 5, v{vN}
        v_lshl_add_u32 v5, v4, 4, v5
        s_lshl_b32 s3, s{sW}, 9
        v_add_u32 v5, s3, v5
        v_lshlrev_b32 v6, 3, v{vL}
        s_lshl_b32 s3, s{sB}, 2
        s_add_u32 s3, s3, s{sW}
        s_mul_i32 s3, s3, {4 * 12288}
        s_lshl_b32 s{sA}, s{sT3}, 5
        s_add_u32 s{sA}, s{sA}, s{sH}
        s_lshl_b32 s{sA}, s{sA}, 7
        s_add_u32 s3, s3, s{sA}
        s_add_u32 s{sOF2}, s3, {WS_YA}
        v_lshrrev_b32 v7, 3, v{vL}
        v_mul_u32_u24 v7, 12288, v7
        v_and_b32 v8, 7, v{vL}
        v_lshl_add_u32 v7, v8, 4, v7
        """)
        self.selgemv(0, NL, self.build_dpp(lambda j: (vSC + j // 4, 4 * (j % 4))), vreg, vD, True, before)
        self.stamp(8)
        a(f"ds_write_b128 v5, {vr(vD)} offset:{OP}\ns_waitcnt lgkmcnt(0)\ns_barrier")
        for q in range(4):
            a(f"ds_read_b64 {vr(vGA + 2 * q, 2)}, v6 offset:{OP + 512 * q}")
        a(f"""
        s_waitcnt lgkmcnt(0)
        v_add_f32 v{vGA}, v{vGA}, v{vGA + 2}
        v_add_f32 v{vGA + 1}, v{vGA + 1}, v{vGA + 3}
        v_add_f32 v{vGA + 4}, v{vGA + 4}, v{vGA + 6}
        v_add_f32 v{vGA + 5}, v{vGA + 5}, v{vGA + 7}
        v_add_f32 v{vGA}, v{vGA}, v{vGA + 4}
        v_add_f32 v{vGA + 1}, v{vGA + 1}, v{vGA + 5}
        v_cvt_pk_bf16_f32 v{vGA}, v{vGA}, v{vGA}
        v_cvt_pk_bf16_f32 v{vGA + 1}, v{vGA + 1}, v{vGA + 1}
        """)
        self.selgemv(0, 32, self.build_dpp(lambda j: (vGA + j % 2, j // 2)), lambda j: ar(4 * j), vD, True)
        self.tag4(vD)
        a(f"s_mov_b32 exec_hi, 0\nbuffer_store_dwordx4 {vr(vD)}, v7, {sr(RWS)}, s{sOF2} offen sc1")
        self.finish()

    def role_b(self):
        a, o = self.a, self.o
        a.vmreset()
        vDM, vH1, vQK, vTR, vW1, vMX, vLS, vHL, vHD = 36, 40, 44, 52, 60, 63, 64, 65, 66
        vSS, vFR, vO, vUV, vQQ, vPK = 72, 88, 112, 176, 240, 248
        QB = 131072
        PB, MXB, LSB, XC, RED, XT, FIN = QB, QB + 8192, QB + 9216, QB + 10240, QB + 12288, QB + 16384, QB + 20480
        dm = "row_mask:0xf bank_mask"
        sS = sT3
        a(f"""
        s_lshl_b32 s3, s{sW}, 2
        s_lshl_b32 s{sA}, s{sW}, 10
        v_xor_b32 v4, s3, v{vL}
        s_lshl_b32 s{sC}, s{sW}, 8
        v_lshlrev_b32 v5, 2, v{vG}
        v_xor_b32 v5, v5, v{vN}
        v_lshlrev_b32 v6, 10, v{vG}
        v_add_u32 v6, s{sC}, v6
        """)
        for j in range(4):
            a(f"v_xor_b32 v7, {j}, v4\nv_lshl_add_u32 v{vDM + j}, v7, 4, s{sA}")
            a(f"v_xor_b32 v7, {j}, v5\nv_lshl_add_u32 v{vH1 + j}, v7, 4, v6")
        a(f"v_lshl_add_u32 v{vW1}, v{vN}, 4, v6")
        a("s_waitcnt lgkmcnt(0)")
        a(f"s_load_dword s{sTAG}, s[{P_WS}:{P_WS + 1}], 0")
        a(f"s_lshl_b32 s3, s{sI}, 18")
        self.srd(R0, P_CKV, 1 << 18, "s3")
        a(f"s_mov_b32 s{sOFF}, 0")
        for j in range(32):
            a(f"s_add_u32 m0, s{sOFF}, s{sA}")
            a.vm(f"buffer_load_dwordx4 v{vDM + j % 4}, {sr(R0)}, s{sOFF} offen nt lds", "c0")
            a(f"s_add_u32 s{sOFF}, s{sOFF}, 0x1000")
        self.stamp(1)
        for j in range(32):
            a.vmlimit(60)
            a.vm(f"buffer_load_dwordx4 {ar(128 + 4 * j)}, v{vH1 + j % 4}, {sr(R0)}, s{sOFF} offen nt", "c1")
            if j < 31: a(f"s_add_u32 s{sOFF}, s{sOFF}, 0x1000")
        self.consts(LOG2E * SCALE)
        self.selectors()
        a(f"""
        s_lshr_b32 s{sB}, s{sI}, 5
        s_and_b32 s{sS}, s{sI}, 31
        s_lshr_b32 s{sH}, s{sI}, 1
        v_add_u32 v{vW1 + 1}, 0x10000, v{vW1}
        v_lshrrev_b32 v{vHL}, 5, v{vL}
        v_and_b32 v{vHD}, 31, v{vL}
        v_and_b32 v4, 3, v{vL}
        v_bfe_u32 v5, v{vL}, 2, 2
        v_lshl_add_u32 v6, v4, 2, v5
        v_xor_b32 v6, v6, v{vHL}
        v_lshlrev_b32 v7, 10, v{vHD}
        s_lshl_b32 s3, s{sW}, 15
        """)
        for s in range(8):
            a(f"v_xor_b32 v8, {2 * s}, v6\nv_lshl_add_u32 v8, v8, 4, v7\nv_add_u32 v{vQK + s}, s3, v8\nv_add_u32 v{vQQ + s}, {QB}, v8")
        a(f"""
        v_bfe_u32 v6, v{vL}, 4, 1
        v_lshrrev_b32 v7, 1, v4
        v_lshl_add_u32 v6, v6, 1, v7
        v_xor_b32 v6, v6, v{vHL}
        v_lshl_add_u32 v6, v5, 2, v6
        v_lshl_add_u32 v7, v{vHL}, 2, v5
        v_lshlrev_b32 v7, 10, v7
        v_and_b32 v8, 1, v{vL}
        v_lshl_add_u32 v7, v8, 3, v7
        v_add_u32 v7, s{sC}, v7
        """)
        for T in range(4):
            for z in range(2):
                a(f"v_xor_b32 v8, {4 * T + 2 * z}, v6\nv_lshl_add_u32 v{vTR + 2 * T + z}, v8, 4, v7")
                if z: a(f"v_add_u32 v{vTR + 2 * T + z}, 0x2000, v{vTR + 2 * T + z}")
        self.get_tag()
        self.srd(R1, P_UV, 1 << 22)
        a(f"s_lshl_b32 s3, s{sH}, 17")
        self.srd(R2, P_BO, 1 << 17, "s3")
        skip = a.label("nopoll")
        a(f"s_cmp_lg_u32 s{sW}, 0\ns_cbranch_scc1 {skip}\ns_movk_i32 s3, {WS_FLAGB}")
        saved = list(a.q)
        self.poll(lambda: a(f"buffer_load_dwordx4 {vr(vSS)}, v{vL16}, {sr(RWS)}, s3 offen sc1"), list(range(vSS, vSS + 4)), True)
        a.q = saved
        a(f"{skip}:\ns_barrier")
        self.stamp(2)
        a(f"s_lshl_b32 s{sOFF}, s{sB}, 15\ns_add_u32 s{sOFF}, s{sOFF}, {WS_QA}\ns_add_u32 s3, s{sA}, {QB}")
        for j in range(8):
            a(f"s_add_u32 m0, s3, {4096 * j}")
            a.vm(f"buffer_load_dwordx4 v{vDM + j % 4}, {sr(RWS)}, s{sOFF} offen sc1 lds", "q")
            if j < 7: a(f"s_add_u32 s{sOFF}, s{sOFF}, 0x1000")
        a(f"""
        s_and_b32 s3, s{sI}, 1
        s_lshl_b32 s3, s3, 2
        s_add_u32 s3, s3, s{sW}
        s_lshl_b32 s{sOFF}, s3, 19
        s_lshl_b32 s3, s{sH}, 8
        s_add_u32 s{sOFF}, s{sOFF}, s3
        v_lshlrev_b32 v4, 17, v{vG}
        v_lshl_add_u32 v4, v{vN}, 4, v4
        """)
        for j in range(16):
            a.vmlimit(60)
            a.vm(f"buffer_load_dwordx4 {vr(vUV + 4 * j)}, v4, {sr(R1)}, s{sOFF} offen nt", "uv")
            if j < 15: a(f"s_add_u32 s{sOFF}, s{sOFF}, 0x2000")
        a.vmwait("q")
        a("s_barrier")
        self.stamp(3)

        for rnd in range(2):
            PF = 3 if rnd == 0 else 5
            def rd(s):
                if rnd == 0:
                    a(f"ds_read_b128 {ar(4 * s)}, v{vQQ + s % 8} offset:{256 * (s // 8)}")
                a(f"ds_read_b128 {vr(vFR + 4 * (s % 6))}, v{vQK + s % 8} offset:{256 * (s // 8)}")
            per = 2 if rnd == 0 else 1
            for s in range(PF): rd(s)
            for s in range(32):
                if s + PF < 32: rd(s + PF)
                left = min(PF, 31 - s)
                a(f"s_waitcnt lgkmcnt({left * per})")
                c = "0" if s == 0 else vr(vSS, 16)
                a(f"v_mfma_f32_32x32x16_bf16 {vr(vSS, 16)}, {vr(vFR + 4 * (s % 6))}, {ar(4 * s)}, {c}")
            if rnd == 0:
                a("s_barrier")
            a(f"""
            v_lshlrev_b32 v6, 4, v{vHD}
            v_add_u32 v6, {MXB + 512 * rnd}, v6
            s_lshl_b32 s3, s{sW}, 2
            v_add_u32 v7, s3, v6
            v_max3_f32 v4, v{vSS}, v{vSS + 1}, v{vSS + 2}
            """)
            for i in range(3, 15, 2):
                a(f"v_max3_f32 v4, v4, v{vSS + i}, v{vSS + i + 1}")
            a(f"""
            v_max_f32 v4, v4, v{vSS + 15}
            v_mov_b32 v5, v4
            v_permlane32_swap_b32 v4, v5
            v_max_f32 v4, v4, v5
            ds_write_b32 v7, v4
            s_waitcnt lgkmcnt(0)
            s_barrier
            ds_read_b128 {vr(vPK)}, v6
            s_lshl_b32 s3, s{sW}, 11
            s_add_u32 s3, s3, {PB}
            v_add_u32 v7, s3, v{vL16}
            s_waitcnt lgkmcnt(0)
            v_max3_f32 v4, v{vPK}, v{vPK + 1}, v{vPK + 2}
            v_max_f32 v4, v4, v{vPK + 3}
            v_mul_f32 v4, s{sCST}, v4
            """)
            if rnd == 0:
                a(f"v_mov_b32 v{vMX}, v4")
            else:
                a(f"v_max_f32 v4, v4, v{vMX}\nv_sub_f32 v8, v{vMX}, v4\nv_exp_f32 v8, v8\nv_mov_b32 v{vMX}, v4\nv_mul_f32 v{vLS}, v{vLS}, v8")
            for i in range(16):
                a(f"v_fma_f32 v{vSS + i}, v{vSS + i}, s{sCST}, -v4")
            for i in range(16):
                a(f"v_exp_f32 v{vSS + i}, v{vSS + i}")
            for i in range(8):
                a(f"v_cvt_pk_bf16_f32 v{vPK + i}, v{vSS + 2 * i}, v{vSS + 2 * i + 1}")
            a(f"ds_write_b128 v7, {vr(vPK)}\nds_write_b128 v7, {vr(vPK + 4)} offset:1024")
            for i in range(16):
                if rnd == 0 and i == 0: continue
                if rnd == 0 and i == 1: a(f"v_add_f32 v{vLS}, v{vSS}, v{vSS + 1}")
                else: a(f"v_add_f32 v{vLS}, v{vLS}, v{vSS + i}")
            a(f"v_add_u32 v7, {PB}, v{vL16}")
            a("s_waitcnt lgkmcnt(0)\ns_barrier")
            if rnd == 0: a.vmwait("c1")
            self.stamp(4 + 2 * rnd)
            def reads(ks):
                b = vSS + 20 * (ks % 2)
                L = [f"ds_read_b128 {vr(b)}, v7 offset:{1024 * ks}"]
                for T in range(4):
                    for z in range(2):
                        L.append(f"ds_read_b64_tr_b16 {vr(b + 4 + 4 * T + 2 * z, 2)}, v{vTR + 2 * T + z} offset:{16384 * (ks % 4)}")
                return L
            def bump(d):
                for i in range(8):
                    a(f"v_add_u32 v{vTR + i}, {d}, v{vTR + i}")
            for t in reads(0): a(t)
            if rnd == 1:
                for i in range(64):
                    a(f"v_mul_f32 v{vO + i}, v{vO + i}, v8")
            pend = 0
            for ks in range(8):
                a(f"s_waitcnt lgkmcnt({pend})")
                if ks == 3: bump("0x10000")
                nx = reads(ks + 1) if ks < 7 else []
                wr = []
                if rnd == 0:
                    for j in range(4 * ks, 4 * ks + 4):
                        wr.append(f"ds_write_b128 v{vW1 + j // 16}, {ar(128 + 4 * j)} offset:{4096 * (j % 16)}")
                seq = nx + wr
                pend = len(wr)
                b = vSS + 20 * (ks % 2)
                cut = [0, 3, 6, 9, len(seq)]
                for T in range(4):
                    c = "0" if (rnd == 0 and ks == 0) else vr(vO + 16 * T, 16)
                    a(f"v_mfma_f32_32x32x16_bf16 {vr(vO + 16 * T, 16)}, {vr(b + 4 + 4 * T)}, {vr(b)}, {c}")
                    for t in seq[cut[T]:cut[T + 1]]: a(t)
            if rnd == 0:
                bump("0xffff0000")
                a(f"""
                s_lshl_b32 s3, s{sW}, 8
                v_lshlrev_b32 v4, 15, v{vG}
                v_lshl_add_u32 v4, v{vN}, 4, v4
                v_add_u32 v4, s3, v4
                s_waitcnt lgkmcnt(0)
                s_barrier
                """)
                for j in range(32):
                    if j % 4 == 0: a(f"s_movk_i32 s{sOFF}, {j * 1024}")
                    a.vm(f"buffer_load_dwordx4 {ar(128 + 4 * j)}, v4, {sr(R2)}, s{sOFF} offen offset:{(j % 4) * 1024} nt", "bo")
            self.stamp(5 + 2 * rnd)

        a(f"""
        v_mov_b32 v5, v{vLS}
        v_lshlrev_b32 v6, 4, v{vHD}
        v_add_u32 v6, {LSB}, v6
        v_permlane32_swap_b32 v5, v{vLS}
        s_lshl_b32 s3, s{sW}, 2
        v_add_f32 v5, v5, v{vLS}
        v_add_u32 v7, s3, v6
        ds_write_b32 v7, v5
        v_lshlrev_b32 v7, 10, v{vHD}
        v_lshl_add_u32 v7, v{vHL}, 3, v7
        v_add_u32 v7, s{sC}, v7
        """)
        for T in range(4):
            for rq in range(4):
                r = vO + 16 * T + 4 * rq
                a(f"""
                v_xor_b32 v8, {4 * T + rq}, v{vN}
                v_cvt_pk_bf16_f32 v{r}, v{r}, v{r + 1}
                v_cvt_pk_bf16_f32 v{r + 1}, v{r + 2}, v{r + 3}
                v_lshl_add_u32 v8, v8, 4, v7
                ds_write_b64 v8, {vr(r, 2)}
                """)
        a(f"""
        v_lshlrev_b32 v7, 10, v{vG}
        v_add_u32 v7, s{sC}, v7
        v_xor_b32 v4, v{vG}, v{vN}
        """)
        for jj in range(8):
            a(f"v_xor_b32 v8, {4 * (jj % 4)}, v4\nv_lshl_add_u32 v8, v8, 4, v7\nds_read_b128 {vr(vSS + 4 * jj)}, v8 offset:{4096 * jj}")
        a(f"""
        s_lshl_b32 s3, s{sW}, 14
        s_lshl_b32 s{sOFF}, s{sI}, 8
        s_add_u32 s{sOFF}, s{sOFF}, s3
        s_add_u32 s{sOFF}, s{sOFF}, {WS_PART}
        v_lshlrev_b32 v7, 16, v{vG}
        v_lshl_add_u32 v7, v{vN}, 4, v7
        """)
        for jj in range(8):
            a(f"s_waitcnt lgkmcnt({7 - jj})")
            a.vm(f"buffer_store_dwordx4 {vr(vSS + 4 * jj)}, v7, {sr(RWS)}, s{sOFF} offen sc1", "part")
            if jj < 7: a(f"s_add_u32 s{sOFF}, s{sOFF}, 0x40000")
        self.stamp(8)
        skip = a.label("nostat")
        a(f"""
        s_waitcnt vmcnt(0)
        s_barrier
        s_cmp_lg_u32 s{sW}, 0
        s_cbranch_scc1 {skip}
        ds_read_b128 {vr(vPK)}, v6
        v_mov_b32 v4, v{vMX}
        v_mov_b32 v7, s{sTAG}
        v_lshlrev_b32 v8, 10, v{vHD}
        s_lshl_b32 s3, s{sI}, 4
        s_add_u32 s3, s3, {WS_STATB}
        s_waitcnt lgkmcnt(0)
        v_mov_b32 v6, s{sTAG}
        v_add_f32 v5, v{vPK}, v{vPK + 1}
        v_add_f32 v5, v5, v{vPK + 2}
        v_add_f32 v5, v5, v{vPK + 3}
        s_mov_b32 exec_hi, 0
        buffer_store_dwordx4 v[4:7], v8, {sr(RWS)}, s3 offen sc1
        s_mov_b64 exec, -1
        s_nop 1
        {skip}:
        """)
        a.vmreset()
        self.stamp(9)
        a(f"""
        s_lshr_b32 s{sA}, s{sW}, 1
        s_lshl_b32 s3, s{sH}, 1
        s_add_u32 s3, s3, s{sA}
        s_lshl_b32 s3, s3, 9
        s_add_u32 s{sOF2}, s3, {WS_STATB}
        v_and_b32 v5, 7, v{vN}
        v_lshl_add_u32 v5, v5, 2, v{vG}
        v_lshlrev_b32 v5, 4, v5
        s_and_b32 s3, s{sW}, 1
        s_lshl_b32 s{sOFF}, s{sI}, 1
        s_add_u32 s{sOFF}, s{sOFF}, s3
        s_lshl_b32 s{sOFF}, s{sOFF}, 1
        s_add_u32 s{sOFF}, s{sOFF}, s{sA}
        s_lshl_b32 s{sOFF}, s{sOFF}, 13
        s_add_u32 s{sOFF}, s{sOFF}, {WS_PART}
        """)
        self.poll(lambda: a(f"buffer_load_dwordx4 {vr(vPK)}, v5, {sr(RWS)}, s{sOF2} offen sc1"), [vPK + 2, vPK + 3], True)
        self.stamp(10)
        for j in range(8):
            if j == 4: a(f"s_add_u32 s{sOFF}, s{sOFF}, 0x1000")
            a.vm(f"buffer_load_dwordx4 {vr(vSS + 4 * j)}, v{vL16}, {sr(RWS)}, s{sOFF} offen offset:{1024 * (j % 4)} sc1", f"p{j}")
        def allred(op, r, t):
            for k in (1, 2, 4):
                a(f"{op}_dpp v{r}, v{r}, v{r} row_ror:{k} {dm}:0xf")
            for sw in ("v_permlane16_swap_b32", "v_permlane32_swap_b32"):
                a(f"v_mov_b32 v{t}, v{r}\n{sw} v{t}, v{r}\n{op} v{r}, v{r}, v{t}")
        a(f"v_mov_b32 v4, v{vPK}")
        allred("v_max_f32", 4, 6)
        a(f"v_sub_f32 v4, v{vPK}, v4\nv_exp_f32 v4, v4\nv_mul_f32 v5, v4, v{vPK + 1}")
        allred("v_add_f32", 5, 6)
        a(f"""
        v_rcp_f32 v5, v5
        v_mul_f32 v4, v4, v5
        v_cvt_pk_bf16_f32 v{vPK}, v4, v4
        s_lshl_b32 s3, s{sW}, 8
        s_add_u32 s3, s3, {XC}
        v_and_b32 v6, 1, v{vG}
        v_lshlrev_b32 v6, 3, v6
        v_lshl_add_u32 v6, v{vN}, 4, v6
        v_add_u32 v7, s3, v6
        s_lshl_b32 s3, s{sW}, 7
        s_add_u32 s3, s3, {XC}
        v_lshrrev_b32 v5, 3, v{vN}
        v_lshlrev_b32 v4, 9, v5
        v_lshl_add_u32 v4, v{vG}, 5, v4
        v_add_u32 v4, s3, v4
        """)
        self.selgemv(0, 8, self.build_dpp(lambda j: (vPK, j)), lambda j: vr(vSS + 4 * j), vD, True, lambda j: a.vmwait(f"p{j}"))
        a(f"""
        v_cvt_pk_bf16_f32 v{vD}, v{vD}, v{vD + 1}
        v_cvt_pk_bf16_f32 v{vD + 1}, v{vD + 2}, v{vD + 3}
        ds_write_b64 v7, {vr(vD, 2)}
        s_waitcnt lgkmcnt(0)
        s_barrier
        ds_read_b128 {vr(vSS)}, v4
        ds_read_b128 {vr(vSS + 4)}, v4 offset:16
        """)
        skip = a.label("noepoch")
        a(f"""
        s_or_b32 s3, s{sI}, s{sW}
        s_cmp_lg_u32 s3, 0
        s_cbranch_scc1 {skip}
        v_mov_b32 v8, 0
        s_mov_b64 exec, 1
        buffer_store_dword v{vTAG}, v8, {sr(RWS)}, 0 offen sc1
        s_mov_b64 exec, -1
        {skip}:
        s_lshl_b32 s3, s{sW}, 10
        s_add_u32 s3, s3, {RED}
        v_add_u32 v7, s3, v{vL16}
        v_add_u32 v8, {RED}, v{vL16}
        s_lshl_b32 s3, s{sW}, 9
        s_add_u32 s3, s3, {XT}
        v_lshrrev_b32 v4, 1, v{vG}
        v_lshl_add_u32 v6, v4, 8, v6
        v_add_u32 v6, s3, v6
        v_lshlrev_b32 v5, 8, v5
        v_lshl_add_u32 v5, v{vG}, 6, v5
        v_add_u32 v5, s3, v5
        s_waitcnt lgkmcnt(0)
        """)
        self.stamp(11)
        self.selgemv(0, 16, self.build_perm(vSS), lambda j: vr(vUV + 4 * j), vD, True)
        a(f"ds_write_b128 v7, {vr(vD)}\ns_waitcnt lgkmcnt(0)\ns_barrier")
        for q in range(4):
            a(f"ds_read_b128 {vr(vSS + 4 * q)}, v8 offset:{1024 * q}")
        a("s_waitcnt lgkmcnt(0)")
        for i in range(4):
            a(f"v_add_f32 v{vSS + i}, v{vSS + i}, v{vSS + 4 + i}\nv_add_f32 v{vSS + 8 + i}, v{vSS + 8 + i}, v{vSS + 12 + i}")
        for i in range(4):
            a(f"v_add_f32 v{vSS + i}, v{vSS + i}, v{vSS + 8 + i}")
        a(f"""
        v_cvt_pk_bf16_f32 v{vSS}, v{vSS}, v{vSS + 1}
        v_cvt_pk_bf16_f32 v{vSS + 1}, v{vSS + 2}, v{vSS + 3}
        ds_write_b64 v6, {vr(vSS, 2)}
        s_waitcnt lgkmcnt(0)
        """)
        for q in range(4):
            a(f"ds_read_b128 {vr(vSS + 4 * q)}, v5 offset:{16 * q}")
        a(f"""
        s_lshl_b32 s3, s{sW}, 15
        s_lshl_b32 s{sOFF}, s{sI}, 7
        s_add_u32 s{sOFF}, s{sOFF}, s3
        s_add_u32 s{sOFF}, s{sOFF}, {WS_YB}
        v_bfe_u32 v7, v{vL}, 3, 2
        v_lshlrev_b32 v7, 13, v7
        v_lshl_add_u32 v7, v{vHL}, 17, v7
        v_and_b32 v8, 7, v{vL}
        v_lshl_add_u32 v7, v8, 4, v7
        s_waitcnt lgkmcnt(0)
        """)
        self.selgemv(0, 32, self.build_perm(vSS), lambda j: ar(128 + 4 * j), vD, True)
        self.tag4(vD)
        a(f"buffer_store_dwordx4 {vr(vD)}, v7, {sr(RWS)}, s{sOFF} offen sc1")
        self.stamp(12)

        redb, join = a.label("redb"), a.label("join")
        self.srd(R0, P_OUT, 4096)
        a(f"""
        s_lshr_b32 s{sB}, s{sH}, 4
        s_and_b32 s{sA}, s{sH}, 15
        s_lshr_b32 s3, s{sA}, 2
        s_lshl_b32 s{sC}, s3, 8
        s_bfe_u32 s3, s{sA}, 0x10001
        s_lshl_b32 s3, s3, 3
        s_add_u32 s{sC}, s{sC}, s3
        s_and_b32 s3, s{sA}, 1
        s_lshl_b32 s3, s3, 7
        s_add_u32 s{sC}, s{sC}, s3
        s_lshl_b32 s3, s{sB}, 11
        s_add_u32 s{sC}, s{sC}, s3
        v_lshlrev_b32 v{vW1}, 1, v{vG}
        v_lshl_add_u32 v{vW1}, v8, 4, v{vW1}
        s_lshl_b32 s3, s{sW}, 8
        s_add_u32 s3, s3, {FIN}
        v_lshlrev_b32 v{vQK + 1}, 2, v{vL}
        v_add_u32 v{vQK}, s3, v{vQK + 1}
        v_add_u32 v{vQK + 1}, {FIN}, v{vQK + 1}
        s_bitcmp1_b32 s{sI}, 0
        s_cbranch_scc1 {redb}
        s_mul_i32 s3, s{sB}, 1536
        s_lshl_b32 s{sOF2}, s{sW}, 7
        s_add_u32 s{sOF2}, s{sOF2}, s3
        s_add_u32 s{sOF2}, s{sOF2}, {WS_STATA}
        v_lshrrev_b32 v5, 3, v{vL}
        v_lshlrev_b32 v5, 4, v5
        """)
        def st():
            for t in range(3):
                a(f"buffer_load_dwordx4 {vr(vSS + 4 * t)}, v5, {sr(RWS)}, s{sOF2} offen offset:{512 * t} sc1")
        self.poll(st, [vSS + 2, vSS + 3, vSS + 6, vSS + 7, vSS + 10, vSS + 11], True)
        a(f"""
        v_max3_f32 v4, v{vSS}, v{vSS + 4}, v{vSS + 8}
        v_sub_f32 v{vPK}, v{vSS}, v4
        v_sub_f32 v{vPK + 1}, v{vSS + 4}, v4
        v_sub_f32 v{vPK + 2}, v{vSS + 8}, v4
        v_exp_f32 v{vPK}, v{vPK}
        v_exp_f32 v{vPK + 1}, v{vPK + 1}
        v_exp_f32 v{vPK + 2}, v{vPK + 2}
        v_mul_f32 v4, v{vPK}, v{vSS + 1}
        v_fmac_f32 v4, v{vPK + 1}, v{vSS + 5}
        v_fmac_f32 v4, v{vPK + 2}, v{vSS + 9}
        v_rcp_f32 v4, v4
        v_mul_f32 v{vPK}, v{vPK}, v4
        v_mul_f32 v{vPK + 1}, v{vPK + 1}, v4
        v_mul_f32 v{vPK + 2}, v{vPK + 2}, v4
        s_mul_i32 s{sOF2}, s{sH}, 12288
        s_lshl_b32 s3, s{sW}, 10
        s_add_u32 s{sOF2}, s{sOF2}, s3
        s_add_u32 s{sOF2}, s{sOF2}, {WS_YA}
        s_add_u32 s{sOFF}, s{sOF2}, 0x1000
        s_add_u32 s{sA}, s{sOF2}, 0x2000
        """)
        def ya():
            for t, s in enumerate((sOF2, sOFF, sA)):
                a(f"buffer_load_dwordx4 {vr(vSS + 4 * t)}, v{vL16}, {sr(RWS)}, s{s} offen sc1")
        self.poll(ya, list(range(vSS, vSS + 12)), False)
        for i in range(12):
            a(f"v_and_b32 v{vSS + i}, s{sHIGH}, v{vSS + i}")
        for i in range(4):
            a(f"v_mul_f32 v{vD + i}, v{vPK}, v{vSS + i}")
        for t in (1, 2):
            for i in range(4):
                a(f"v_fmac_f32 v{vD + i}, v{vPK + t}, v{vSS + 4 * t + i}")
        a(f"""
        s_branch {join}
        {redb}:
        s_add_u32 s{sC}, s{sC}, 1024
        s_lshl_b32 s{sOF2}, s{sH}, 13
        s_lshl_b32 s3, s{sW}, 11
        s_add_u32 s{sOF2}, s{sOF2}, s3
        s_add_u32 s{sOF2}, s{sOF2}, {WS_YB}
        """)
        def yb():
            for t in range(2):
                a(f"buffer_load_dwordx4 {vr(vSS + 4 * t)}, v{vL16}, {sr(RWS)}, s{sOF2} offen offset:{1024 * t} sc1")
        self.poll(yb, list(range(vSS, vSS + 8)), False)
        for i in range(8):
            a(f"v_and_b32 v{vSS + i}, s{sHIGH}, v{vSS + i}")
        for i in range(4):
            a(f"v_add_f32 v{vD + i}, v{vSS + i}, v{vSS + 4 + i}")
        a(f"{join}:\ns_nop 1")
        self.stamp(13)
        for i in range(4):
            a(f"v_add_f32_dpp v{vD + i}, v{vD + i}, v{vD + i} row_ror:8 {dm}:0xf")
        done = a.label("done")
        a(f"""
        v_permlane16_swap_b32 v{vD}, v{vD + 1}
        v_permlane16_swap_b32 v{vD + 2}, v{vD + 3}
        v_add_f32 v{vD}, v{vD}, v{vD + 1}
        v_add_f32 v{vD + 2}, v{vD + 2}, v{vD + 3}
        v_permlane32_swap_b32 v{vD}, v{vD + 2}
        v_add_f32 v{vD}, v{vD}, v{vD + 2}
        ds_write_b32 v{vQK}, v{vD}
        s_waitcnt lgkmcnt(0)
        s_barrier
        s_cmp_lg_u32 s{sW}, 0
        s_cbranch_scc1 {done}
        """)
        for q in range(4):
            a(f"ds_read_b32 v{vD + q}, v{vQK + 1} offset:{256 * q}")
        a(f"""
        s_mov_b32 exec_lo, 0x00ff00ff
        s_mov_b32 exec_hi, 0x00ff00ff
        s_waitcnt lgkmcnt(0)
        v_add_f32 v{vD}, v{vD}, v{vD + 1}
        v_add_f32 v{vD + 2}, v{vD + 2}, v{vD + 3}
        v_add_f32 v{vD}, v{vD}, v{vD + 2}
        v_cvt_pk_bf16_f32 v{vD}, v{vD}, v{vD}
        buffer_store_short v{vD}, v{vW1}, {sr(R0)}, s{sC} offen
        {done}:
        """)
        self.finish()

    def build(self, header):
        a = self.a
        a(f"""
        s_load_dwordx16 s[8:23], s[0:1], 0
        s_load_dwordx8 s[24:31], s[0:1], 64
        s_load_dwordx4 s[32:35], s[0:1], 96
        s_cmp_ge_u32 s2, 256
        s_cbranch_scc1 L_exit
        """)
        if self.o.get("hold"):
            a(f"s_memrealtime s[{sSTAMP}:{sSTAMP + 1}]")
        if self.o["stamps"]:
            for i in range(1, 15):
                a(f"s_mov_b32 s{sSTAMP + 2 * i}, 0")
            a(f"s_memrealtime s[{sSTAMP}:{sSTAMP + 1}]")
        a(f"""
        v_lshrrev_b32 v4, 6, v0
        v_and_b32 v{vL}, 63, v0
        v_readfirstlane_b32 s{sW}, v4
        v_and_b32 v{vN}, 15, v0
        v_bfe_u32 v{vG}, v0, 4, 2
        s_and_b32 s{sA}, s2, 7
        s_lshr_b32 s{sC}, s2, 3
        s_lshl_b32 s{sI}, s{sA}, 3
        s_add_u32 s{sI}, s{sI}, s{sC}
        s_sub_u32 s{sI}, s{sI}, 24
        s_cmp_ge_u32 s{sC}, 24
        s_cbranch_scc1 L_role_b
        s_mul_i32 s3, s{sC}, 43
        s_lshr_b32 s3, s3, 8
        s_lshl_b32 s{sH}, s{sA}, 2
        s_add_u32 s{sH}, s{sH}, s3
        s_mul_i32 s3, s3, 6
        s_sub_u32 s{sI}, s{sC}, s3
        s_and_b32 s{sB}, s{sI}, 1
        s_lshr_b32 s{sT3}, s{sI}, 1
        s_cmp_eq_u32 s{sT3}, 0
        s_cbranch_scc1 L_role_a2
        """)
        self.role_a(1)
        a("L_exit:\ns_endpgm\nL_role_a2:")
        self.role_a(2)
        a("L_role_b:")
        self.role_b()
        body = a.text()
        return (header + f"""; @launch grid=(256,1,1) block=(256,1,1) lds=163840
.amdgcn_target "amdgcn-amd-amdhsa--gfx950"
.text
.globl {KERNEL}
.p2align 8
.type {KERNEL},@function
{KERNEL}:
""" + body + f""".section .rodata,"a"
.p2align 6
.amdhsa_kernel {KERNEL}
  .amdhsa_next_free_vgpr 512
  .amdhsa_next_free_sgpr 102
  .amdhsa_accum_offset 256
  .amdhsa_group_segment_fixed_size 0
  .amdhsa_kernarg_size 112
  .amdhsa_user_sgpr_count 2
  .amdhsa_user_sgpr_kernarg_segment_ptr 1
  .amdhsa_system_sgpr_workgroup_id_x 1
.end_amdhsa_kernel
""")


def header():
    ref = open(f"cdna_kernels/{NAME}.s.ref").read().split("\n")
    return "\n".join(l for l in ref if l.startswith(";") and "@launch" not in l) + "\n"


if __name__ == "__main__":
    out = sys.argv[1]
    kw = eval("dict(" + (sys.argv[2] if len(sys.argv) > 2 else "") + ")")
    open(out, "w").write(Gen(**kw).build(header()))
```

```python
import sys, math
from asmlib import Asm

NAME = "concat_heads__sliding_block_cached__compressed_kv_cla__decode"
KERNEL = NAME + "_kernel"

WS_FLAGB = 0x1000
WS_STATA = 0x2000
WS_QP = 0x10000
WS_QA = 0x50000
WS_STATB = 0x60000
WS_YA = 0x80000
WS_YB = 0x100000
WS_PART = 0x200000
WS_SIZE = 0x400000
WS_STAMP = 0x1000000

P_AX, P_K, P_V, P_WQ, P_WO, P_BX, P_CKV, P_BQ, P_UK, P_UV, P_BO, P_OUT, P_DBG, P_WS = [8 + 2 * i for i in range(14)]
R0, R1, R2, RWS, R4, R5 = 36, 40, 44, 48, 52, 4
sW, sH, sB, sT3, sTAG, sOFF, sA, sC, sSPIN, sLOW, sHIGH, sCST, sOF2, sI = range(56, 70)
sEX = 70
sSTAMP = 72
vL, vN, vG, vTAG = 1, 2, 3, 9
vM, vS, vA0, vD = 10, 14, 24, 32
vL16 = 22

LOG2E = math.log2(math.e)
SCALE = 128 ** -0.5
import struct
def fbits(x): return "0x%08x" % struct.unpack("<I", struct.pack("<f", x))[0]
def vr(b, n=4): return f"v[{b}:{b + n - 1}]"
def ar(b, n=4): return f"a[{b}:{b + n - 1}]"
def sr(b, n=4): return f"s[{b}:{b + n - 1}]"

DEF = dict(stamps=False, DI=8, D0=12, D1=8, D2=12, DB=16, spin=200000, mimicA=True, qpos=24, extra=4, pf=True, il=1, pre2=6)


class Gen:
    def __init__(self, **kw):
        self.o = dict(DEF); self.o.update(kw)
        self.a = Asm()

    def stamp(self, i):
        if self.o["stamps"]:
            self.a(f"s_memrealtime s[{sSTAMP + 2 * i}:{sSTAMP + 2 * i + 1}]\ns_waitcnt lgkmcnt(0)")

    def finish(self):
        a = self.a
        if self.o.get("hold"):
            lp = a.label("hold")
            a(f"{lp}:\ns_memrealtime s[74:75]\ns_waitcnt lgkmcnt(0)\ns_sub_u32 s3, s74, s72\ns_cmp_lt_u32 s3, {self.o['hold'] * 100}\ns_cbranch_scc1 {lp}")
        if self.o["stamps"]:
            self.stamp(14)
            a(f"s_lshl_b32 s3, s2, 2\ns_add_u32 s3, s3, s{sW}\ns_lshl_b32 s3, s3, 6\ns_add_u32 s3, s3, {WS_STAMP}")
            a("s_mov_b64 exec, 1\nv_mov_b32 v4, s3")
            for i in range(15):
                a(f"v_mov_b32 v5, s{sSTAMP + 2 * i}\nglobal_store_dword v4, v5, s[{P_WS}:{P_WS + 1}] offset:{4 * i}")
            a(f"s_getreg_b32 s3, hwreg(HW_REG_XCC_ID)\nv_mov_b32 v5, s3\nglobal_store_dword v4, v5, s[{P_WS}:{P_WS + 1}] offset:60")
        a("s_endpgm")

    def srd(self, r, ptr, size, off_lo=None, off_hi=None):
        a = self.a
        if off_lo is None:
            a(f"s_mov_b32 s{r}, s{ptr}\ns_and_b32 s{r + 1}, s{ptr + 1}, 0xffff")
        else:
            a(f"s_add_u32 s{r}, s{ptr}, {off_lo}\ns_addc_u32 s{r + 1}, s{ptr + 1}, {off_hi or 0}\ns_and_b32 s{r + 1}, s{r + 1}, 0xffff")
        a(f"s_mov_b32 s{r + 2}, {size}\ns_mov_b32 s{r + 3}, 0x20000")

    def consts(self, cst):
        a = self.a
        self.srd(RWS, P_WS, WS_SIZE)
        a(f"""
        s_mov_b32 s{sSPIN}, {self.o['spin']}
        s_movk_i32 s{sLOW}, 0xfff
        s_mov_b32 s{sHIGH}, 0xfffff000
        s_mov_b32 s{sCST}, {fbits(cst)}
        v_lshlrev_b32 v{vL16}, 4, v{vL}
        """)

    def selectors(self, perm=True):
        a = self.a
        a(f"""
        v_and_b32 v4, 1, v{vN}
        v_bfe_u32 v5, v{vN}, 1, 2
        v_cmp_eq_u32 vcc, 1, v4
        v_mov_b32 v6, 0xffff
        v_mov_b32 v7, 0xffff0000
        v_cndmask_b32 v8, v6, v7, vcc
        """)
        if perm:
            a(f"""
            v_mov_b32 v6, 0x0c0c0100
            v_mov_b32 v7, 0x01000c0c
            v_cndmask_b32 v{vA0}, v6, v7, vcc
            v_mov_b32 v6, 0x0c0c0302
            v_mov_b32 v7, 0x03020c0c
            v_cndmask_b32 v{vA0 + 1}, v6, v7, vcc
            v_mov_b32 v6, 0x0c0c0c0c
            """)
        for jj in range(4):
            a(f"v_cmp_eq_u32 vcc, {jj}, v5\nv_cndmask_b32 v{vM + jj}, 0, v8, vcc")
            if perm:
                a(f"v_cndmask_b32 v{vS + 2 * jj}, v6, v{vA0}, vcc\nv_cndmask_b32 v{vS + 2 * jj + 1}, v6, v{vA0 + 1}, vcc")

    def get_tag(self):
        self.a(f"s_waitcnt lgkmcnt(0)\ns_add_u32 s{sTAG}, s{sTAG}, 1\nv_mov_b32 v{vTAG}, s{sTAG}")

    def build_perm(self, x):
        def f(j, A):
            for jj in range(4):
                self.a(f"v_perm_b32 v{A + jj}, v{x + j // 2}, v{x + j // 2}, v{vS + 2 * jj + j % 2}")
        return f

    def build_dpp(self, src):
        def f(j, A):
            reg, lane = src(j)
            for jj in range(4):
                self.a(f"v_and_b32_dpp v{A + jj}, v{reg}, v{vM + jj} row_newbcast:{lane} row_mask:0xf bank_mask:0xf")
        return f

    def selgemv(self, j0, j1, build, B, D, zero, before=None):
        a = self.a
        build(j0, vA0 + 4 * (j0 % 2))
        for j in range(j0, j1):
            if j + 1 < j1:
                build(j + 1, vA0 + 4 * ((j + 1) % 2))
            if before:
                before(j)
            c = "0" if (zero and j == j0) else vr(D)
            a(f"v_mfma_f32_16x16x32_bf16 {vr(D)}, {vr(vA0 + 4 * (j % 2))}, {B(j)}, {c}")

    def tag4(self, r):
        for i in range(4):
            self.a(f"v_add_u32 v{r + i}, 0x800, v{r + i}")
        for i in range(4):
            self.a(f"v_bfi_b32 v{r + i}, s{sLOW}, v{vTAG}, v{r + i}")

    def poll(self, issue, regs, full, tracked_tag=None):
        a = self.a
        chk, ok = a.label("chk"), a.label("ok")
        if tracked_tag is None:
            issue()
            a("s_waitcnt vmcnt(0)")
            a.vmreset()
        else:
            a.vmwait(tracked_tag)
        a(f"{chk}:")
        a(f"v_xor_b32 v4, s{sTAG}, v{regs[0]}")
        for r in regs[1:]:
            a(f"v_bitop3_b32 v4, v4, v{r}, s{sTAG} bitop3:0xf6")
        if not full:
            a(f"v_and_b32 v4, s{sLOW}, v4")
        a(f"v_cmp_ne_u32 vcc, 0, v4\ns_cbranch_vccz {ok}\ns_cmp_eq_u32 s{sSPIN}, 0\ns_cbranch_scc1 {ok}\ns_sub_u32 s{sSPIN}, s{sSPIN}, 1")
        issue()
        a(f"s_waitcnt vmcnt(0)\ns_branch {chk}\n{ok}:")

    def q_issue(self, mat, g0, track):
        a = self.a
        def issue(tr=False):
            for q in range(4):
                t = f"buffer_load_dwordx4 {vr(g0 + 4 * q)}, v{vL16}, {sr(RWS)}, s{sOF2} offen offset:{1024 * q} sc1"
                if tr: a.vm(t, track)
                else: a(t)
        a(f"s_lshl_b32 s{sOF2}, s{sH}, 12\ns_add_u32 s{sOF2}, s{sOF2}, {WS_QP + mat * 32 * 4096}")
        return issue

    def q_finish(self, g0, lds_base):
        a = self.a
        for i in range(16):
            a(f"v_and_b32 v{g0 + i}, s{sHIGH}, v{g0 + i}")
        for i in range(4):
            a(f"v_add_f32 v{g0 + i}, v{g0 + i}, v{g0 + 4 + i}\nv_add_f32 v{g0 + 8 + i}, v{g0 + 8 + i}, v{g0 + 12 + i}")
        for i in range(4):
            a(f"v_add_f32 v{g0 + i}, v{g0 + i}, v{g0 + 8 + i}")
        a(f"""
        v_cvt_pk_bf16_f32 v{g0}, v{g0}, v{g0 + 1}
        v_cvt_pk_bf16_f32 v{g0 + 1}, v{g0 + 2}, v{g0 + 3}
        s_lshl_b32 s3, s{sW}, 9
        s_add_u32 s3, s3, {lds_base}
        v_lshrrev_b32 v4, 1, v{vG}
        v_and_b32 v6, 1, v{vG}
        v_lshlrev_b32 v4, 8, v4
        v_lshl_add_u32 v4, v6, 3, v4
        v_lshl_add_u32 v4, v{vN}, 4, v4
        v_add_u32 v4, s3, v4
        ds_write_b64 v4, {vr(g0, 2)}
        """)

    def role_a(self, typ):
        a, o = self.a, self.o
        a.vmreset()
        NL = 44 if typ == 1 else 40
        NG = NL // 4
        vQ, vP, vSC, vGA, vK, vX0, vX1 = 36, 40, 44, 56, 72, 248, 252
        vO1, vO2 = 23, 55
        RED0, RED1, QT, QT2, QO, MX, LS, OP, UKB = 0, 4096, 8192, 10240, 12288, 13312, 13440, 14336, 16384
        a("s_waitcnt lgkmcnt(0)")
        a(f"s_load_dword s{sTAG}, s[{P_WS}:{P_WS + 1}], 0")
        if typ == 1:
            self.srd(R0, P_BQ, 1 << 22)
            self.srd(R1, P_WQ, 1 << 22)
            a(f"""
            s_sub_u32 s{sI}, s{sI}, 2
            s_lshl_b32 s3, s{sI}, 2
            s_add_u32 s3, s3, s{sW}
            s_lshl_b32 s{sOFF}, s3, 18
            s_lshl_b32 s{sA}, s{sH}, 8
            s_add_u32 s{sOFF}, s{sOFF}, s{sA}
            s_lshl_b32 s3, s3, 6
            v_lshrrev_b32 v4, 3, v{vN}
            v_lshlrev_b32 v4, 10, v4
            v_lshl_add_u32 v4, v{vG}, 4, v4
            v_add_u32 v4, s3, v4
            v_lshlrev_b32 v5, 16, v{vG}
            v_lshl_add_u32 v5, v{vN}, 4, v5
            s_mov_b32 s{sOF2}, s{sOFF}
            """)
            a.vm(f"global_load_dwordx4 {vr(vX0)}, v4, s[{P_BX}:{P_BX + 1}]", "w0")
            for j in range(8):
                a.vm(f"buffer_load_dwordx4 {ar(128 + 4 * j)}, v5, {sr(R0)}, s{sOFF} offen nt", "w0")
                if j < 7: a(f"s_add_u32 s{sOFF}, s{sOFF}, 0x2000")
            a.vm(f"global_load_dwordx4 {vr(vX1)}, v4, s[{P_AX}:{P_AX + 1}]", "w1")
            a(f"v_mov_b32 v{vQ}, v5")
            def second():
                for j in range(8):
                    a.vmlimit(o["DI"])
                    a.vm(f"buffer_load_dwordx4 {ar(160 + 4 * j)}, v{vQ}, {sr(R1)}, s{sOF2} offen nt", "w1")
                    if j < 7: a(f"s_add_u32 s{sOF2}, s{sOF2}, 0x2000")
        else:
            self.srd(R0, P_UK, 1 << 22)
            a(f"""
            s_lshl_b32 s3, s{sB}, 2
            s_add_u32 s3, s3, s{sW}
            s_lshl_b32 s{sOFF}, s3, 19
            s_lshl_b32 s{sA}, s{sH}, 8
            s_add_u32 s{sOFF}, s{sOFF}, s{sA}
            v_xor_b32 v4, v{vG}, v{vN}
            v_lshlrev_b32 v5, 13, v{vG}
            s_lshl_b32 s{sC}, s{sW}, 14
            s_add_u32 s{sC}, s{sC}, {UKB}
            """)
            for j in range(4):
                a(f"v_xor_b32 v6, {4 * j}, v4\nv_lshl_add_u32 v{vQ + j}, v6, 4, v5")
            def ukload(j):
                a(f"s_add_u32 m0, s{sC}, {1024 * j}")
                a.vm(f"buffer_load_dwordx4 v{vQ + j % 4}, {sr(R0)}, s{sOFF} offen nt lds", "w0")
                if j < 15: a(f"s_add_u32 s{sOFF}, s{sOFF}, 0x8000")
            for j in range(8): ukload(j)
            def second():
                for j in range(8, 16):
                    a.vmlimit(o["DI"])
                    ukload(j)
        self.stamp(1)
        a(f"s_lshl_b32 s3, s{sH}, 17")
        self.srd(R2, P_WO, 1 << 17, "s3")
        a(f"""
        s_lshl_b32 s3, s{sB}, 5
        s_add_u32 s3, s3, s{sH}
        s_lshl_b32 s3, s3, 21
        """)
        if typ == 1:
            a(f"s_mul_i32 s{sA}, s{sT3}, {704 * 256}\ns_add_u32 s3, s3, s{sA}\ns_add_u32 s3, s3, {(6144 - 64) * 256}")
        else:
            a(f"s_add_u32 s3, s3, {6144 * 256}")
        self.srd(R4, P_K, NL * 4096, "s3")
        self.srd(R5, P_V, NL * 4096, "s3")
        self.consts(LOG2E if o["mimicA"] else LOG2E * SCALE)
        a(f"""
        s_lshl_b32 s3, s{sW}, 8
        v_lshlrev_b32 v{vO1}, 15, v{vG}
        v_lshl_add_u32 v{vO1}, v{vN}, 4, v{vO1}
        v_add_u32 v{vO1}, s3, v{vO1}
        s_lshl_b32 s3, s{sW}, 10
        v_add_u32 v{vO2}, s3, v{vL16}
        """)
        self.selectors(perm=(typ == 1))
        self.get_tag()
        second()

        stream = []
        def ld_wo(j):
            def f():
                a(f"s_movk_i32 s{sOFF}, {j * 1024}")
                a.vm(f"buffer_load_dwordx4 {ar(4 * j)}, v{vO1}, {sr(R2)}, s{sOFF} offen nt", "wo")
            return f
        def vreg(j):
            return ar(128 + 4 * j) if j < 32 else vr(vK + 4 * (j - 32))
        def ld_kv(which, j):
            def f():
                a(f"s_mov_b32 s{sOFF}, {j * 4096}")
                if which == "K":
                    a.vm(f"buffer_load_dwordx4 {vr(vK + 4 * j)}, v{vO2}, {sr(R4)}, s{sOFF} offen nt", f"K{j}")
                else:
                    a.vm(f"buffer_load_dwordx4 {vreg(j)}, v{vO2}, {sr(R5)}, s{sOFF} offen nt", f"V{j}")
            return f
        order, wj = [], 0
        for item in [("K", j) for j in range(NL)] + [("V", j) for j in range(NL)]:
            while wj < 32 and (o["il"] == 0 or wj * o["il"] <= len(order) - wj):
                order.append(("W", wj)); wj += 1
            order.append(item)
        stream = [ld_wo(j) if k == "W" else ld_kv(k, j) for k, j in order]
        at = {it: i for i, it in enumerate(order)}
        pos = [0]
        def pump(upto, depth):
            while pos[0] < min(upto, len(stream)):
                a.vmlimit(depth - 1)
                stream[pos[0]]()
                pos[0] += 1

        if typ == 1:
            for mat, tag, x, base, red, pw in ((1, "w0", vX0, 128, RED0, 0), (0, "w1", vX1, 160, RED1, 1)):
                a.vmwait(tag)
                if mat == 1: self.stamp(2)
                self.selgemv(0, 8, self.build_perm(x), lambda j: ar(base + 4 * j), vD, True)
                a(f"ds_write_b128 v{vO2}, {vr(vD)} offset:{red}")
                a("s_waitcnt lgkmcnt(0)\ns_barrier")
                skip = a.label("nopub")
                a(f"s_cmp_lg_u32 s{sW}, {pw}\ns_cbranch_scc1 {skip}")
                for q in range(4):
                    a(f"ds_read_b128 {vr(vGA + 4 * q)}, v{vL16} offset:{red + 1024 * q}")
                a(f"""
                s_lshl_b32 s3, s{sH}, 2
                s_add_u32 s3, s3, s{sI}
                s_lshl_b32 s3, s3, 10
                s_add_u32 s3, s3, {WS_QP + mat * 32 * 4096}
                s_waitcnt lgkmcnt(0)
                """)
                for i in range(4):
                    a(f"v_add_f32 v{vGA + i}, v{vGA + i}, v{vGA + 4 + i}\nv_add_f32 v{vGA + 8 + i}, v{vGA + 8 + i}, v{vGA + 12 + i}")
                for i in range(4):
                    a(f"v_add_f32 v{vGA + i}, v{vGA + i}, v{vGA + 8 + i}")
                self.tag4(vGA)
                a(f"buffer_store_dwordx4 {vr(vGA)}, v{vL16}, {sr(RWS)}, s3 offen sc1")
                a(f"s_nop 1\n{skip}:")
                if mat == 1:
                    self.stamp(3)
                    pump(o["pre2"], 32)
            self.stamp(4)
        else:
            pump(o["pre2"], o["DI"] + 1)
            a.vmwait("w0")
            a(f"""
            v_xor_b32 v4, v{vG}, v{vN}
            v_lshl_add_u32 v5, v{vN}, 8, s{sC}
            """)
            for s in range(4):
                a(f"v_xor_b32 v6, {4 * s}, v4\nv_lshl_add_u32 v6, v6, 4, v5")
                for u in range(4):
                    a(f"ds_read_b128 {ar(128 + 16 * u + 4 * s)}, v6 offset:{4096 * u}")
            issue = self.q_issue(1, vGA, None)
            self.poll(issue, list(range(vGA, vGA + 16)), False)
            self.stamp(2)
            pump(pos[0] + o["pre2"], 32)
            self.q_finish(vGA, QT2)
            a(f"""
            v_and_b32 v4, 1, v{vN}
            v_lshlrev_b32 v4, 8, v4
            v_lshl_add_u32 v4, v{vG}, 4, v4
            v_add_u32 v4, s3, v4
            s_waitcnt lgkmcnt(0)
            """)
            for s in range(4):
                a(f"ds_read_b128 {vr(vGA + 4 * s)}, v4 offset:{64 * s}")
            a("s_waitcnt lgkmcnt(0)")
            DU = 232
            for u in range(4):
                for s in range(4):
                    c = "0" if s == 0 else vr(DU + 4 * u)
                    a(f"v_mfma_f32_16x16x32_bf16 {vr(DU + 4 * u)}, {ar(128 + 16 * u + 4 * s)}, {vr(vGA + 4 * s)}, {c}")
            a(f"""
            s_lshl_b32 s3, s{sW}, 7
            v_and_b32 v4, 1, v{vN}
            v_lshlrev_b32 v4, 9, v4
            v_lshl_add_u32 v4, v{vG}, 3, v4
            v_add_u32 v4, s3, v4
            """)
            for u in range(4):
                a(f"v_cvt_pk_bf16_f32 v{DU + 4 * u}, v{DU + 4 * u}, v{DU + 4 * u + 1}")
                a(f"v_cvt_pk_bf16_f32 v{DU + 4 * u + 1}, v{DU + 4 * u + 2}, v{DU + 4 * u + 3}")
                a(f"ds_write_b64 v4, {vr(DU + 4 * u, 2)} offset:{QO + 32 * u}")
            a("s_waitcnt lgkmcnt(0)\ns_barrier")
            skip = a.label("nopub")
            a(f"""
            s_cmp_lg_u32 s{sW}, 0
            s_cbranch_scc1 {skip}
            ds_read_b128 {vr(vGA)}, v{vL16} offset:{QO}
            v_lshrrev_b32 v4, 5, v{vL}
            v_and_b32 v5, 31, v{vL}
            v_lshlrev_b32 v4, 15, v4
            v_lshl_add_u32 v4, v5, 4, v4
            s_lshl_b32 s3, s{sH}, 1
            s_add_u32 s{sA}, s3, s{sB}
            s_lshl_b32 s3, s{sA}, 9
            s_add_u32 s3, s3, {WS_QA}
            s_waitcnt lgkmcnt(0)
            buffer_store_dwordx4 {vr(vGA)}, v4, {sr(RWS)}, s3 offen sc1
            s_lshl_b32 s3, s{sA}, 4
            s_add_u32 s3, s3, {WS_FLAGB}
            v_mov_b32 v4, s{sTAG}
            v_mov_b32 v5, s{sTAG}
            v_mov_b32 v6, s{sTAG}
            v_mov_b32 v7, s{sTAG}
            v_mov_b32 v8, 0
            s_mov_b64 exec, 1
            s_waitcnt vmcnt(0)
            buffer_store_dwordx4 v[4:7], v8, {sr(RWS)}, s3 offen sc1
            s_mov_b64 exec, -1
            s_nop 1
            {skip}:
            """)
            self.stamp(3)

        pump(o["qpos"], o["D0"])
        issue = self.q_issue(0, vGA, "q")
        issue(True)
        pump(pos[0] + o["D0"] - 4, o["D0"] + 4)
        self.poll(issue, list(range(vGA, vGA + 16)), False, "q")
        self.stamp(5)
        self.q_finish(vGA, QT)
        a(f"""
        s_lshl_b32 s{sA}, s{sB}, 8
        s_add_u32 s3, s3, s{sA}
        v_lshl_add_u32 v4, v{vN}, 4, s3
        s_waitcnt lgkmcnt(0)
        ds_read_b128 {vr(vQ)}, v4
        s_waitcnt lgkmcnt(0)
        """)
        dm = "row_mask:0xf bank_mask"
        for G in range(NG):
            p = at[("K", 4 * G + 3)]
            pump(p + 1 + (o["D0"] if p < at[("W", 31)] else o["D1"]), 63)
            a.vmwait(f"K{4 * G + 3}")
            for e in range(4):
                for jj in range(4):
                    k = vK + 4 * (4 * G + jj) + e
                    if e == 0: a(f"v_dot2_f32_bf16 v{vP + jj}, v{k}, v{vQ}, 0")
                    else: a(f"v_dot2c_f32_bf16 v{vP + jj}, v{k}, v{vQ + e}")
            S = vSC + G
            a(f"""
            v_add_f32_dpp v{vP}, v{vP}, v{vP} row_ror:8 {dm}:0x3
            v_add_f32_dpp v{vP + 1}, v{vP + 1}, v{vP + 1} row_ror:8 {dm}:0x3
            v_add_f32_dpp v{vP}, v{vP + 2}, v{vP + 2} row_ror:8 {dm}:0xc
            v_add_f32_dpp v{vP + 1}, v{vP + 3}, v{vP + 3} row_ror:8 {dm}:0xc
            v_add_f32_dpp v{S}, v{vP}, v{vP} row_shl:4 {dm}:0x5
            v_add_f32_dpp v{S}, v{vP + 1}, v{vP + 1} row_shr:4 {dm}:0xa
            v_add_f32_dpp v{S}, v{S}, v{S} quad_perm:[1,0,3,2] {dm}:0xf
            v_add_f32_dpp v{S}, v{S}, v{S} quad_perm:[2,3,0,1] {dm}:0xf
            """)
            if o["mimicA"]:
                a(f"""
                v_cvt_pk_bf16_f32 v{S}, v{S}, v{S}
                v_and_b32 v{S}, 0xffff0000, v{S}
                v_mul_f32 v{S}, {fbits(SCALE)}, v{S}
                v_cvt_pk_bf16_f32 v{S}, v{S}, v{S}
                v_and_b32 v{S}, 0xffff0000, v{S}
                """)
            a(f"v_mov_b32 v8, v{S}" if G == 0 else f"v_max_f32 v8, v8, v{S}")
        self.stamp(6)
        pump(at[("V", 0)] + o["D2"] + o["extra"], 63)
        a(f"""
        v_max_f32_dpp v8, v8, v8 row_ror:4 {dm}:0xf
        v_max_f32_dpp v8, v8, v8 row_ror:8 {dm}:0xf
        s_lshl_b32 s3, s{sW}, 4
        v_lshl_add_u32 v7, v{vG}, 2, s3
        v_mov_b32 v6, 0
        ds_write_b32 v7, v8 offset:{MX}
        s_waitcnt lgkmcnt(0)
        s_barrier
        """)
        for q in range(4):
            a(f"ds_read_b128 {vr(vGA + 4 * q)}, v6 offset:{MX + 16 * q}")
        a("s_waitcnt lgkmcnt(0)")
        a(f"v_max3_f32 v8, v{vGA}, v{vGA + 1}, v{vGA + 2}")
        for i in range(3, 15, 2):
            a(f"v_max3_f32 v8, v8, v{vGA + i}, v{vGA + i + 1}")
        a(f"v_max_f32 v8, v8, v{vGA + 15}\nv_mul_f32 v8, s{sCST}, v8")
        for G in range(NG):
            a(f"v_fma_f32 v{vSC + G}, v{vSC + G}, s{sCST}, -v8")
        for G in range(NG):
            a(f"v_exp_f32 v{vSC + G}, v{vSC + G}")
        a(f"v_add_f32 v5, v{vSC}, v{vSC + 1}")
        for G in range(2, NG):
            a(f"v_add_f32 v5, v5, v{vSC + G}")
        for G in range(NG):
            a(f"v_cvt_pk_bf16_f32 v{vSC + G}, v{vSC + G}, v{vSC + G}")
        skip = a.label("nostat")
        a(f"""
        v_add_f32_dpp v5, v5, v5 row_ror:4 {dm}:0xf
        v_add_f32_dpp v5, v5, v5 row_ror:8 {dm}:0xf
        ds_write_b32 v7, v5 offset:{LS}
        s_waitcnt lgkmcnt(0)
        s_barrier
        s_cmp_lg_u32 s{sW}, 0
        s_cbranch_scc1 {skip}
        """)
        for q in range(4):
            a(f"ds_read_b128 {vr(vGA + 4 * q)}, v6 offset:{LS + 16 * q}")
        a(f"""
        s_mul_i32 s3, s{sB}, 3
        s_add_u32 s3, s3, s{sT3}
        s_lshl_b32 s3, s3, 5
        s_add_u32 s3, s3, s{sH}
        s_lshl_b32 s3, s3, 4
        s_add_u32 s3, s3, {WS_STATA}
        s_waitcnt lgkmcnt(0)
        v_add_f32 v5, v{vGA}, v{vGA + 1}
        """)
        for i in range(2, 16):
            a(f"v_add_f32 v5, v5, v{vGA + i}")
        a(f"""
        v_mov_b32 v4, v8
        v_mov_b32 v7, s{sTAG}
        v_mov_b32 v8, 0
        v_mov_b32 v6, s{sTAG}
        s_mov_b64 exec, 1
        buffer_store_dwordx4 v[4:7], v8, {sr(RWS)}, s3 offen sc1
        s_mov_b64 exec, -1
        s_nop 1
        {skip}:
        """)
        self.stamp(7)
        def before(j):
            if j % 4 == 0:
                pump(at[("V", j + 3)] + 1 + o["D2"], 63)
            if j >= NL - 4: a.vmwait(f"V{j}")
            elif j % 4 == 0: a.vmwait(f"V{j + 3}")
        a(f"""
        v_and_b32 v4, 1, v{vG}
        v_lshlrev_b32 v5, 5, v{vN}
        v_lshl_add_u32 v5, v4, 4, v5
        s_lshl_b32 s3, s{sW}, 9
        v_add_u32 v5, s3, v5
        v_lshlrev_b32 v6, 3, v{vL}
        s_lshl_b32 s3, s{sB}, 2
        s_add_u32 s3, s3, s{sW}
        s_mul_i32 s3, s3, {4 * 12288}
        s_lshl_b32 s{sA}, s{sT3}, 5
        s_add_u32 s{sA}, s{sA}, s{sH}
        s_lshl_b32 s{sA}, s{sA}, 7
        s_add_u32 s3, s3, s{sA}
        s_add_u32 s{sOF2}, s3, {WS_YA}
        v_lshrrev_b32 v7, 3, v{vL}
        v_mul_u32_u24 v7, 12288, v7
        v_and_b32 v8, 7, v{vL}
        v_lshl_add_u32 v7, v8, 4, v7
        """)
        self.selgemv(0, NL, self.build_dpp(lambda j: (vSC + j // 4, 4 * (j % 4))), vreg, vD, True, before)
        self.stamp(8)
        a(f"ds_write_b128 v5, {vr(vD)} offset:{OP}\ns_waitcnt lgkmcnt(0)\ns_barrier")
        for q in range(4):
            a(f"ds_read_b64 {vr(vGA + 2 * q, 2)}, v6 offset:{OP + 512 * q}")
        a(f"""
        s_waitcnt lgkmcnt(0)
        v_add_f32 v{vGA}, v{vGA}, v{vGA + 2}
        v_add_f32 v{vGA + 1}, v{vGA + 1}, v{vGA + 3}
        v_add_f32 v{vGA + 4}, v{vGA + 4}, v{vGA + 6}
        v_add_f32 v{vGA + 5}, v{vGA + 5}, v{vGA + 7}
        v_add_f32 v{vGA}, v{vGA}, v{vGA + 4}
        v_add_f32 v{vGA + 1}, v{vGA + 1}, v{vGA + 5}
        v_cvt_pk_bf16_f32 v{vGA}, v{vGA}, v{vGA}
        v_cvt_pk_bf16_f32 v{vGA + 1}, v{vGA + 1}, v{vGA + 1}
        """)
        self.selgemv(0, 32, self.build_dpp(lambda j: (vGA + j % 2, j // 2)), lambda j: ar(4 * j), vD, True)
        self.tag4(vD)
        a(f"s_mov_b32 exec_hi, 0\nbuffer_store_dwordx4 {vr(vD)}, v7, {sr(RWS)}, s{sOF2} offen sc1")
        self.finish()

    def role_b(self):
        a, o = self.a, self.o
        a.vmreset()
        vDM, vH1, vQK, vTR, vW1, vMX, vLS, vHL, vHD = 36, 40, 44, 52, 60, 63, 64, 65, 66
        vSS, vFR, vO, vUV, vQQ, vPK = 72, 88, 112, 176, 240, 248
        QB = 131072
        PB, MXB, LSB, XC, RED, XT, FIN = QB, QB + 8192, QB + 9216, QB + 10240, QB + 12288, QB + 16384, QB + 20480
        dm = "row_mask:0xf bank_mask"
        sS = sT3
        a(f"""
        s_lshl_b32 s3, s{sW}, 2
        s_lshl_b32 s{sA}, s{sW}, 10
        v_xor_b32 v4, s3, v{vL}
        s_lshl_b32 s{sC}, s{sW}, 8
        v_lshlrev_b32 v5, 2, v{vG}
        v_xor_b32 v5, v5, v{vN}
        v_lshlrev_b32 v6, 10, v{vG}
        v_add_u32 v6, s{sC}, v6
        """)
        for j in range(4):
            a(f"v_xor_b32 v7, {j}, v4\nv_lshl_add_u32 v{vDM + j}, v7, 4, s{sA}")
            a(f"v_xor_b32 v7, {j}, v5\nv_lshl_add_u32 v{vH1 + j}, v7, 4, v6")
        a(f"v_lshl_add_u32 v{vW1}, v{vN}, 4, v6")
        a("s_waitcnt lgkmcnt(0)")
        a(f"s_load_dword s{sTAG}, s[{P_WS}:{P_WS + 1}], 0")
        a(f"s_lshl_b32 s3, s{sI}, 18")
        self.srd(R0, P_CKV, 1 << 18, "s3")
        a(f"s_mov_b32 s{sOFF}, 0")
        for j in range(32):
            a.vmlimit(o["DB"] - 1)
            a(f"s_add_u32 m0, s{sOFF}, s{sA}")
            a.vm(f"buffer_load_dwordx4 v{vDM + j % 4}, {sr(R0)}, s{sOFF} offen nt lds", "c0")
            a(f"s_add_u32 s{sOFF}, s{sOFF}, 0x1000")
        self.stamp(1)
        for j in range(32):
            a.vmlimit(o["DB"] - 1)
            a.vm(f"buffer_load_dwordx4 {ar(128 + 4 * j)}, v{vH1 + j % 4}, {sr(R0)}, s{sOFF} offen nt", "c1")
            if j < 31: a(f"s_add_u32 s{sOFF}, s{sOFF}, 0x1000")
        self.consts(LOG2E * SCALE)
        self.selectors()
        a(f"""
        s_lshr_b32 s{sB}, s{sI}, 5
        s_and_b32 s{sS}, s{sI}, 31
        s_lshr_b32 s{sH}, s{sI}, 1
        v_add_u32 v{vW1 + 1}, 0x10000, v{vW1}
        v_lshrrev_b32 v{vHL}, 5, v{vL}
        v_and_b32 v{vHD}, 31, v{vL}
        v_and_b32 v4, 3, v{vL}
        v_bfe_u32 v5, v{vL}, 2, 2
        v_lshl_add_u32 v6, v4, 2, v5
        v_xor_b32 v6, v6, v{vHL}
        v_lshlrev_b32 v7, 10, v{vHD}
        s_lshl_b32 s3, s{sW}, 15
        """)
        for s in range(8):
            a(f"v_xor_b32 v8, {2 * s}, v6\nv_lshl_add_u32 v8, v8, 4, v7\nv_add_u32 v{vQK + s}, s3, v8\nv_add_u32 v{vQQ + s}, {QB}, v8")
        a(f"""
        v_bfe_u32 v6, v{vL}, 4, 1
        v_lshrrev_b32 v7, 1, v4
        v_lshl_add_u32 v6, v6, 1, v7
        v_xor_b32 v6, v6, v{vHL}
        v_lshl_add_u32 v6, v5, 2, v6
        v_lshl_add_u32 v7, v{vHL}, 2, v5
        v_lshlrev_b32 v7, 10, v7
        v_and_b32 v8, 1, v{vL}
        v_lshl_add_u32 v7, v8, 3, v7
        v_add_u32 v7, s{sC}, v7
        """)
        for T in range(4):
            for z in range(2):
                a(f"v_xor_b32 v8, {4 * T + 2 * z}, v6\nv_lshl_add_u32 v{vTR + 2 * T + z}, v8, 4, v7")
                if z: a(f"v_add_u32 v{vTR + 2 * T + z}, 0x2000, v{vTR + 2 * T + z}")
        self.get_tag()
        self.srd(R1, P_UV, 1 << 22)
        a(f"s_lshl_b32 s3, s{sH}, 17")
        self.srd(R2, P_BO, 1 << 17, "s3")
        skip = a.label("nopoll")
        a(f"s_cmp_lg_u32 s{sW}, 0\ns_cbranch_scc1 {skip}\ns_movk_i32 s3, {WS_FLAGB}")
        saved = list(a.q)
        self.poll(lambda: a(f"buffer_load_dwordx4 {vr(vSS)}, v{vL16}, {sr(RWS)}, s3 offen sc1"), list(range(vSS, vSS + 4)), True)
        a.q = saved
        a(f"{skip}:\ns_barrier")
        self.stamp(2)
        a(f"s_lshl_b32 s{sOFF}, s{sB}, 15\ns_add_u32 s{sOFF}, s{sOFF}, {WS_QA}\ns_add_u32 s3, s{sA}, {QB}")
        for j in range(8):
            a(f"s_add_u32 m0, s3, {4096 * j}")
            a.vm(f"buffer_load_dwordx4 v{vDM + j % 4}, {sr(RWS)}, s{sOFF} offen sc1 lds", "q")
            if j < 7: a(f"s_add_u32 s{sOFF}, s{sOFF}, 0x1000")
        a(f"""
        s_and_b32 s3, s{sI}, 1
        s_lshl_b32 s3, s3, 2
        s_add_u32 s3, s3, s{sW}
        s_lshl_b32 s{sOFF}, s3, 19
        s_lshl_b32 s3, s{sH}, 8
        s_add_u32 s{sOFF}, s{sOFF}, s3
        v_lshlrev_b32 v4, 17, v{vG}
        v_lshl_add_u32 v4, v{vN}, 4, v4
        """)
        a(f"""
        v_mov_b32 v{vH1}, v4
        v_lshlrev_b32 v4, 15, v{vG}
        v_lshl_add_u32 v4, v{vN}, 4, v4
        v_add_u32 v{vH1 + 1}, s{sC}, v4
        """)
        def uvload(j):
            a.vm(f"buffer_load_dwordx4 {vr(vUV + 4 * j)}, v{vH1}, {sr(R1)}, s{sOFF} offen nt", "uv")
            if j < 15: a(f"s_add_u32 s{sOFF}, s{sOFF}, 0x2000")
        bo = [0]
        def boload(n):
            for j in range(bo[0], min(32, bo[0] + n)):
                a(f"s_movk_i32 s{sOFF}, {j * 1024}")
                a.vm(f"buffer_load_dwordx4 {ar(128 + 4 * j)}, v{vH1 + 1}, {sr(R2)}, s{sOFF} offen nt", "bo")
                bo[0] = j + 1
        a.vmwait("q")
        a("s_barrier")
        self.stamp(3)

        for rnd in range(2):
            PF = 3 if rnd == 0 else 5
            def rd(s):
                if rnd == 0:
                    a(f"ds_read_b128 {ar(4 * s)}, v{vQQ + s % 8} offset:{256 * (s // 8)}")
                a(f"ds_read_b128 {vr(vFR + 4 * (s % 6))}, v{vQK + s % 8} offset:{256 * (s // 8)}")
            per = 2 if rnd == 0 else 1
            for s in range(PF): rd(s)
            for s in range(32):
                if s + PF < 32: rd(s + PF)
                left = min(PF, 31 - s)
                a(f"s_waitcnt lgkmcnt({left * per})")
                c = "0" if s == 0 else vr(vSS, 16)
                a(f"v_mfma_f32_32x32x16_bf16 {vr(vSS, 16)}, {vr(vFR + 4 * (s % 6))}, {ar(4 * s)}, {c}")
                if rnd == 0 and s % 2 == 0: uvload(s // 2)
                if rnd == 1 and s % 4 == 0: boload(1)
            if rnd == 0:
                a("s_barrier")
            a(f"""
            v_lshlrev_b32 v6, 4, v{vHD}
            v_add_u32 v6, {MXB + 512 * rnd}, v6
            s_lshl_b32 s3, s{sW}, 2
            v_add_u32 v7, s3, v6
            v_max3_f32 v4, v{vSS}, v{vSS + 1}, v{vSS + 2}
            """)
            for i in range(3, 15, 2):
                a(f"v_max3_f32 v4, v4, v{vSS + i}, v{vSS + i + 1}")
            a(f"""
            v_max_f32 v4, v4, v{vSS + 15}
            v_mov_b32 v5, v4
            v_permlane32_swap_b32 v4, v5
            v_max_f32 v4, v4, v5
            ds_write_b32 v7, v4
            s_waitcnt lgkmcnt(0)
            s_barrier
            ds_read_b128 {vr(vPK)}, v6
            s_lshl_b32 s3, s{sW}, 11
            s_add_u32 s3, s3, {PB}
            v_add_u32 v7, s3, v{vL16}
            s_waitcnt lgkmcnt(0)
            v_max3_f32 v4, v{vPK}, v{vPK + 1}, v{vPK + 2}
            v_max_f32 v4, v4, v{vPK + 3}
            v_mul_f32 v4, s{sCST}, v4
            """)
            if rnd == 0:
                a(f"v_mov_b32 v{vMX}, v4")
            else:
                a(f"v_max_f32 v4, v4, v{vMX}\nv_sub_f32 v8, v{vMX}, v4\nv_exp_f32 v8, v8\nv_mov_b32 v{vMX}, v4\nv_mul_f32 v{vLS}, v{vLS}, v8")
            for i in range(16):
                a(f"v_fma_f32 v{vSS + i}, v{vSS + i}, s{sCST}, -v4")
            for i in range(16):
                a(f"v_exp_f32 v{vSS + i}, v{vSS + i}")
            for i in range(8):
                a(f"v_cvt_pk_bf16_f32 v{vPK + i}, v{vSS + 2 * i}, v{vSS + 2 * i + 1}")
            a(f"ds_write_b128 v7, {vr(vPK)}\nds_write_b128 v7, {vr(vPK + 4)} offset:1024")
            for i in range(16):
                if rnd == 0 and i == 0: continue
                if rnd == 0 and i == 1: a(f"v_add_f32 v{vLS}, v{vSS}, v{vSS + 1}")
                else: a(f"v_add_f32 v{vLS}, v{vLS}, v{vSS + i}")
            a(f"v_add_u32 v7, {PB}, v{vL16}")
            a("s_waitcnt lgkmcnt(0)\ns_barrier")
            if rnd == 0: a.vmwait("c1")
            self.stamp(4 + 2 * rnd)
            def reads(ks):
                b = vSS + 20 * (ks % 2)
                L = [f"ds_read_b128 {vr(b)}, v7 offset:{1024 * ks}"]
                for T in range(4):
                    for z in range(2):
                        L.append(f"ds_read_b64_tr_b16 {vr(b + 4 + 4 * T + 2 * z, 2)}, v{vTR + 2 * T + z} offset:{16384 * (ks % 4)}")
                return L
            def bump(d):
                for i in range(8):
                    a(f"v_add_u32 v{vTR + i}, {d}, v{vTR + i}")
            for t in reads(0): a(t)
            if rnd == 1:
                for i in range(64):
                    a(f"v_mul_f32 v{vO + i}, v{vO + i}, v8")
            pend = 0
            for ks in range(8):
                a(f"s_waitcnt lgkmcnt({pend})")
                if ks == 3: bump("0x10000")
                nx = reads(ks + 1) if ks < 7 else []
                wr = []
                if rnd == 0:
                    for j in range(4 * ks, 4 * ks + 4):
                        wr.append(f"ds_write_b128 v{vW1 + j // 16}, {ar(128 + 4 * j)} offset:{4096 * (j % 16)}")
                seq = nx + wr
                pend = len(wr)
                b = vSS + 20 * (ks % 2)
                cut = [0, 3, 6, 9, len(seq)]
                for T in range(4):
                    c = "0" if (rnd == 0 and ks == 0) else vr(vO + 16 * T, 16)
                    a(f"v_mfma_f32_32x32x16_bf16 {vr(vO + 16 * T, 16)}, {vr(b + 4 + 4 * T)}, {vr(b)}, {c}")
                    for t in seq[cut[T]:cut[T + 1]]: a(t)
                    if T % 2 == 1 and (rnd == 1 or ks >= 2): boload(1)
            if rnd == 0:
                bump("0xffff0000")
                a("s_waitcnt lgkmcnt(0)\ns_barrier")
            else:
                assert bo[0] == 32
            self.stamp(5 + 2 * rnd)

        a(f"""
        v_mov_b32 v5, v{vLS}
        v_lshlrev_b32 v6, 4, v{vHD}
        v_add_u32 v6, {LSB}, v6
        v_permlane32_swap_b32 v5, v{vLS}
        s_lshl_b32 s3, s{sW}, 2
        v_add_f32 v5, v5, v{vLS}
        v_add_u32 v7, s3, v6
        ds_write_b32 v7, v5
        v_lshlrev_b32 v7, 10, v{vHD}
        v_lshl_add_u32 v7, v{vHL}, 3, v7
        v_add_u32 v7, s{sC}, v7
        """)
        for T in range(4):
            for rq in range(4):
                r = vO + 16 * T + 4 * rq
                a(f"""
                v_xor_b32 v8, {4 * T + rq}, v{vN}
                v_cvt_pk_bf16_f32 v{r}, v{r}, v{r + 1}
                v_cvt_pk_bf16_f32 v{r + 1}, v{r + 2}, v{r + 3}
                v_lshl_add_u32 v8, v8, 4, v7
                ds_write_b64 v8, {vr(r, 2)}
                """)
        a(f"""
        v_lshlrev_b32 v7, 10, v{vG}
        v_add_u32 v7, s{sC}, v7
        v_xor_b32 v4, v{vG}, v{vN}
        """)
        for jj in range(8):
            a(f"v_xor_b32 v8, {4 * (jj % 4)}, v4\nv_lshl_add_u32 v8, v8, 4, v7\nds_read_b128 {vr(vSS + 4 * jj)}, v8 offset:{4096 * jj}")
        a(f"""
        s_lshl_b32 s3, s{sW}, 14
        s_lshl_b32 s{sOFF}, s{sI}, 8
        s_add_u32 s{sOFF}, s{sOFF}, s3
        s_add_u32 s{sOFF}, s{sOFF}, {WS_PART}
        v_lshlrev_b32 v7, 16, v{vG}
        v_lshl_add_u32 v7, v{vN}, 4, v7
        """)
        for jj in range(8):
            a(f"s_waitcnt lgkmcnt({7 - jj})")
            a.vm(f"buffer_store_dwordx4 {vr(vSS + 4 * jj)}, v7, {sr(RWS)}, s{sOFF} offen sc1", "part")
            if jj < 7: a(f"s_add_u32 s{sOFF}, s{sOFF}, 0x40000")
        self.stamp(8)
        skip = a.label("nostat")
        a(f"""
        s_waitcnt vmcnt(0)
        s_barrier
        s_cmp_lg_u32 s{sW}, 0
        s_cbranch_scc1 {skip}
        ds_read_b128 {vr(vPK)}, v6
        v_mov_b32 v4, v{vMX}
        v_mov_b32 v7, s{sTAG}
        v_lshlrev_b32 v8, 10, v{vHD}
        s_lshl_b32 s3, s{sI}, 4
        s_add_u32 s3, s3, {WS_STATB}
        s_waitcnt lgkmcnt(0)
        v_mov_b32 v6, s{sTAG}
        v_add_f32 v5, v{vPK}, v{vPK + 1}
        v_add_f32 v5, v5, v{vPK + 2}
        v_add_f32 v5, v5, v{vPK + 3}
        s_mov_b32 exec_hi, 0
        buffer_store_dwordx4 v[4:7], v8, {sr(RWS)}, s3 offen sc1
        s_mov_b64 exec, -1
        s_nop 1
        {skip}:
        """)
        a.vmreset()
        self.stamp(9)
        a(f"""
        s_lshr_b32 s{sA}, s{sW}, 1
        s_lshl_b32 s3, s{sH}, 1
        s_add_u32 s3, s3, s{sA}
        s_lshl_b32 s3, s3, 9
        s_add_u32 s{sOF2}, s3, {WS_STATB}
        v_and_b32 v5, 7, v{vN}
        v_lshl_add_u32 v5, v5, 2, v{vG}
        v_lshlrev_b32 v5, 4, v5
        s_and_b32 s3, s{sW}, 1
        s_lshl_b32 s{sOFF}, s{sI}, 1
        s_add_u32 s{sOFF}, s{sOFF}, s3
        s_lshl_b32 s{sOFF}, s{sOFF}, 1
        s_add_u32 s{sOFF}, s{sOFF}, s{sA}
        s_lshl_b32 s{sOFF}, s{sOFF}, 13
        s_add_u32 s{sOFF}, s{sOFF}, {WS_PART}
        """)
        self.poll(lambda: a(f"buffer_load_dwordx4 {vr(vPK)}, v5, {sr(RWS)}, s{sOF2} offen sc1"), [vPK + 2, vPK + 3], True)
        self.stamp(10)
        for j in range(8):
            if j == 4: a(f"s_add_u32 s{sOFF}, s{sOFF}, 0x1000")
            a.vm(f"buffer_load_dwordx4 {vr(vSS + 4 * j)}, v{vL16}, {sr(RWS)}, s{sOFF} offen offset:{1024 * (j % 4)} sc1", f"p{j}")
        def allred(op, r, t):
            for k in (1, 2, 4):
                a(f"{op}_dpp v{r}, v{r}, v{r} row_ror:{k} {dm}:0xf")
            for sw in ("v_permlane16_swap_b32", "v_permlane32_swap_b32"):
                a(f"v_mov_b32 v{t}, v{r}\n{sw} v{t}, v{r}\n{op} v{r}, v{r}, v{t}")
        a(f"v_mov_b32 v4, v{vPK}")
        allred("v_max_f32", 4, 6)
        a(f"v_sub_f32 v4, v{vPK}, v4\nv_exp_f32 v4, v4\nv_mul_f32 v5, v4, v{vPK + 1}")
        allred("v_add_f32", 5, 6)
        a(f"""
        v_rcp_f32 v5, v5
        v_mul_f32 v4, v4, v5
        v_cvt_pk_bf16_f32 v{vPK}, v4, v4
        s_lshl_b32 s3, s{sW}, 8
        s_add_u32 s3, s3, {XC}
        v_and_b32 v6, 1, v{vG}
        v_lshlrev_b32 v6, 3, v6
        v_lshl_add_u32 v6, v{vN}, 4, v6
        v_add_u32 v7, s3, v6
        s_lshl_b32 s3, s{sW}, 7
        s_add_u32 s3, s3, {XC}
        v_lshrrev_b32 v5, 3, v{vN}
        v_lshlrev_b32 v4, 9, v5
        v_lshl_add_u32 v4, v{vG}, 5, v4
        v_add_u32 v4, s3, v4
        """)
        self.selgemv(0, 8, self.build_dpp(lambda j: (vPK, j)), lambda j: vr(vSS + 4 * j), vD, True, lambda j: a.vmwait(f"p{j}"))
        a(f"""
        v_cvt_pk_bf16_f32 v{vD}, v{vD}, v{vD + 1}
        v_cvt_pk_bf16_f32 v{vD + 1}, v{vD + 2}, v{vD + 3}
        ds_write_b64 v7, {vr(vD, 2)}
        s_waitcnt lgkmcnt(0)
        s_barrier
        ds_read_b128 {vr(vSS)}, v4
        ds_read_b128 {vr(vSS + 4)}, v4 offset:16
        """)
        skip = a.label("noepoch")
        a(f"""
        s_or_b32 s3, s{sI}, s{sW}
        s_cmp_lg_u32 s3, 0
        s_cbranch_scc1 {skip}
        v_mov_b32 v8, 0
        s_mov_b64 exec, 1
        buffer_store_dword v{vTAG}, v8, {sr(RWS)}, 0 offen sc1
        s_mov_b64 exec, -1
        {skip}:
        s_lshl_b32 s3, s{sW}, 10
        s_add_u32 s3, s3, {RED}
        v_add_u32 v7, s3, v{vL16}
        v_add_u32 v8, {RED}, v{vL16}
        s_lshl_b32 s3, s{sW}, 9
        s_add_u32 s3, s3, {XT}
        v_lshrrev_b32 v4, 1, v{vG}
        v_lshl_add_u32 v6, v4, 8, v6
        v_add_u32 v6, s3, v6
        v_lshlrev_b32 v5, 8, v5
        v_lshl_add_u32 v5, v{vG}, 6, v5
        v_add_u32 v5, s3, v5
        s_waitcnt lgkmcnt(0)
        """)
        self.stamp(11)
        self.selgemv(0, 16, self.build_perm(vSS), lambda j: vr(vUV + 4 * j), vD, True)
        a(f"ds_write_b128 v7, {vr(vD)}\ns_waitcnt lgkmcnt(0)\ns_barrier")
        for q in range(4):
            a(f"ds_read_b128 {vr(vSS + 4 * q)}, v8 offset:{1024 * q}")
        a("s_waitcnt lgkmcnt(0)")
        for i in range(4):
            a(f"v_add_f32 v{vSS + i}, v{vSS + i}, v{vSS + 4 + i}\nv_add_f32 v{vSS + 8 + i}, v{vSS + 8 + i}, v{vSS + 12 + i}")
        for i in range(4):
            a(f"v_add_f32 v{vSS + i}, v{vSS + i}, v{vSS + 8 + i}")
        a(f"""
        v_cvt_pk_bf16_f32 v{vSS}, v{vSS}, v{vSS + 1}
        v_cvt_pk_bf16_f32 v{vSS + 1}, v{vSS + 2}, v{vSS + 3}
        ds_write_b64 v6, {vr(vSS, 2)}
        s_waitcnt lgkmcnt(0)
        """)
        for q in range(4):
            a(f"ds_read_b128 {vr(vSS + 4 * q)}, v5 offset:{16 * q}")
        a(f"""
        s_lshl_b32 s3, s{sW}, 15
        s_lshl_b32 s{sOFF}, s{sI}, 7
        s_add_u32 s{sOFF}, s{sOFF}, s3
        s_add_u32 s{sOFF}, s{sOFF}, {WS_YB}
        v_bfe_u32 v7, v{vL}, 3, 2
        v_lshlrev_b32 v7, 13, v7
        v_lshl_add_u32 v7, v{vHL}, 17, v7
        v_and_b32 v8, 7, v{vL}
        v_lshl_add_u32 v7, v8, 4, v7
        s_waitcnt lgkmcnt(0)
        """)
        self.selgemv(0, 32, self.build_perm(vSS), lambda j: ar(128 + 4 * j), vD, True)
        self.tag4(vD)
        a(f"buffer_store_dwordx4 {vr(vD)}, v7, {sr(RWS)}, s{sOFF} offen sc1")
        self.stamp(12)

        redb, join = a.label("redb"), a.label("join")
        self.srd(R0, P_OUT, 4096)
        a(f"""
        s_lshr_b32 s{sB}, s{sH}, 4
        s_and_b32 s{sA}, s{sH}, 15
        s_lshr_b32 s3, s{sA}, 2
        s_lshl_b32 s{sC}, s3, 8
        s_bfe_u32 s3, s{sA}, 0x10001
        s_lshl_b32 s3, s3, 3
        s_add_u32 s{sC}, s{sC}, s3
        s_and_b32 s3, s{sA}, 1
        s_lshl_b32 s3, s3, 7
        s_add_u32 s{sC}, s{sC}, s3
        s_lshl_b32 s3, s{sB}, 11
        s_add_u32 s{sC}, s{sC}, s3
        v_lshlrev_b32 v{vW1}, 1, v{vG}
        v_lshl_add_u32 v{vW1}, v8, 4, v{vW1}
        s_lshl_b32 s3, s{sW}, 8
        s_add_u32 s3, s3, {FIN}
        v_lshlrev_b32 v{vQK + 1}, 2, v{vL}
        v_add_u32 v{vQK}, s3, v{vQK + 1}
        v_add_u32 v{vQK + 1}, {FIN}, v{vQK + 1}
        s_bitcmp1_b32 s{sI}, 0
        s_cbranch_scc1 {redb}
        s_mul_i32 s3, s{sB}, 1536
        s_lshl_b32 s{sOF2}, s{sW}, 7
        s_add_u32 s{sOF2}, s{sOF2}, s3
        s_add_u32 s{sOF2}, s{sOF2}, {WS_STATA}
        v_lshrrev_b32 v5, 3, v{vL}
        v_lshlrev_b32 v5, 4, v5
        """)
        def st():
            for t in range(3):
                a(f"buffer_load_dwordx4 {vr(vSS + 4 * t)}, v5, {sr(RWS)}, s{sOF2} offen offset:{512 * t} sc1")
        self.poll(st, [vSS + 2, vSS + 3, vSS + 6, vSS + 7, vSS + 10, vSS + 11], True)
        a(f"""
        v_max3_f32 v4, v{vSS}, v{vSS + 4}, v{vSS + 8}
        v_sub_f32 v{vPK}, v{vSS}, v4
        v_sub_f32 v{vPK + 1}, v{vSS + 4}, v4
        v_sub_f32 v{vPK + 2}, v{vSS + 8}, v4
        v_exp_f32 v{vPK}, v{vPK}
        v_exp_f32 v{vPK + 1}, v{vPK + 1}
        v_exp_f32 v{vPK + 2}, v{vPK + 2}
        v_mul_f32 v4, v{vPK}, v{vSS + 1}
        v_fmac_f32 v4, v{vPK + 1}, v{vSS + 5}
        v_fmac_f32 v4, v{vPK + 2}, v{vSS + 9}
        v_rcp_f32 v4, v4
        v_mul_f32 v{vPK}, v{vPK}, v4
        v_mul_f32 v{vPK + 1}, v{vPK + 1}, v4
        v_mul_f32 v{vPK + 2}, v{vPK + 2}, v4
        s_mul_i32 s{sOF2}, s{sH}, 12288
        s_lshl_b32 s3, s{sW}, 10
        s_add_u32 s{sOF2}, s{sOF2}, s3
        s_add_u32 s{sOF2}, s{sOF2}, {WS_YA}
        s_add_u32 s{sOFF}, s{sOF2}, 0x1000
        s_add_u32 s{sA}, s{sOF2}, 0x2000
        """)
        def ya():
            for t, s in enumerate((sOF2, sOFF, sA)):
                a(f"buffer_load_dwordx4 {vr(vSS + 4 * t)}, v{vL16}, {sr(RWS)}, s{s} offen sc1")
        self.poll(ya, list(range(vSS, vSS + 12)), False)
        for i in range(12):
            a(f"v_and_b32 v{vSS + i}, s{sHIGH}, v{vSS + i}")
        for i in range(4):
            a(f"v_mul_f32 v{vD + i}, v{vPK}, v{vSS + i}")
        for t in (1, 2):
            for i in range(4):
                a(f"v_fmac_f32 v{vD + i}, v{vPK + t}, v{vSS + 4 * t + i}")
        a(f"""
        s_branch {join}
        {redb}:
        s_add_u32 s{sC}, s{sC}, 1024
        s_lshl_b32 s{sOF2}, s{sH}, 13
        s_lshl_b32 s3, s{sW}, 11
        s_add_u32 s{sOF2}, s{sOF2}, s3
        s_add_u32 s{sOF2}, s{sOF2}, {WS_YB}
        """)
        def yb():
            for t in range(2):
                a(f"buffer_load_dwordx4 {vr(vSS + 4 * t)}, v{vL16}, {sr(RWS)}, s{sOF2} offen offset:{1024 * t} sc1")
        self.poll(yb, list(range(vSS, vSS + 8)), False)
        for i in range(8):
            a(f"v_and_b32 v{vSS + i}, s{sHIGH}, v{vSS + i}")
        for i in range(4):
            a(f"v_add_f32 v{vD + i}, v{vSS + i}, v{vSS + 4 + i}")
        a(f"{join}:\ns_nop 1")
        self.stamp(13)
        for i in range(4):
            a(f"v_add_f32_dpp v{vD + i}, v{vD + i}, v{vD + i} row_ror:8 {dm}:0xf")
        done = a.label("done")
        a(f"""
        v_permlane16_swap_b32 v{vD}, v{vD + 1}
        v_permlane16_swap_b32 v{vD + 2}, v{vD + 3}
        v_add_f32 v{vD}, v{vD}, v{vD + 1}
        v_add_f32 v{vD + 2}, v{vD + 2}, v{vD + 3}
        v_permlane32_swap_b32 v{vD}, v{vD + 2}
        v_add_f32 v{vD}, v{vD}, v{vD + 2}
        ds_write_b32 v{vQK}, v{vD}
        s_waitcnt lgkmcnt(0)
        s_barrier
        s_cmp_lg_u32 s{sW}, 0
        s_cbranch_scc1 {done}
        """)
        for q in range(4):
            a(f"ds_read_b32 v{vD + q}, v{vQK + 1} offset:{256 * q}")
        a(f"""
        s_mov_b32 exec_lo, 0x00ff00ff
        s_mov_b32 exec_hi, 0x00ff00ff
        s_waitcnt lgkmcnt(0)
        v_add_f32 v{vD}, v{vD}, v{vD + 1}
        v_add_f32 v{vD + 2}, v{vD + 2}, v{vD + 3}
        v_add_f32 v{vD}, v{vD}, v{vD + 2}
        v_cvt_pk_bf16_f32 v{vD}, v{vD}, v{vD}
        buffer_store_short v{vD}, v{vW1}, {sr(R0)}, s{sC} offen
        {done}:
        """)
        self.finish()

    def build(self, header):
        a = self.a
        a(f"""
        s_load_dwordx16 s[8:23], s[0:1], 0
        s_load_dwordx8 s[24:31], s[0:1], 64
        s_load_dwordx4 s[32:35], s[0:1], 96
        s_cmp_ge_u32 s2, 256
        s_cbranch_scc1 L_exit
        """)
        if self.o.get("hold"):
            a(f"s_memrealtime s[{sSTAMP}:{sSTAMP + 1}]")
        if self.o["stamps"]:
            for i in range(1, 15):
                a(f"s_mov_b32 s{sSTAMP + 2 * i}, 0")
            a(f"s_memrealtime s[{sSTAMP}:{sSTAMP + 1}]")
        if self.o["pf"]:
            a(f"""
            s_getpc_b64 s[{R0}:{R0 + 1}]
            L_pc:
            s_lshr_b32 s3, s2, 3
            s_lshl_b32 s3, s3, 4
            v_add_u32 v4, s3, v0
            v_lshlrev_b32 v4, 7, v4
            v_mov_b32 v7, s{R0 + 1}
            v_add_co_u32 v6, vcc, s{R0}, v4
            v_addc_co_u32 v7, vcc, 0, v7, vcc
            v_cmp_gt_u32 vcc, 16, v0
            s_mov_b32 s3, L_code_end - L_pc
            v_cmp_gt_u32 s[{R1}:{R1 + 1}], s3, v4
            s_and_b64 vcc, vcc, s[{R1}:{R1 + 1}]
            s_and_saveexec_b64 s[{sEX}:{sEX + 1}], vcc
            s_cbranch_execz L_nopf
            global_load_dword v71, v[6:7], off
            L_nopf:
            s_mov_b64 exec, s[{sEX}:{sEX + 1}]
            """)
        a(f"""
        v_lshrrev_b32 v4, 6, v0
        v_and_b32 v{vL}, 63, v0
        v_readfirstlane_b32 s{sW}, v4
        v_and_b32 v{vN}, 15, v0
        v_bfe_u32 v{vG}, v0, 4, 2
        s_and_b32 s{sA}, s2, 7
        s_lshr_b32 s{sC}, s2, 3
        s_lshl_b32 s{sI}, s{sA}, 3
        s_add_u32 s{sI}, s{sI}, s{sC}
        s_sub_u32 s{sI}, s{sI}, 24
        s_cmp_ge_u32 s{sC}, 24
        s_cbranch_scc1 L_role_b
        s_mul_i32 s3, s{sC}, 43
        s_lshr_b32 s3, s3, 8
        s_lshl_b32 s{sH}, s{sA}, 2
        s_add_u32 s{sH}, s{sH}, s3
        s_mul_i32 s3, s3, 6
        s_sub_u32 s{sI}, s{sC}, s3
        s_and_b32 s{sB}, s{sI}, 1
        s_lshr_b32 s{sT3}, s{sI}, 1
        s_cmp_eq_u32 s{sT3}, 0
        s_cbranch_scc1 L_role_a2
        """)
        self.role_a(1)
        a("L_exit:\ns_endpgm\nL_role_a2:")
        self.role_a(2)
        a("L_role_b:")
        self.role_b()
        a("L_code_end:")
        body = a.text()
        return (header + f"""; @launch grid=(256,1,1) block=(256,1,1) lds=163840
.amdgcn_target "amdgcn-amd-amdhsa--gfx950"
.text
.globl {KERNEL}
.p2align 8
.type {KERNEL},@function
{KERNEL}:
""" + body + f""".section .rodata,"a"
.p2align 6
.amdhsa_kernel {KERNEL}
  .amdhsa_next_free_vgpr 512
  .amdhsa_next_free_sgpr 102
  .amdhsa_accum_offset 256
  .amdhsa_group_segment_fixed_size 0
  .amdhsa_kernarg_size 112
  .amdhsa_user_sgpr_count 2
  .amdhsa_user_sgpr_kernarg_segment_ptr 1
  .amdhsa_system_sgpr_workgroup_id_x 1
.end_amdhsa_kernel
""")


def header():
    ref = open(f"cdna_kernels/{NAME}.s.ref").read().split("\n")
    return "\n".join(l for l in ref if l.startswith(";") and "@launch" not in l) + "\n"


if __name__ == "__main__":
    out = sys.argv[1]
    kw = eval("dict(" + (sys.argv[2] if len(sys.argv) > 2 else "") + ")")
    open(out, "w").write(Gen(**kw).build(header()))
```

```python
import sys, math
from asmlib import Asm

NAME = "concat_heads__sliding_block_cached__compressed_kv_cla__decode"
KERNEL = NAME + "_kernel"

WS_FLAGB = 0x1000
WS_STATA = 0x2000
WS_QP = 0x10000
WS_QA = 0x50000
WS_STATB = 0x60000
WS_YA = 0x80000
WS_YB = 0x100000
WS_PART = 0x200000
WS_SIZE = 0x400000
WS_STAMP = 0x1000000

P_AX, P_K, P_V, P_WQ, P_WO, P_BX, P_CKV, P_BQ, P_UK, P_UV, P_BO, P_OUT, P_DBG, P_WS = [8 + 2 * i for i in range(14)]
R0, R1, R2, RWS, R4, R5 = 36, 40, 44, 48, 52, 4
sW, sH, sB, sT3, sTAG, sOFF, sA, sC, sSPIN, sLOW, sHIGH, sCST, sOF2, sI = range(56, 70)
sEX = 70
sSTAMP = 72
vL, vN, vG, vTAG = 1, 2, 3, 9
vM, vS, vA0, vD = 10, 14, 24, 32
vL16 = 22

LOG2E = math.log2(math.e)
SCALE = 128 ** -0.5
import struct
def fbits(x): return "0x%08x" % struct.unpack("<I", struct.pack("<f", x))[0]
def vr(b, n=4): return f"v[{b}:{b + n - 1}]"
def ar(b, n=4): return f"a[{b}:{b + n - 1}]"
def sr(b, n=4): return f"s[{b}:{b + n - 1}]"

DEF = dict(stamps=False, DI=8, D0=12, D1=8, D2=12, DB=16, spin=200000, mimicA=True, qpos=24, extra=4, pf=True, il=1, pre2=6)


class Gen:
    def __init__(self, **kw):
        self.o = dict(DEF); self.o.update(kw)
        self.a = Asm()

    def stamp(self, i):
        if self.o.get("holdat") and self.role in self.o["holdat"][0] and self.o["holdat"][1] == i:
            self.a("s_memrealtime s[72:73]")
        if self.o["stamps"]:
            self.a(f"s_memrealtime s[{sSTAMP + 2 * i}:{sSTAMP + 2 * i + 1}]\ns_waitcnt lgkmcnt(0)")

    def finish(self):
        a = self.a
        if self.o.get("holdat") and self.role in self.o["holdat"][0]:
            if self.o["holdat"][1] == 14: a("s_memrealtime s[72:73]")
            lp = a.label("hold")
            a(f"{lp}:\ns_memrealtime s[74:75]\ns_waitcnt lgkmcnt(0)\ns_sub_u32 s3, s74, s72\ns_cmp_lt_u32 s3, 3000\ns_cbranch_scc1 {lp}")
        if self.o.get("hold"):
            lp = a.label("hold")
            a(f"{lp}:\ns_memrealtime s[74:75]\ns_waitcnt lgkmcnt(0)\ns_sub_u32 s3, s74, s72\ns_cmp_lt_u32 s3, {self.o['hold'] * 100}\ns_cbranch_scc1 {lp}")
        if self.o["stamps"]:
            self.stamp(14)
            a(f"s_lshl_b32 s3, s2, 2\ns_add_u32 s3, s3, s{sW}\ns_lshl_b32 s3, s3, 6\ns_add_u32 s3, s3, {WS_STAMP}")
            a("s_mov_b64 exec, 1\nv_mov_b32 v4, s3")
            for i in range(15):
                a(f"v_mov_b32 v5, s{sSTAMP + 2 * i}\nglobal_store_dword v4, v5, s[{P_WS}:{P_WS + 1}] offset:{4 * i}")
            a(f"s_getreg_b32 s3, hwreg(HW_REG_XCC_ID)\nv_mov_b32 v5, s3\nglobal_store_dword v4, v5, s[{P_WS}:{P_WS + 1}] offset:60")
        a("s_endpgm")

    def srd(self, r, ptr, size, off_lo=None, off_hi=None):
        a = self.a
        if off_lo is None:
            a(f"s_mov_b32 s{r}, s{ptr}\ns_and_b32 s{r + 1}, s{ptr + 1}, 0xffff")
        else:
            a(f"s_add_u32 s{r}, s{ptr}, {off_lo}\ns_addc_u32 s{r + 1}, s{ptr + 1}, {off_hi or 0}\ns_and_b32 s{r + 1}, s{r + 1}, 0xffff")
        a(f"s_mov_b32 s{r + 2}, {size}\ns_mov_b32 s{r + 3}, 0x20000")

    def consts(self, cst):
        a = self.a
        self.srd(RWS, P_WS, WS_SIZE)
        a(f"""
        s_mov_b32 s{sSPIN}, {self.o['spin']}
        s_movk_i32 s{sLOW}, 0xfff
        s_mov_b32 s{sHIGH}, 0xfffff000
        s_mov_b32 s{sCST}, {fbits(cst)}
        v_lshlrev_b32 v{vL16}, 4, v{vL}
        """)

    def selectors(self, perm=True):
        a = self.a
        a(f"""
        v_and_b32 v4, 1, v{vN}
        v_bfe_u32 v5, v{vN}, 1, 2
        v_cmp_eq_u32 vcc, 1, v4
        v_mov_b32 v6, 0xffff
        v_mov_b32 v7, 0xffff0000
        v_cndmask_b32 v8, v6, v7, vcc
        """)
        if perm:
            a(f"""
            v_mov_b32 v6, 0x0c0c0100
            v_mov_b32 v7, 0x01000c0c
            v_cndmask_b32 v{vA0}, v6, v7, vcc
            v_mov_b32 v6, 0x0c0c0302
            v_mov_b32 v7, 0x03020c0c
            v_cndmask_b32 v{vA0 + 1}, v6, v7, vcc
            v_mov_b32 v6, 0x0c0c0c0c
            """)
        for jj in range(4):
            a(f"v_cmp_eq_u32 vcc, {jj}, v5\nv_cndmask_b32 v{vM + jj}, 0, v8, vcc")
            if perm:
                a(f"v_cndmask_b32 v{vS + 2 * jj}, v6, v{vA0}, vcc\nv_cndmask_b32 v{vS + 2 * jj + 1}, v6, v{vA0 + 1}, vcc")

    def get_tag(self):
        self.a(f"s_waitcnt lgkmcnt(0)\ns_add_u32 s{sTAG}, s{sTAG}, 1\nv_mov_b32 v{vTAG}, s{sTAG}")

    def build_perm(self, x):
        def f(j, A):
            for jj in range(4):
                self.a(f"v_perm_b32 v{A + jj}, v{x + j // 2}, v{x + j // 2}, v{vS + 2 * jj + j % 2}")
        return f

    def build_dpp(self, src):
        def f(j, A):
            reg, lane = src(j)
            for jj in range(4):
                self.a(f"v_and_b32_dpp v{A + jj}, v{reg}, v{vM + jj} row_newbcast:{lane} row_mask:0xf bank_mask:0xf")
        return f

    def selgemv(self, j0, j1, build, B, D, zero, before=None):
        a = self.a
        build(j0, vA0 + 4 * (j0 % 2))
        for j in range(j0, j1):
            if j + 1 < j1:
                build(j + 1, vA0 + 4 * ((j + 1) % 2))
            if before:
                before(j)
            c = "0" if (zero and j == j0) else vr(D)
            a(f"v_mfma_f32_16x16x32_bf16 {vr(D)}, {vr(vA0 + 4 * (j % 2))}, {B(j)}, {c}")

    def tag4(self, r):
        for i in range(4):
            self.a(f"v_add_u32 v{r + i}, 0x800, v{r + i}")
        for i in range(4):
            self.a(f"v_bfi_b32 v{r + i}, s{sLOW}, v{vTAG}, v{r + i}")

    def poll(self, issue, regs, full, tracked_tag=None):
        a = self.a
        chk, ok = a.label("chk"), a.label("ok")
        if tracked_tag is None:
            issue()
            a("s_waitcnt vmcnt(0)")
            a.vmreset()
        else:
            a.vmwait(tracked_tag)
        a(f"{chk}:")
        a(f"v_xor_b32 v4, s{sTAG}, v{regs[0]}")
        for r in regs[1:]:
            a(f"v_bitop3_b32 v4, v4, v{r}, s{sTAG} bitop3:0xf6")
        if not full:
            a(f"v_and_b32 v4, s{sLOW}, v4")
        a(f"v_cmp_ne_u32 vcc, 0, v4\ns_cbranch_vccz {ok}\ns_cmp_eq_u32 s{sSPIN}, 0\ns_cbranch_scc1 {ok}\ns_sub_u32 s{sSPIN}, s{sSPIN}, 1")
        issue()
        a(f"s_waitcnt vmcnt(0)\ns_branch {chk}\n{ok}:")

    def q_issue(self, mat, g0, track):
        a = self.a
        def issue(tr=False):
            for q in range(4):
                t = f"buffer_load_dwordx4 {vr(g0 + 4 * q)}, v{vL16}, {sr(RWS)}, s{sOF2} offen offset:{1024 * q} sc1"
                if tr: a.vm(t, track)
                else: a(t)
        a(f"s_lshl_b32 s{sOF2}, s{sH}, 12\ns_add_u32 s{sOF2}, s{sOF2}, {WS_QP + mat * 32 * 4096}")
        return issue

    def q_finish(self, g0, lds_base):
        a = self.a
        for i in range(16):
            a(f"v_and_b32 v{g0 + i}, s{sHIGH}, v{g0 + i}")
        for i in range(4):
            a(f"v_add_f32 v{g0 + i}, v{g0 + i}, v{g0 + 4 + i}\nv_add_f32 v{g0 + 8 + i}, v{g0 + 8 + i}, v{g0 + 12 + i}")
        for i in range(4):
            a(f"v_add_f32 v{g0 + i}, v{g0 + i}, v{g0 + 8 + i}")
        a(f"""
        v_cvt_pk_bf16_f32 v{g0}, v{g0}, v{g0 + 1}
        v_cvt_pk_bf16_f32 v{g0 + 1}, v{g0 + 2}, v{g0 + 3}
        s_lshl_b32 s3, s{sW}, 9
        s_add_u32 s3, s3, {lds_base}
        v_lshrrev_b32 v4, 1, v{vG}
        v_and_b32 v6, 1, v{vG}
        v_lshlrev_b32 v4, 8, v4
        v_lshl_add_u32 v4, v6, 3, v4
        v_lshl_add_u32 v4, v{vN}, 4, v4
        v_add_u32 v4, s3, v4
        ds_write_b64 v4, {vr(g0, 2)}
        """)

    def role_a(self, typ):
        a, o = self.a, self.o
        a.vmreset()
        NL = 44 if typ == 1 else 40
        NG = NL // 4
        vQ, vP, vSC, vGA, vK, vX0, vX1 = 36, 40, 44, 56, 72, 248, 252
        vO1, vO2 = 23, 55
        RED0, RED1, QT, QT2, QO, MX, LS, OP, UKB = 0, 4096, 8192, 10240, 12288, 13312, 13440, 14336, 16384
        a("s_waitcnt lgkmcnt(0)")
        a(f"s_load_dword s{sTAG}, s[{P_WS}:{P_WS + 1}], 0")
        if typ == 1:
            self.srd(R0, P_BQ, 1 << 22)
            self.srd(R1, P_WQ, 1 << 22)
            a(f"""
            s_sub_u32 s{sI}, s{sI}, 2
            s_lshl_b32 s3, s{sI}, 2
            s_add_u32 s3, s3, s{sW}
            s_lshl_b32 s{sOFF}, s3, 18
            s_lshl_b32 s{sA}, s{sH}, 8
            s_add_u32 s{sOFF}, s{sOFF}, s{sA}
            s_lshl_b32 s3, s3, 6
            v_lshrrev_b32 v4, 3, v{vN}
            v_lshlrev_b32 v4, 10, v4
            v_lshl_add_u32 v4, v{vG}, 4, v4
            v_add_u32 v4, s3, v4
            v_lshlrev_b32 v5, 16, v{vG}
            v_lshl_add_u32 v5, v{vN}, 4, v5
            s_mov_b32 s{sOF2}, s{sOFF}
            """)
            a.vm(f"global_load_dwordx4 {vr(vX0)}, v4, s[{P_BX}:{P_BX + 1}]", "w0")
            for j in range(8):
                a.vm(f"buffer_load_dwordx4 {ar(128 + 4 * j)}, v5, {sr(R0)}, s{sOFF} offen nt", "w0")
                if j < 7: a(f"s_add_u32 s{sOFF}, s{sOFF}, 0x2000")
            a.vm(f"global_load_dwordx4 {vr(vX1)}, v4, s[{P_AX}:{P_AX + 1}]", "w1")
            a(f"v_mov_b32 v{vQ}, v5")
            def second():
                for j in range(8):
                    a.vmlimit(o["DI"])
                    a.vm(f"buffer_load_dwordx4 {ar(160 + 4 * j)}, v{vQ}, {sr(R1)}, s{sOF2} offen nt", "w1")
                    if j < 7: a(f"s_add_u32 s{sOF2}, s{sOF2}, 0x2000")
        else:
            self.srd(R0, P_UK, 1 << 22)
            a(f"""
            s_lshl_b32 s3, s{sB}, 2
            s_add_u32 s3, s3, s{sW}
            s_lshl_b32 s{sOFF}, s3, 19
            s_lshl_b32 s{sA}, s{sH}, 8
            s_add_u32 s{sOFF}, s{sOFF}, s{sA}
            v_xor_b32 v4, v{vG}, v{vN}
            v_lshlrev_b32 v5, 13, v{vG}
            s_lshl_b32 s{sC}, s{sW}, 14
            s_add_u32 s{sC}, s{sC}, {UKB}
            """)
            for j in range(4):
                a(f"v_xor_b32 v6, {4 * j}, v4\nv_lshl_add_u32 v{vQ + j}, v6, 4, v5")
            def ukload(j):
                a(f"s_add_u32 m0, s{sC}, {1024 * j}")
                a.vm(f"buffer_load_dwordx4 v{vQ + j % 4}, {sr(R0)}, s{sOFF} offen nt lds", "w0")
                if j < 15: a(f"s_add_u32 s{sOFF}, s{sOFF}, 0x8000")
            for j in range(8): ukload(j)
            def second():
                for j in range(8, 16):
                    a.vmlimit(o["DI"])
                    ukload(j)
        self.stamp(1)
        a(f"s_lshl_b32 s3, s{sH}, 17")
        self.srd(R2, P_WO, 1 << 17, "s3")
        a(f"""
        s_lshl_b32 s3, s{sB}, 5
        s_add_u32 s3, s3, s{sH}
        s_lshl_b32 s3, s3, 21
        """)
        if typ == 1:
            a(f"s_mul_i32 s{sA}, s{sT3}, {704 * 256}\ns_add_u32 s3, s3, s{sA}\ns_add_u32 s3, s3, {(6144 - 64) * 256}")
        else:
            a(f"s_add_u32 s3, s3, {6144 * 256}")
        self.srd(R4, P_K, NL * 4096, "s3")
        self.srd(R5, P_V, NL * 4096, "s3")
        self.consts(LOG2E if o["mimicA"] else LOG2E * SCALE)
        a(f"""
        s_lshl_b32 s3, s{sW}, 8
        v_lshlrev_b32 v{vO1}, 15, v{vG}
        v_lshl_add_u32 v{vO1}, v{vN}, 4, v{vO1}
        v_add_u32 v{vO1}, s3, v{vO1}
        s_lshl_b32 s3, s{sW}, 10
        v_add_u32 v{vO2}, s3, v{vL16}
        """)
        self.selectors(perm=(typ == 1))
        self.get_tag()
        second()

        stream = []
        def ld_wo(j):
            def f():
                a(f"s_movk_i32 s{sOFF}, {j * 1024}")
                a.vm(f"buffer_load_dwordx4 {ar(4 * j)}, v{vO1}, {sr(R2)}, s{sOFF} offen nt", "wo")
            return f
        def vreg(j):
            return ar(128 + 4 * j) if j < 32 else vr(vK + 4 * (j - 32))
        def ld_kv(which, j):
            def f():
                a(f"s_mov_b32 s{sOFF}, {j * 4096}")
                if which == "K":
                    a.vm(f"buffer_load_dwordx4 {vr(vK + 4 * j)}, v{vO2}, {sr(R4)}, s{sOFF} offen nt", f"K{j}")
                else:
                    a.vm(f"buffer_load_dwordx4 {vreg(j)}, v{vO2}, {sr(R5)}, s{sOFF} offen nt", f"V{j}")
            return f
        order, wj = [], 0
        for item in [("K", j) for j in range(NL)] + [("V", j) for j in range(NL)]:
            while wj < 32 and (o["il"] == 0 or wj * o["il"] <= len(order) - wj):
                order.append(("W", wj)); wj += 1
            order.append(item)
        stream = [ld_wo(j) if k == "W" else ld_kv(k, j) for k, j in order]
        at = {it: i for i, it in enumerate(order)}
        pos = [0]
        def pump(upto, depth):
            while pos[0] < min(upto, len(stream)):
                a.vmlimit(depth - 1)
                stream[pos[0]]()
                pos[0] += 1

        if typ == 1:
            for mat, tag, x, base, red, pw in ((1, "w0", vX0, 128, RED0, 0), (0, "w1", vX1, 160, RED1, 1)):
                a.vmwait(tag)
                if mat == 1: self.stamp(2)
                self.selgemv(0, 8, self.build_perm(x), lambda j: ar(base + 4 * j), vD, True)
                a(f"ds_write_b128 v{vO2}, {vr(vD)} offset:{red}")
                a("s_waitcnt lgkmcnt(0)\ns_barrier")
                skip = a.label("nopub")
                a(f"s_cmp_lg_u32 s{sW}, {pw}\ns_cbranch_scc1 {skip}")
                for q in range(4):
                    a(f"ds_read_b128 {vr(vGA + 4 * q)}, v{vL16} offset:{red + 1024 * q}")
                a(f"""
                s_lshl_b32 s3, s{sH}, 2
                s_add_u32 s3, s3, s{sI}
                s_lshl_b32 s3, s3, 10
                s_add_u32 s3, s3, {WS_QP + mat * 32 * 4096}
                s_waitcnt lgkmcnt(0)
                """)
                for i in range(4):
                    a(f"v_add_f32 v{vGA + i}, v{vGA + i}, v{vGA + 4 + i}\nv_add_f32 v{vGA + 8 + i}, v{vGA + 8 + i}, v{vGA + 12 + i}")
                for i in range(4):
                    a(f"v_add_f32 v{vGA + i}, v{vGA + i}, v{vGA + 8 + i}")
                self.tag4(vGA)
                a(f"buffer_store_dwordx4 {vr(vGA)}, v{vL16}, {sr(RWS)}, s3 offen sc1")
                a(f"s_nop 1\n{skip}:")
                if mat == 1:
                    self.stamp(3)
                    pump(o["pre2"], 32)
            self.stamp(4)
        else:
            pump(o["pre2"], o["DI"] + 1)
            a.vmwait("w0")
            a(f"""
            v_xor_b32 v4, v{vG}, v{vN}
            v_lshl_add_u32 v5, v{vN}, 8, s{sC}
            """)
            for s in range(4):
                a(f"v_xor_b32 v6, {4 * s}, v4\nv_lshl_add_u32 v6, v6, 4, v5")
                for u in range(4):
                    a(f"ds_read_b128 {ar(128 + 16 * u + 4 * s)}, v6 offset:{4096 * u}")
            issue = self.q_issue(1, vGA, None)
            self.poll(issue, list(range(vGA, vGA + 16)), False)
            self.stamp(2)
            pump(pos[0] + o["pre2"], 32)
            self.q_finish(vGA, QT2)
            a(f"""
            v_and_b32 v4, 1, v{vN}
            v_lshlrev_b32 v4, 8, v4
            v_lshl_add_u32 v4, v{vG}, 4, v4
            v_add_u32 v4, s3, v4
            s_waitcnt lgkmcnt(0)
            """)
            for s in range(4):
                a(f"ds_read_b128 {vr(vGA + 4 * s)}, v4 offset:{64 * s}")
            a("s_waitcnt lgkmcnt(0)")
            DU = 232
            for u in range(4):
                for s in range(4):
                    c = "0" if s == 0 else vr(DU + 4 * u)
                    a(f"v_mfma_f32_16x16x32_bf16 {vr(DU + 4 * u)}, {ar(128 + 16 * u + 4 * s)}, {vr(vGA + 4 * s)}, {c}")
            a(f"""
            s_lshl_b32 s3, s{sW}, 7
            v_and_b32 v4, 1, v{vN}
            v_lshlrev_b32 v4, 9, v4
            v_lshl_add_u32 v4, v{vG}, 3, v4
            v_add_u32 v4, s3, v4
            """)
            for u in range(4):
                a(f"v_cvt_pk_bf16_f32 v{DU + 4 * u}, v{DU + 4 * u}, v{DU + 4 * u + 1}")
                a(f"v_cvt_pk_bf16_f32 v{DU + 4 * u + 1}, v{DU + 4 * u + 2}, v{DU + 4 * u + 3}")
                a(f"ds_write_b64 v4, {vr(DU + 4 * u, 2)} offset:{QO + 32 * u}")
            a("s_waitcnt lgkmcnt(0)\ns_barrier")
            skip = a.label("nopub")
            a(f"""
            s_cmp_lg_u32 s{sW}, 0
            s_cbranch_scc1 {skip}
            ds_read_b128 {vr(vGA)}, v{vL16} offset:{QO}
            v_lshrrev_b32 v4, 5, v{vL}
            v_and_b32 v5, 31, v{vL}
            v_lshlrev_b32 v4, 15, v4
            v_lshl_add_u32 v4, v5, 4, v4
            s_lshl_b32 s3, s{sH}, 1
            s_add_u32 s{sA}, s3, s{sB}
            s_lshl_b32 s3, s{sA}, 9
            s_add_u32 s3, s3, {WS_QA}
            s_waitcnt lgkmcnt(0)
            buffer_store_dwordx4 {vr(vGA)}, v4, {sr(RWS)}, s3 offen sc1
            s_lshl_b32 s3, s{sA}, 4
            s_add_u32 s3, s3, {WS_FLAGB}
            v_mov_b32 v4, s{sTAG}
            v_mov_b32 v5, s{sTAG}
            v_mov_b32 v6, s{sTAG}
            v_mov_b32 v7, s{sTAG}
            v_mov_b32 v8, 0
            s_mov_b64 exec, 1
            s_waitcnt vmcnt(0)
            buffer_store_dwordx4 v[4:7], v8, {sr(RWS)}, s3 offen sc1
            s_mov_b64 exec, -1
            s_nop 1
            {skip}:
            """)
            self.stamp(3)

        pump(o["qpos"], o["D0"])
        issue = self.q_issue(0, vGA, "q")
        issue(True)
        pump(pos[0] + o["D0"] - 4, o["D0"] + 4)
        self.poll(issue, list(range(vGA, vGA + 16)), False, "q")
        self.stamp(5)
        self.q_finish(vGA, QT)
        a(f"""
        s_lshl_b32 s{sA}, s{sB}, 8
        s_add_u32 s3, s3, s{sA}
        v_lshl_add_u32 v4, v{vN}, 4, s3
        s_waitcnt lgkmcnt(0)
        ds_read_b128 {vr(vQ)}, v4
        s_waitcnt lgkmcnt(0)
        """)
        dm = "row_mask:0xf bank_mask"
        for G in range(NG):
            p = at[("K", 4 * G + 3)]
            pump(p + 1 + (o["D0"] if p < at[("W", 31)] else o["D1"]), 63)
            a.vmwait(f"K{4 * G + 3}")
            for e in range(4):
                for jj in range(4):
                    k = vK + 4 * (4 * G + jj) + e
                    if e == 0: a(f"v_dot2_f32_bf16 v{vP + jj}, v{k}, v{vQ}, 0")
                    else: a(f"v_dot2c_f32_bf16 v{vP + jj}, v{k}, v{vQ + e}")
            S = vSC + G
            a(f"""
            v_add_f32_dpp v{vP}, v{vP}, v{vP} row_ror:8 {dm}:0x3
            v_add_f32_dpp v{vP + 1}, v{vP + 1}, v{vP + 1} row_ror:8 {dm}:0x3
            v_add_f32_dpp v{vP}, v{vP + 2}, v{vP + 2} row_ror:8 {dm}:0xc
            v_add_f32_dpp v{vP + 1}, v{vP + 3}, v{vP + 3} row_ror:8 {dm}:0xc
            v_add_f32_dpp v{S}, v{vP}, v{vP} row_shl:4 {dm}:0x5
            v_add_f32_dpp v{S}, v{vP + 1}, v{vP + 1} row_shr:4 {dm}:0xa
            v_add_f32_dpp v{S}, v{S}, v{S} quad_perm:[1,0,3,2] {dm}:0xf
            v_add_f32_dpp v{S}, v{S}, v{S} quad_perm:[2,3,0,1] {dm}:0xf
            """)
            if o["mimicA"]:
                a(f"""
                v_cvt_pk_bf16_f32 v{S}, v{S}, v{S}
                v_and_b32 v{S}, 0xffff0000, v{S}
                v_mul_f32 v{S}, {fbits(SCALE)}, v{S}
                v_cvt_pk_bf16_f32 v{S}, v{S}, v{S}
                v_and_b32 v{S}, 0xffff0000, v{S}
                """)
            a(f"v_mov_b32 v8, v{S}" if G == 0 else f"v_max_f32 v8, v8, v{S}")
        self.stamp(6)
        pump(at[("V", 0)] + o["D2"] + o["extra"], 63)
        a(f"""
        v_max_f32_dpp v8, v8, v8 row_ror:4 {dm}:0xf
        v_max_f32_dpp v8, v8, v8 row_ror:8 {dm}:0xf
        s_lshl_b32 s3, s{sW}, 4
        v_lshl_add_u32 v7, v{vG}, 2, s3
        v_mov_b32 v6, 0
        ds_write_b32 v7, v8 offset:{MX}
        s_waitcnt lgkmcnt(0)
        s_barrier
        """)
        for q in range(4):
            a(f"ds_read_b128 {vr(vGA + 4 * q)}, v6 offset:{MX + 16 * q}")
        a("s_waitcnt lgkmcnt(0)")
        a(f"v_max3_f32 v8, v{vGA}, v{vGA + 1}, v{vGA + 2}")
        for i in range(3, 15, 2):
            a(f"v_max3_f32 v8, v8, v{vGA + i}, v{vGA + i + 1}")
        a(f"v_max_f32 v8, v8, v{vGA + 15}\nv_mul_f32 v8, s{sCST}, v8")
        for G in range(NG):
            a(f"v_fma_f32 v{vSC + G}, v{vSC + G}, s{sCST}, -v8")
        for G in range(NG):
            a(f"v_exp_f32 v{vSC + G}, v{vSC + G}")
        a(f"v_add_f32 v5, v{vSC}, v{vSC + 1}")
        for G in range(2, NG):
            a(f"v_add_f32 v5, v5, v{vSC + G}")
        for G in range(NG):
            a(f"v_cvt_pk_bf16_f32 v{vSC + G}, v{vSC + G}, v{vSC + G}")
        skip = a.label("nostat")
        a(f"""
        v_add_f32_dpp v5, v5, v5 row_ror:4 {dm}:0xf
        v_add_f32_dpp v5, v5, v5 row_ror:8 {dm}:0xf
        ds_write_b32 v7, v5 offset:{LS}
        s_waitcnt lgkmcnt(0)
        s_barrier
        s_cmp_lg_u32 s{sW}, 0
        s_cbranch_scc1 {skip}
        """)
        for q in range(4):
            a(f"ds_read_b128 {vr(vGA + 4 * q)}, v6 offset:{LS + 16 * q}")
        a(f"""
        s_mul_i32 s3, s{sB}, 3
        s_add_u32 s3, s3, s{sT3}
        s_lshl_b32 s3, s3, 5
        s_add_u32 s3, s3, s{sH}
        s_lshl_b32 s3, s3, 4
        s_add_u32 s3, s3, {WS_STATA}
        s_waitcnt lgkmcnt(0)
        v_add_f32 v5, v{vGA}, v{vGA + 1}
        """)
        for i in range(2, 16):
            a(f"v_add_f32 v5, v5, v{vGA + i}")
        a(f"""
        v_mov_b32 v4, v8
        v_mov_b32 v7, s{sTAG}
        v_mov_b32 v8, 0
        v_mov_b32 v6, s{sTAG}
        s_mov_b64 exec, 1
        buffer_store_dwordx4 v[4:7], v8, {sr(RWS)}, s3 offen sc1
        s_mov_b64 exec, -1
        s_nop 1
        {skip}:
        """)
        self.stamp(7)
        def before(j):
            if j % 4 == 0:
                pump(at[("V", j + 3)] + 1 + o["D2"], 63)
            if j >= NL - 4: a.vmwait(f"V{j}")
            elif j % 4 == 0: a.vmwait(f"V{j + 3}")
        a(f"""
        v_and_b32 v4, 1, v{vG}
        v_lshlrev_b32 v5, 5, v{vN}
        v_lshl_add_u32 v5, v4, 4, v5
        s_lshl_b32 s3, s{sW}, 9
        v_add_u32 v5, s3, v5
        v_lshlrev_b32 v6, 3, v{vL}
        s_lshl_b32 s3, s{sB}, 2
        s_add_u32 s3, s3, s{sW}
        s_mul_i32 s3, s3, {4 * 12288}
        s_lshl_b32 s{sA}, s{sT3}, 5
        s_add_u32 s{sA}, s{sA}, s{sH}
        s_lshl_b32 s{sA}, s{sA}, 7
        s_add_u32 s3, s3, s{sA}
        s_add_u32 s{sOF2}, s3, {WS_YA}
        v_lshrrev_b32 v7, 3, v{vL}
        v_mul_u32_u24 v7, 12288, v7
        v_and_b32 v8, 7, v{vL}
        v_lshl_add_u32 v7, v8, 4, v7
        """)
        self.selgemv(0, NL, self.build_dpp(lambda j: (vSC + j // 4, 4 * (j % 4))), vreg, vD, True, before)
        self.stamp(8)
        a(f"ds_write_b128 v5, {vr(vD)} offset:{OP}\ns_waitcnt lgkmcnt(0)\ns_barrier")
        for q in range(4):
            a(f"ds_read_b64 {vr(vGA + 2 * q, 2)}, v6 offset:{OP + 512 * q}")
        a(f"""
        s_waitcnt lgkmcnt(0)
        v_add_f32 v{vGA}, v{vGA}, v{vGA + 2}
        v_add_f32 v{vGA + 1}, v{vGA + 1}, v{vGA + 3}
        v_add_f32 v{vGA + 4}, v{vGA + 4}, v{vGA + 6}
        v_add_f32 v{vGA + 5}, v{vGA + 5}, v{vGA + 7}
        v_add_f32 v{vGA}, v{vGA}, v{vGA + 4}
        v_add_f32 v{vGA + 1}, v{vGA + 1}, v{vGA + 5}
        v_cvt_pk_bf16_f32 v{vGA}, v{vGA}, v{vGA}
        v_cvt_pk_bf16_f32 v{vGA + 1}, v{vGA + 1}, v{vGA + 1}
        """)
        self.selgemv(0, 32, self.build_dpp(lambda j: (vGA + j % 2, j // 2)), lambda j: ar(4 * j), vD, True)
        self.tag4(vD)
        a(f"s_mov_b32 exec_hi, 0\nbuffer_store_dwordx4 {vr(vD)}, v7, {sr(RWS)}, s{sOF2} offen sc1")
        self.finish()

    def role_b(self):
        a, o = self.a, self.o
        a.vmreset()
        vDM, vH1, vQK, vTR, vW1, vMX, vLS, vHL, vHD = 36, 40, 44, 52, 60, 63, 64, 65, 66
        vSS, vFR, vO, vUV, vQQ, vPK = 72, 88, 112, 176, 240, 248
        QB = 131072
        PB, MXB, LSB, XC, RED, XT, FIN = QB, QB + 8192, QB + 9216, QB + 10240, QB + 12288, QB + 16384, QB + 20480
        dm = "row_mask:0xf bank_mask"
        sS = sT3
        a(f"""
        s_lshl_b32 s3, s{sW}, 2
        s_lshl_b32 s{sA}, s{sW}, 10
        v_xor_b32 v4, s3, v{vL}
        s_lshl_b32 s{sC}, s{sW}, 8
        v_lshlrev_b32 v5, 2, v{vG}
        v_xor_b32 v5, v5, v{vN}
        v_lshlrev_b32 v6, 10, v{vG}
        v_add_u32 v6, s{sC}, v6
        """)
        for j in range(4):
            a(f"v_xor_b32 v7, {j}, v4\nv_lshl_add_u32 v{vDM + j}, v7, 4, s{sA}")
            a(f"v_xor_b32 v7, {j}, v5\nv_lshl_add_u32 v{vH1 + j}, v7, 4, v6")
        a(f"v_lshl_add_u32 v{vW1}, v{vN}, 4, v6")
        a("s_waitcnt lgkmcnt(0)")
        a(f"s_load_dword s{sTAG}, s[{P_WS}:{P_WS + 1}], 0")
        a(f"s_lshl_b32 s3, s{sI}, 18")
        self.srd(R0, P_CKV, 1 << 18, "s3")
        a(f"s_mov_b32 s{sOFF}, 0")
        for j in range(32):
            a.vmlimit(o["DB"] - 1)
            a(f"s_add_u32 m0, s{sOFF}, s{sA}")
            a.vm(f"buffer_load_dwordx4 v{vDM + j % 4}, {sr(R0)}, s{sOFF} offen nt lds", "c0")
            a(f"s_add_u32 s{sOFF}, s{sOFF}, 0x1000")
        self.stamp(1)
        for j in range(32):
            a.vmlimit(o["DB"] - 1)
            a.vm(f"buffer_load_dwordx4 {ar(128 + 4 * j)}, v{vH1 + j % 4}, {sr(R0)}, s{sOFF} offen nt", "c1")
            if j < 31: a(f"s_add_u32 s{sOFF}, s{sOFF}, 0x1000")
        self.consts(LOG2E * SCALE)
        self.selectors()
        a(f"""
        s_lshr_b32 s{sB}, s{sI}, 5
        s_and_b32 s{sS}, s{sI}, 31
        s_lshr_b32 s{sH}, s{sI}, 1
        v_add_u32 v{vW1 + 1}, 0x10000, v{vW1}
        v_lshrrev_b32 v{vHL}, 5, v{vL}
        v_and_b32 v{vHD}, 31, v{vL}
        v_and_b32 v4, 3, v{vL}
        v_bfe_u32 v5, v{vL}, 2, 2
        v_lshl_add_u32 v6, v4, 2, v5
        v_xor_b32 v6, v6, v{vHL}
        v_lshlrev_b32 v7, 10, v{vHD}
        s_lshl_b32 s3, s{sW}, 15
        """)
        for s in range(8):
            a(f"v_xor_b32 v8, {2 * s}, v6\nv_lshl_add_u32 v8, v8, 4, v7\nv_add_u32 v{vQK + s}, s3, v8\nv_add_u32 v{vQQ + s}, {QB}, v8")
        a(f"""
        v_bfe_u32 v6, v{vL}, 4, 1
        v_lshrrev_b32 v7, 1, v4
        v_lshl_add_u32 v6, v6, 1, v7
        v_xor_b32 v6, v6, v{vHL}
        v_lshl_add_u32 v6, v5, 2, v6
        v_lshl_add_u32 v7, v{vHL}, 2, v5
        v_lshlrev_b32 v7, 10, v7
        v_and_b32 v8, 1, v{vL}
        v_lshl_add_u32 v7, v8, 3, v7
        v_add_u32 v7, s{sC}, v7
        """)
        for T in range(4):
            for z in range(2):
                a(f"v_xor_b32 v8, {4 * T + 2 * z}, v6\nv_lshl_add_u32 v{vTR + 2 * T + z}, v8, 4, v7")
                if z: a(f"v_add_u32 v{vTR + 2 * T + z}, 0x2000, v{vTR + 2 * T + z}")
        self.get_tag()
        self.srd(R1, P_UV, 1 << 22)
        a(f"s_lshl_b32 s3, s{sH}, 17")
        self.srd(R2, P_BO, 1 << 17, "s3")
        skip = a.label("nopoll")
        a(f"s_cmp_lg_u32 s{sW}, 0\ns_cbranch_scc1 {skip}\ns_movk_i32 s3, {WS_FLAGB}")
        saved = list(a.q)
        self.poll(lambda: a(f"buffer_load_dwordx4 {vr(vSS)}, v{vL16}, {sr(RWS)}, s3 offen sc1"), list(range(vSS, vSS + 4)), True)
        a.q = saved
        a(f"{skip}:\ns_barrier")
        self.stamp(2)
        a(f"s_lshl_b32 s{sOFF}, s{sB}, 15\ns_add_u32 s{sOFF}, s{sOFF}, {WS_QA}\ns_add_u32 s3, s{sA}, {QB}")
        for j in range(8):
            a(f"s_add_u32 m0, s3, {4096 * j}")
            a.vm(f"buffer_load_dwordx4 v{vDM + j % 4}, {sr(RWS)}, s{sOFF} offen sc1 lds", "q")
            if j < 7: a(f"s_add_u32 s{sOFF}, s{sOFF}, 0x1000")
        a(f"""
        s_and_b32 s3, s{sI}, 1
        s_lshl_b32 s3, s3, 2
        s_add_u32 s3, s3, s{sW}
        s_lshl_b32 s{sOFF}, s3, 19
        s_lshl_b32 s3, s{sH}, 8
        s_add_u32 s{sOFF}, s{sOFF}, s3
        v_lshlrev_b32 v4, 17, v{vG}
        v_lshl_add_u32 v4, v{vN}, 4, v4
        """)
        a(f"""
        v_mov_b32 v{vH1}, v4
        v_lshlrev_b32 v4, 15, v{vG}
        v_lshl_add_u32 v4, v{vN}, 4, v4
        v_add_u32 v{vH1 + 1}, s{sC}, v4
        """)
        def uvload(j):
            a.vm(f"buffer_load_dwordx4 {vr(vUV + 4 * j)}, v{vH1}, {sr(R1)}, s{sOFF} offen nt", "uv")
            if j < 15: a(f"s_add_u32 s{sOFF}, s{sOFF}, 0x2000")
        bo = [0]
        def boload(n):
            for j in range(bo[0], min(32, bo[0] + n)):
                a(f"s_movk_i32 s{sOFF}, {j * 1024}")
                a.vm(f"buffer_load_dwordx4 {ar(128 + 4 * j)}, v{vH1 + 1}, {sr(R2)}, s{sOFF} offen nt", "bo")
                bo[0] = j + 1
        a.vmwait("q")
        a("s_barrier")
        self.stamp(3)

        for rnd in range(2):
            PF = 3 if rnd == 0 else 5
            def rd(s):
                if rnd == 0:
                    a(f"ds_read_b128 {ar(4 * s)}, v{vQQ + s % 8} offset:{256 * (s // 8)}")
                a(f"ds_read_b128 {vr(vFR + 4 * (s % 6))}, v{vQK + s % 8} offset:{256 * (s // 8)}")
            per = 2 if rnd == 0 else 1
            for s in range(PF): rd(s)
            for s in range(32):
                if s + PF < 32: rd(s + PF)
                left = min(PF, 31 - s)
                a(f"s_waitcnt lgkmcnt({left * per})")
                c = "0" if s == 0 else vr(vSS, 16)
                a(f"v_mfma_f32_32x32x16_bf16 {vr(vSS, 16)}, {vr(vFR + 4 * (s % 6))}, {ar(4 * s)}, {c}")
                if rnd == 0 and s % 2 == 0: uvload(s // 2)
                if rnd == 1 and s % 4 == 0: boload(1)
            if rnd == 0:
                a("s_barrier")
            a(f"""
            v_lshlrev_b32 v6, 4, v{vHD}
            v_add_u32 v6, {MXB + 512 * rnd}, v6
            s_lshl_b32 s3, s{sW}, 2
            v_add_u32 v7, s3, v6
            v_max3_f32 v4, v{vSS}, v{vSS + 1}, v{vSS + 2}
            """)
            for i in range(3, 15, 2):
                a(f"v_max3_f32 v4, v4, v{vSS + i}, v{vSS + i + 1}")
            a(f"""
            v_max_f32 v4, v4, v{vSS + 15}
            v_mov_b32 v5, v4
            v_permlane32_swap_b32 v4, v5
            v_max_f32 v4, v4, v5
            ds_write_b32 v7, v4
            s_waitcnt lgkmcnt(0)
            s_barrier
            ds_read_b128 {vr(vPK)}, v6
            s_lshl_b32 s3, s{sW}, 11
            s_add_u32 s3, s3, {PB}
            v_add_u32 v7, s3, v{vL16}
            s_waitcnt lgkmcnt(0)
            v_max3_f32 v4, v{vPK}, v{vPK + 1}, v{vPK + 2}
            v_max_f32 v4, v4, v{vPK + 3}
            v_mul_f32 v4, s{sCST}, v4
            """)
            if rnd == 0:
                a(f"v_mov_b32 v{vMX}, v4")
            else:
                a(f"v_max_f32 v4, v4, v{vMX}\nv_sub_f32 v8, v{vMX}, v4\nv_exp_f32 v8, v8\nv_mov_b32 v{vMX}, v4\nv_mul_f32 v{vLS}, v{vLS}, v8")
            for i in range(16):
                a(f"v_fma_f32 v{vSS + i}, v{vSS + i}, s{sCST}, -v4")
            for i in range(16):
                a(f"v_exp_f32 v{vSS + i}, v{vSS + i}")
            for i in range(8):
                a(f"v_cvt_pk_bf16_f32 v{vPK + i}, v{vSS + 2 * i}, v{vSS + 2 * i + 1}")
            a(f"ds_write_b128 v7, {vr(vPK)}\nds_write_b128 v7, {vr(vPK + 4)} offset:1024")
            for i in range(16):
                if rnd == 0 and i == 0: continue
                if rnd == 0 and i == 1: a(f"v_add_f32 v{vLS}, v{vSS}, v{vSS + 1}")
                else: a(f"v_add_f32 v{vLS}, v{vLS}, v{vSS + i}")
            a(f"v_add_u32 v7, {PB}, v{vL16}")
            a("s_waitcnt lgkmcnt(0)\ns_barrier")
            if rnd == 0: a.vmwait("c1")
            self.stamp(4 + 2 * rnd)
            def reads(ks):
                b = vSS + 20 * (ks % 2)
                L = [f"ds_read_b128 {vr(b)}, v7 offset:{1024 * ks}"]
                for T in range(4):
                    for z in range(2):
                        L.append(f"ds_read_b64_tr_b16 {vr(b + 4 + 4 * T + 2 * z, 2)}, v{vTR + 2 * T + z} offset:{16384 * (ks % 4)}")
                return L
            def bump(d):
                for i in range(8):
                    a(f"v_add_u32 v{vTR + i}, {d}, v{vTR + i}")
            for t in reads(0): a(t)
            if rnd == 1:
                for i in range(64):
                    a(f"v_mul_f32 v{vO + i}, v{vO + i}, v8")
            pend = 0
            for ks in range(8):
                a(f"s_waitcnt lgkmcnt({pend})")
                if ks == 3: bump("0x10000")
                nx = reads(ks + 1) if ks < 7 else []
                wr = []
                if rnd == 0:
                    for j in range(4 * ks, 4 * ks + 4):
                        wr.append(f"ds_write_b128 v{vW1 + j // 16}, {ar(128 + 4 * j)} offset:{4096 * (j % 16)}")
                seq = nx + wr
                pend = len(wr)
                b = vSS + 20 * (ks % 2)
                cut = [0, 3, 6, 9, len(seq)]
                for T in range(4):
                    c = "0" if (rnd == 0 and ks == 0) else vr(vO + 16 * T, 16)
                    a(f"v_mfma_f32_32x32x16_bf16 {vr(vO + 16 * T, 16)}, {vr(b + 4 + 4 * T)}, {vr(b)}, {c}")
                    for t in seq[cut[T]:cut[T + 1]]: a(t)
                    if T % 2 == 1 and (rnd == 1 or ks >= 2): boload(1)
            if rnd == 0:
                bump("0xffff0000")
                a("s_waitcnt lgkmcnt(0)\ns_barrier")
            else:
                assert bo[0] == 32
            self.stamp(5 + 2 * rnd)

        a(f"""
        v_mov_b32 v5, v{vLS}
        v_lshlrev_b32 v6, 4, v{vHD}
        v_add_u32 v6, {LSB}, v6
        v_permlane32_swap_b32 v5, v{vLS}
        s_lshl_b32 s3, s{sW}, 2
        v_add_f32 v5, v5, v{vLS}
        v_add_u32 v7, s3, v6
        ds_write_b32 v7, v5
        v_lshlrev_b32 v7, 10, v{vHD}
        v_lshl_add_u32 v7, v{vHL}, 3, v7
        v_add_u32 v7, s{sC}, v7
        """)
        for T in range(4):
            for rq in range(4):
                r = vO + 16 * T + 4 * rq
                a(f"""
                v_xor_b32 v8, {4 * T + rq}, v{vN}
                v_cvt_pk_bf16_f32 v{r}, v{r}, v{r + 1}
                v_cvt_pk_bf16_f32 v{r + 1}, v{r + 2}, v{r + 3}
                v_lshl_add_u32 v8, v8, 4, v7
                ds_write_b64 v8, {vr(r, 2)}
                """)
        a(f"""
        v_lshlrev_b32 v7, 10, v{vG}
        v_add_u32 v7, s{sC}, v7
        v_xor_b32 v4, v{vG}, v{vN}
        """)
        for jj in range(8):
            a(f"v_xor_b32 v8, {4 * (jj % 4)}, v4\nv_lshl_add_u32 v8, v8, 4, v7\nds_read_b128 {vr(vSS + 4 * jj)}, v8 offset:{4096 * jj}")
        a(f"""
        s_lshl_b32 s3, s{sW}, 14
        s_lshl_b32 s{sOFF}, s{sI}, 8
        s_add_u32 s{sOFF}, s{sOFF}, s3
        s_add_u32 s{sOFF}, s{sOFF}, {WS_PART}
        v_lshlrev_b32 v7, 16, v{vG}
        v_lshl_add_u32 v7, v{vN}, 4, v7
        """)
        for jj in range(8):
            a(f"s_waitcnt lgkmcnt({7 - jj})")
            a.vm(f"buffer_store_dwordx4 {vr(vSS + 4 * jj)}, v7, {sr(RWS)}, s{sOFF} offen sc1", "part")
            if jj < 7: a(f"s_add_u32 s{sOFF}, s{sOFF}, 0x40000")
        self.stamp(8)
        skip = a.label("nostat")
        a(f"""
        s_waitcnt vmcnt(0)
        s_barrier
        s_cmp_lg_u32 s{sW}, 0
        s_cbranch_scc1 {skip}
        ds_read_b128 {vr(vPK)}, v6
        v_mov_b32 v4, v{vMX}
        v_mov_b32 v7, s{sTAG}
        v_lshlrev_b32 v8, 10, v{vHD}
        s_lshl_b32 s3, s{sI}, 4
        s_add_u32 s3, s3, {WS_STATB}
        s_waitcnt lgkmcnt(0)
        v_mov_b32 v6, s{sTAG}
        v_add_f32 v5, v{vPK}, v{vPK + 1}
        v_add_f32 v5, v5, v{vPK + 2}
        v_add_f32 v5, v5, v{vPK + 3}
        s_mov_b32 exec_hi, 0
        buffer_store_dwordx4 v[4:7], v8, {sr(RWS)}, s3 offen sc1
        s_mov_b64 exec, -1
        s_nop 1
        {skip}:
        """)
        a.vmreset()
        self.stamp(9)
        a(f"""
        s_lshr_b32 s{sA}, s{sW}, 1
        s_lshl_b32 s3, s{sH}, 1
        s_add_u32 s3, s3, s{sA}
        s_lshl_b32 s3, s3, 9
        s_add_u32 s{sOF2}, s3, {WS_STATB}
        v_and_b32 v5, 7, v{vN}
        v_lshl_add_u32 v5, v5, 2, v{vG}
        v_lshlrev_b32 v5, 4, v5
        s_and_b32 s3, s{sW}, 1
        s_lshl_b32 s{sOFF}, s{sI}, 1
        s_add_u32 s{sOFF}, s{sOFF}, s3
        s_lshl_b32 s{sOFF}, s{sOFF}, 1
        s_add_u32 s{sOFF}, s{sOFF}, s{sA}
        s_lshl_b32 s{sOFF}, s{sOFF}, 13
        s_add_u32 s{sOFF}, s{sOFF}, {WS_PART}
        """)
        self.poll(lambda: a(f"buffer_load_dwordx4 {vr(vPK)}, v5, {sr(RWS)}, s{sOF2} offen sc1"), [vPK + 2, vPK + 3], True)
        self.stamp(10)
        for j in range(8):
            if j == 4: a(f"s_add_u32 s{sOFF}, s{sOFF}, 0x1000")
            a.vm(f"buffer_load_dwordx4 {vr(vSS + 4 * j)}, v{vL16}, {sr(RWS)}, s{sOFF} offen offset:{1024 * (j % 4)} sc1", f"p{j}")
        def allred(op, r, t):
            for k in (1, 2, 4):
                a(f"{op}_dpp v{r}, v{r}, v{r} row_ror:{k} {dm}:0xf")
            for sw in ("v_permlane16_swap_b32", "v_permlane32_swap_b32"):
                a(f"v_mov_b32 v{t}, v{r}\n{sw} v{t}, v{r}\n{op} v{r}, v{r}, v{t}")
        a(f"v_mov_b32 v4, v{vPK}")
        allred("v_max_f32", 4, 6)
        a(f"v_sub_f32 v4, v{vPK}, v4\nv_exp_f32 v4, v4\nv_mul_f32 v5, v4, v{vPK + 1}")
        allred("v_add_f32", 5, 6)
        a(f"""
        v_rcp_f32 v5, v5
        v_mul_f32 v4, v4, v5
        v_cvt_pk_bf16_f32 v{vPK}, v4, v4
        s_lshl_b32 s3, s{sW}, 8
        s_add_u32 s3, s3, {XC}
        v_and_b32 v6, 1, v{vG}
        v_lshlrev_b32 v6, 3, v6
        v_lshl_add_u32 v6, v{vN}, 4, v6
        v_add_u32 v7, s3, v6
        s_lshl_b32 s3, s{sW}, 7
        s_add_u32 s3, s3, {XC}
        v_lshrrev_b32 v5, 3, v{vN}
        v_lshlrev_b32 v4, 9, v5
        v_lshl_add_u32 v4, v{vG}, 5, v4
        v_add_u32 v4, s3, v4
        """)
        self.selgemv(0, 8, self.build_dpp(lambda j: (vPK, j)), lambda j: vr(vSS + 4 * j), vD, True, lambda j: a.vmwait(f"p{j}"))
        a(f"""
        v_cvt_pk_bf16_f32 v{vD}, v{vD}, v{vD + 1}
        v_cvt_pk_bf16_f32 v{vD + 1}, v{vD + 2}, v{vD + 3}
        ds_write_b64 v7, {vr(vD, 2)}
        s_waitcnt lgkmcnt(0)
        s_barrier
        ds_read_b128 {vr(vSS)}, v4
        ds_read_b128 {vr(vSS + 4)}, v4 offset:16
        """)
        skip = a.label("noepoch")
        a(f"""
        s_or_b32 s3, s{sI}, s{sW}
        s_cmp_lg_u32 s3, 0
        s_cbranch_scc1 {skip}
        v_mov_b32 v8, 0
        s_mov_b64 exec, 1
        buffer_store_dword v{vTAG}, v8, {sr(RWS)}, 0 offen sc1
        s_mov_b64 exec, -1
        {skip}:
        s_lshl_b32 s3, s{sW}, 10
        s_add_u32 s3, s3, {RED}
        v_add_u32 v7, s3, v{vL16}
        v_add_u32 v8, {RED}, v{vL16}
        s_lshl_b32 s3, s{sW}, 9
        s_add_u32 s3, s3, {XT}
        v_lshrrev_b32 v4, 1, v{vG}
        v_lshl_add_u32 v6, v4, 8, v6
        v_add_u32 v6, s3, v6
        v_lshlrev_b32 v5, 8, v5
        v_lshl_add_u32 v5, v{vG}, 6, v5
        v_add_u32 v5, s3, v5
        s_waitcnt lgkmcnt(0)
        """)
        self.stamp(11)
        self.selgemv(0, 16, self.build_perm(vSS), lambda j: vr(vUV + 4 * j), vD, True)
        a(f"ds_write_b128 v7, {vr(vD)}\ns_waitcnt lgkmcnt(0)\ns_barrier")
        for q in range(4):
            a(f"ds_read_b128 {vr(vSS + 4 * q)}, v8 offset:{1024 * q}")
        a("s_waitcnt lgkmcnt(0)")
        for i in range(4):
            a(f"v_add_f32 v{vSS + i}, v{vSS + i}, v{vSS + 4 + i}\nv_add_f32 v{vSS + 8 + i}, v{vSS + 8 + i}, v{vSS + 12 + i}")
        for i in range(4):
            a(f"v_add_f32 v{vSS + i}, v{vSS + i}, v{vSS + 8 + i}")
        a(f"""
        v_cvt_pk_bf16_f32 v{vSS}, v{vSS}, v{vSS + 1}
        v_cvt_pk_bf16_f32 v{vSS + 1}, v{vSS + 2}, v{vSS + 3}
        ds_write_b64 v6, {vr(vSS, 2)}
        s_waitcnt lgkmcnt(0)
        """)
        for q in range(4):
            a(f"ds_read_b128 {vr(vSS + 4 * q)}, v5 offset:{16 * q}")
        a(f"""
        s_lshl_b32 s3, s{sW}, 15
        s_lshl_b32 s{sOFF}, s{sI}, 7
        s_add_u32 s{sOFF}, s{sOFF}, s3
        s_add_u32 s{sOFF}, s{sOFF}, {WS_YB}
        v_bfe_u32 v7, v{vL}, 3, 2
        v_lshlrev_b32 v7, 13, v7
        v_lshl_add_u32 v7, v{vHL}, 17, v7
        v_and_b32 v8, 7, v{vL}
        v_lshl_add_u32 v7, v8, 4, v7
        s_waitcnt lgkmcnt(0)
        """)
        self.selgemv(0, 32, self.build_perm(vSS), lambda j: ar(128 + 4 * j), vD, True)
        self.tag4(vD)
        a(f"buffer_store_dwordx4 {vr(vD)}, v7, {sr(RWS)}, s{sOFF} offen sc1")
        self.stamp(12)

        redb, join = a.label("redb"), a.label("join")
        self.srd(R0, P_OUT, 4096)
        a(f"""
        s_lshr_b32 s{sB}, s{sH}, 4
        s_and_b32 s{sA}, s{sH}, 15
        s_lshr_b32 s3, s{sA}, 2
        s_lshl_b32 s{sC}, s3, 8
        s_bfe_u32 s3, s{sA}, 0x10001
        s_lshl_b32 s3, s3, 3
        s_add_u32 s{sC}, s{sC}, s3
        s_and_b32 s3, s{sA}, 1
        s_lshl_b32 s3, s3, 7
        s_add_u32 s{sC}, s{sC}, s3
        s_lshl_b32 s3, s{sB}, 11
        s_add_u32 s{sC}, s{sC}, s3
        v_lshlrev_b32 v{vW1}, 1, v{vG}
        v_lshl_add_u32 v{vW1}, v8, 4, v{vW1}
        s_lshl_b32 s3, s{sW}, 8
        s_add_u32 s3, s3, {FIN}
        v_lshlrev_b32 v{vQK + 1}, 2, v{vL}
        v_add_u32 v{vQK}, s3, v{vQK + 1}
        v_add_u32 v{vQK + 1}, {FIN}, v{vQK + 1}
        s_bitcmp1_b32 s{sI}, 0
        s_cbranch_scc1 {redb}
        s_mul_i32 s3, s{sB}, 1536
        s_lshl_b32 s{sOF2}, s{sW}, 7
        s_add_u32 s{sOF2}, s{sOF2}, s3
        s_add_u32 s{sOF2}, s{sOF2}, {WS_STATA}
        v_lshrrev_b32 v5, 3, v{vL}
        v_lshlrev_b32 v5, 4, v5
        """)
        def st():
            for t in range(3):
                a(f"buffer_load_dwordx4 {vr(vSS + 4 * t)}, v5, {sr(RWS)}, s{sOF2} offen offset:{512 * t} sc1")
        self.poll(st, [vSS + 2, vSS + 3, vSS + 6, vSS + 7, vSS + 10, vSS + 11], True)
        a(f"""
        v_max3_f32 v4, v{vSS}, v{vSS + 4}, v{vSS + 8}
        v_sub_f32 v{vPK}, v{vSS}, v4
        v_sub_f32 v{vPK + 1}, v{vSS + 4}, v4
        v_sub_f32 v{vPK + 2}, v{vSS + 8}, v4
        v_exp_f32 v{vPK}, v{vPK}
        v_exp_f32 v{vPK + 1}, v{vPK + 1}
        v_exp_f32 v{vPK + 2}, v{vPK + 2}
        v_mul_f32 v4, v{vPK}, v{vSS + 1}
        v_fmac_f32 v4, v{vPK + 1}, v{vSS + 5}
        v_fmac_f32 v4, v{vPK + 2}, v{vSS + 9}
        v_rcp_f32 v4, v4
        v_mul_f32 v{vPK}, v{vPK}, v4
        v_mul_f32 v{vPK + 1}, v{vPK + 1}, v4
        v_mul_f32 v{vPK + 2}, v{vPK + 2}, v4
        s_mul_i32 s{sOF2}, s{sH}, 12288
        s_lshl_b32 s3, s{sW}, 10
        s_add_u32 s{sOF2}, s{sOF2}, s3
        s_add_u32 s{sOF2}, s{sOF2}, {WS_YA}
        s_add_u32 s{sOFF}, s{sOF2}, 0x1000
        s_add_u32 s{sA}, s{sOF2}, 0x2000
        """)
        def ya():
            for t, s in enumerate((sOF2, sOFF, sA)):
                a(f"buffer_load_dwordx4 {vr(vSS + 4 * t)}, v{vL16}, {sr(RWS)}, s{s} offen sc1")
        self.poll(ya, list(range(vSS, vSS + 12)), False)
        for i in range(12):
            a(f"v_and_b32 v{vSS + i}, s{sHIGH}, v{vSS + i}")
        for i in range(4):
            a(f"v_mul_f32 v{vD + i}, v{vPK}, v{vSS + i}")
        for t in (1, 2):
            for i in range(4):
                a(f"v_fmac_f32 v{vD + i}, v{vPK + t}, v{vSS + 4 * t + i}")
        a(f"""
        s_branch {join}
        {redb}:
        s_add_u32 s{sC}, s{sC}, 1024
        s_lshl_b32 s{sOF2}, s{sH}, 13
        s_lshl_b32 s3, s{sW}, 11
        s_add_u32 s{sOF2}, s{sOF2}, s3
        s_add_u32 s{sOF2}, s{sOF2}, {WS_YB}
        """)
        def yb():
            for t in range(2):
                a(f"buffer_load_dwordx4 {vr(vSS + 4 * t)}, v{vL16}, {sr(RWS)}, s{sOF2} offen offset:{1024 * t} sc1")
        self.poll(yb, list(range(vSS, vSS + 8)), False)
        for i in range(8):
            a(f"v_and_b32 v{vSS + i}, s{sHIGH}, v{vSS + i}")
        for i in range(4):
            a(f"v_add_f32 v{vD + i}, v{vSS + i}, v{vSS + 4 + i}")
        a(f"{join}:\ns_nop 1")
        self.stamp(13)
        for i in range(4):
            a(f"v_add_f32_dpp v{vD + i}, v{vD + i}, v{vD + i} row_ror:8 {dm}:0xf")
        done = a.label("done")
        a(f"""
        v_permlane16_swap_b32 v{vD}, v{vD + 1}
        v_permlane16_swap_b32 v{vD + 2}, v{vD + 3}
        v_add_f32 v{vD}, v{vD}, v{vD + 1}
        v_add_f32 v{vD + 2}, v{vD + 2}, v{vD + 3}
        v_permlane32_swap_b32 v{vD}, v{vD + 2}
        v_add_f32 v{vD}, v{vD}, v{vD + 2}
        ds_write_b32 v{vQK}, v{vD}
        s_waitcnt lgkmcnt(0)
        s_barrier
        s_cmp_lg_u32 s{sW}, 0
        s_cbranch_scc1 {done}
        """)
        for q in range(4):
            a(f"ds_read_b32 v{vD + q}, v{vQK + 1} offset:{256 * q}")
        a(f"""
        s_mov_b32 exec_lo, 0x00ff00ff
        s_mov_b32 exec_hi, 0x00ff00ff
        s_waitcnt lgkmcnt(0)
        v_add_f32 v{vD}, v{vD}, v{vD + 1}
        v_add_f32 v{vD + 2}, v{vD + 2}, v{vD + 3}
        v_add_f32 v{vD}, v{vD}, v{vD + 2}
        v_cvt_pk_bf16_f32 v{vD}, v{vD}, v{vD}
        buffer_store_short v{vD}, v{vW1}, {sr(R0)}, s{sC} offen
        {done}:
        """)
        self.finish()

    def build(self, header):
        a = self.a
        a(f"""
        s_load_dwordx16 s[8:23], s[0:1], 0
        s_load_dwordx8 s[24:31], s[0:1], 64
        s_load_dwordx4 s[32:35], s[0:1], 96
        s_cmp_ge_u32 s2, 256
        s_cbranch_scc1 L_exit
        """)
        if self.o.get("hold"):
            a(f"s_memrealtime s[{sSTAMP}:{sSTAMP + 1}]")
        if self.o["stamps"]:
            for i in range(1, 15):
                a(f"s_mov_b32 s{sSTAMP + 2 * i}, 0")
            a(f"s_memrealtime s[{sSTAMP}:{sSTAMP + 1}]")
        if self.o["pf"]:
            a(f"""
            s_getpc_b64 s[{R0}:{R0 + 1}]
            L_pc:
            s_lshr_b32 s3, s2, 3
            s_lshl_b32 s3, s3, 4
            v_add_u32 v4, s3, v0
            v_lshlrev_b32 v4, 7, v4
            v_mov_b32 v7, s{R0 + 1}
            v_add_co_u32 v6, vcc, s{R0}, v4
            v_addc_co_u32 v7, vcc, 0, v7, vcc
            v_cmp_gt_u32 vcc, 16, v0
            s_mov_b32 s3, L_code_end - L_pc
            v_cmp_gt_u32 s[{R1}:{R1 + 1}], s3, v4
            s_and_b64 vcc, vcc, s[{R1}:{R1 + 1}]
            s_and_saveexec_b64 s[{sEX}:{sEX + 1}], vcc
            s_cbranch_execz L_nopf
            global_load_dword v71, v[6:7], off
            L_nopf:
            s_mov_b64 exec, s[{sEX}:{sEX + 1}]
            """)
        a(f"""
        v_lshrrev_b32 v4, 6, v0
        v_and_b32 v{vL}, 63, v0
        v_readfirstlane_b32 s{sW}, v4
        v_and_b32 v{vN}, 15, v0
        v_bfe_u32 v{vG}, v0, 4, 2
        s_and_b32 s{sA}, s2, 7
        s_lshr_b32 s{sC}, s2, 3
        s_lshl_b32 s{sI}, s{sA}, 3
        s_add_u32 s{sI}, s{sI}, s{sC}
        s_sub_u32 s{sI}, s{sI}, 24
        s_cmp_ge_u32 s{sC}, 24
        s_cbranch_scc1 L_role_b
        s_mul_i32 s3, s{sC}, 43
        s_lshr_b32 s3, s3, 8
        s_lshl_b32 s{sH}, s{sA}, 2
        s_add_u32 s{sH}, s{sH}, s3
        s_mul_i32 s3, s3, 6
        s_sub_u32 s{sI}, s{sC}, s3
        s_and_b32 s{sB}, s{sI}, 1
        s_lshr_b32 s{sT3}, s{sI}, 1
        s_cmp_eq_u32 s{sT3}, 0
        s_cbranch_scc1 L_role_a2
        """)
        self.role = '1'
        self.role_a(1)
        a("L_exit:\ns_endpgm\nL_role_a2:")
        self.role = '2'
        self.role_a(2)
        a("L_role_b:")
        self.role = 'B'
        self.role_b()
        a("L_code_end:")
        body = a.text()
        return (header + f"""; @launch grid=(256,1,1) block=(256,1,1) lds=163840
.amdgcn_target "amdgcn-amd-amdhsa--gfx950"
.text
.globl {KERNEL}
.p2align 8
.type {KERNEL},@function
{KERNEL}:
""" + body + f""".section .rodata,"a"
.p2align 6
.amdhsa_kernel {KERNEL}
  .amdhsa_next_free_vgpr 512
  .amdhsa_next_free_sgpr 102
  .amdhsa_accum_offset 256
  .amdhsa_group_segment_fixed_size 0
  .amdhsa_kernarg_size 112
  .amdhsa_user_sgpr_count 2
  .amdhsa_user_sgpr_kernarg_segment_ptr 1
  .amdhsa_system_sgpr_workgroup_id_x 1
.end_amdhsa_kernel
""")


def header():
    ref = open(f"cdna_kernels/{NAME}.s.ref").read().split("\n")
    return "\n".join(l for l in ref if l.startswith(";") and "@launch" not in l) + "\n"


if __name__ == "__main__":
    out = sys.argv[1]
    kw = eval("dict(" + (sys.argv[2] if len(sys.argv) > 2 else "") + ")")
    open(out, "w").write(Gen(**kw).build(header()))
```

```python
import re

REG = re.compile(r"\b([vas])(\d+)\b|\b([vas])\[(\d+):(\d+)\]|\b(vcc|exec|m0)\b")
TRANS = ("v_exp_f32", "v_log_f32", "v_rcp_f32", "v_rsq_f32", "v_sqrt_f32")


def regs_of(op):
    out = set()
    for m in REG.finditer(op):
        if m.group(1):
            out.add((m.group(1), int(m.group(2))))
        elif m.group(3):
            out.update((m.group(3), i) for i in range(int(m.group(4)), int(m.group(5)) + 1))
        else:
            out.add((m.group(6), 0))
    return out


def split_ops(rest):
    ops, depth, cur = [], 0, ""
    for ch in rest:
        if ch in "[(":
            depth += 1
        if ch in "])":
            depth -= 1
        if ch == "," and depth == 0:
            ops.append(cur.strip()); cur = ""
        else:
            cur += ch
    if cur.strip():
        ops.append(cur.strip())
    return ops


class Ins:
    def __init__(self, text):
        self.text = text
        t = text.split(";")[0].strip()
        self.label = t.endswith(":")
        self.directive = t.startswith(".") and not self.label
        self.empty = not t
        self.mn = ""
        self.w, self.r = set(), set()
        self.kind = None
        if self.label or self.directive or self.empty:
            return
        p = t.split(None, 1)
        mn = self.mn = p[0]
        ops = split_ops(p[1]) if len(p) > 1 else []
        self.ops = ops
        R = [regs_of(o) for o in ops]
        allr = set().union(*R) if R else set()
        self.dpp = "_dpp" in mn
        if mn.startswith("v_mfma"):
            self.kind = "mfma"
            self.passes = 8 if "32x32" in mn else 4
            self.w = R[0]; self.ab = R[1] | R[2]; self.c = R[3]; self.r = self.ab | self.c
        elif mn.startswith("v_permlane"):
            self.kind = "valu"; self.w = allr; self.r = allr
        elif mn.startswith("v_"):
            self.kind = "valu"
            self.w = set(R[0]); self.r = set().union(*R[1:]) if len(R) > 1 else set()
            if mn.startswith(("v_fmac", "v_dot2c")) or self.dpp:
                self.r |= R[0]
            if mn.startswith(("v_add_co", "v_addc_co", "v_sub_co")):
                self.w |= R[1]
        elif mn.startswith(("buffer_load", "global_load")):
            self.kind = "vmem"
            if t.rstrip().endswith(" lds") or "_lds_" in mn:
                self.r = allr | {("m0", 0)}; self.dma = True
            else:
                self.w = R[0]; self.r = set().union(*R[1:])
        elif mn.startswith(("buffer_store", "global_store", "buffer_atomic", "global_atomic")):
            self.kind = "vmem"; self.r = allr
            if "atomic" in mn and " sc0" in t:
                self.w = R[0]
            if mn.endswith(("x3", "x4")):
                self.wide_data = R[0] if mn.startswith("buffer") else R[1]
        elif mn.startswith(("buffer_wbl2", "buffer_inv")):
            self.kind = "vmem"
        elif mn.startswith("ds_read"):
            self.kind = "ds"; self.w = R[0]; self.r = set().union(*R[1:])
        elif mn.startswith("ds_"):
            self.kind = "ds"; self.r = allr
        elif mn.startswith("s_"):
            self.kind = "salu"
            if mn.startswith(("s_cmp", "s_cbranch", "s_branch", "s_waitcnt", "s_nop", "s_barrier", "s_endpgm", "s_sleep", "s_setprio")):
                self.r = allr
            else:
                self.w = R[0] if R else set(); self.r = set().union(*R[1:]) if len(R) > 1 else set()
        else:
            raise ValueError("unknown instruction: " + text)

    def states(self):
        if self.mn == "s_nop":
            return int(self.ops[0]) + 1
        return 0 if (self.label or self.directive or self.empty) else 1


def opcode(mn):
    return mn.replace("_dpp", "").replace("_e32", "").replace("_e64", "")


def need(p, c):
    n = 0
    vw = {x for x in p.w if x[0] in "va"}
    sw = {x for x in p.w if x[0] in ("s", "vcc")}
    if p.kind == "valu":
        isdot = p.mn.startswith("v_dot")
        if c.kind == "mfma" and vw & c.r:
            n = max(n, 3 if isdot else 2)
        if c.kind == "valu":
            if (c.dpp or c.mn.startswith("v_permlane")) and vw & c.r:
                n = max(n, 2)
            if c.mn.startswith(("v_readfirstlane", "v_readlane")) and vw & c.r:
                n = max(n, 1)
            if opcode(p.mn) in TRANS and vw & c.r:
                n = max(n, 1)
            if sw & c.r:
                n = max(n, 4 if c.mn.startswith(("v_readlane", "v_writelane")) else 2)
        if isdot and vw & (c.r | c.w):
            same = opcode(c.mn) == opcode(p.mn)
            if same:
                srcab = set().union(*[regs_of(o) for o in c.ops[1:3]])
                if vw & srcab:
                    n = max(n, 3)
            else:
                n = max(n, 3)
        if c.kind == "vmem" and sw & c.r:
            n = max(n, 5)
    if p.kind == "mfma":
        big = 12 if p.passes == 8 else 8
        if c.kind == "mfma":
            if p.w & c.ab:
                n = max(n, big)
            if p.w & c.c and not (p.w == c.c and p.passes == c.passes):
                n = max(n, big - 2)
            if p.w & c.w and not (p.w == c.c and p.passes == c.passes):
                n = max(n, big)
        elif c.kind in ("valu", "vmem", "ds"):
            if p.w & (c.r | c.w):
                n = max(n, big)
            if c.kind == "valu" and p.c & c.w:
                n = max(n, 7 if p.passes == 8 else 3)
    if p.kind == "salu" and ("m0", 0) in p.w and getattr(c, "dma", False):
        n = max(n, 1)
    if hasattr(p, "wide_data") and p.wide_data & c.w:
        n = max(n, 2 if c.kind == "valu" else 1)
    return n


def pad_hazards(lines, window=14):
    out = []
    for text in lines:
        c = Ins(text)
        if c.kind:
            dist, req = 0, 0
            for p in reversed(out):
                if dist >= window:
                    break
                if p.mn in ("s_branch", "s_endpgm"):
                    break
                if p.kind:
                    req = max(req, need(p, c) - dist)
                dist += p.states()
            while req > 0:
                k = min(req, 16)
                out.append(Ins(f"    s_nop {k - 1}"))
                req -= k
        out.append(c)
    return [i.text for i in out]


class Asm:
    def __init__(self):
        self.lines = []
        self.q = []
        self.uid = 0
        self.retired = None

    def __call__(self, text):
        for ln in text.split("\n"):
            s = ln.strip()
            if not s:
                continue
            self.lines.append(s if s.endswith(":") else "    " + s)

    def label(self, base):
        self.uid += 1
        return f"L_{base}_{self.uid}"

    def vm(self, text, tag=None):
        self(text)
        self.q.append(tag)

    def vmreset(self):
        old, self.q = self.q, []
        if self.retired: self.retired(old)

    def vmwait(self, tag):
        idx = [i for i, t in enumerate(self.q) if t == tag]
        if not idx:
            return
        n = len(self.q) - 1 - idx[-1]
        self(f"s_waitcnt vmcnt({min(n, 63)})")
        old, self.q = self.q[:idx[-1] + 1], self.q[idx[-1] + 1:]
        if self.retired: self.retired(old)

    def vmlimit(self, n):
        if len(self.q) > n:
            self(f"s_waitcnt vmcnt({n})")
            old, self.q = self.q[:len(self.q) - n], self.q[len(self.q) - n:]
            if self.retired: self.retired(old)

    def text(self):
        return "\n".join(pad_hazards(self.lines)) + "\n"
```

```python
import sys, math
from asmlib import Asm

NAME = "concat_heads__sliding_block_cached__compressed_kv_cla__decode"
KERNEL = NAME + "_kernel"

WS_IDS = 0x1000
WS_STAT2 = 0x50000
WS_RDY = 0x3000
WS_ZOK = 0x3800
WS_ACC = 0x4000
WS_PROG = 0xe000
WS_QP = 0x10000
WS_QA = 0xc0000
WS_STATB = 0x60000
WS_CREC = 0x70000
WS_OREC = 0x80000
WS_PART2 = 0x100000
WS_PART = 0x200000
WS_SIZE = 0x400000
WS_STAMP = 0x1000000

P_AX, P_K, P_V, P_WQ, P_WO, P_BX, P_CKV, P_BQ, P_UK, P_UV, P_BO, P_OUT, P_DBG, P_WS = [8 + 2 * i for i in range(14)]
R0, R1, R2, RWS, R4, R5 = 36, 40, 44, 48, 52, 4
sW, sH, sB, sT3, sTAG, sOFF, sA, sC, sSPIN, sLOW, sHIGH, sCST, sOF2, sI = range(56, 70)
sEX = 70
sBIT = 1
sLOC = 0
sSTAMP = 72
vL, vN, vG, vTAG = 1, 2, 3, 9
vM, vS, vA0, vD = 10, 14, 24, 32
vL16 = 22

LOG2E = math.log2(math.e)
SCALE = 128 ** -0.5
import struct
def fbits(x): return "0x%08x" % struct.unpack("<I", struct.pack("<f", x))[0]
def vr(b, n=4): return f"v[{b}:{b + n - 1}]"
def ar(b, n=4): return f"a[{b}:{b + n - 1}]"
def sr(b, n=4): return f"s[{b}:{b + n - 1}]"

DEF = dict(stamps=False, D=10, DV=44, dvr=40, DE=7, DB=10, spin=200000, mimicA=True, pf=True, NL1=43, bu=8, hx=-8, hc=40, gpol='', spol='', hq=0, he=32, seq='CQ', qpos=(14, 28), pre2=0, post2=0, cpol='', upol='', prio=0, bq=(8, 4), bm=(0, 2), bs=(4, 0), bp=(8, 0), wlim=16, opos=0, no=0, wpos=99, help=0, hlead=2, bhelp=1, local=True, warm=True, qbw=2, pw=(2, 16), cu=2, id0=0, qsel=1, fl=0, hsh=2, la=512, lo=0, lq=0, l2=0, w2=(16, 24), wlead=8, sc=0, w64=0, pace=None, wt=2, wpol='')


class Gen:
    def __init__(self, **kw):
        self.o = dict(DEF); self.o.update(kw)
        self.a = Asm()

    def stamp(self, i):
        if self.o.get("holdat") and self.role in self.o["holdat"][0] and self.o["holdat"][1] == i:
            self.a("s_memrealtime s[72:73]")
        if getattr(self, "inb", False) and self.o.get("bstop") == i:
            self.inb = False
            self.a("s_waitcnt vmcnt(0) lgkmcnt(0)")
            self.finish()
        if self.o["stamps"] and (self.o["stamps"] != "min" or i == 14):
            self.a(f"s_memrealtime s[{sSTAMP + 2 * i}:{sSTAMP + 2 * i + 1}]\ns_waitcnt lgkmcnt(0)")

    def trace_begin(self, reg, weight):
        if not self.o.get("trace"):
            return
        self.tr = dict(n=0, last=0, pts=[])
        self.traces[self.role] = self.tr["pts"]
        self.treg = reg
        def retired(tags):
            t = self.tr
            t["n"] += sum(weight(x) for x in tags)
            if t["n"] - t["last"] >= 4 and len(t["pts"]) < 62:
                t["last"] = t["n"]
                t["pts"].append(t["n"])
                self.a(f"s_memrealtime s[74:75]\ns_waitcnt lgkmcnt(0)\nv_writelane_b32 v{reg}, s74, {len(t['pts'])}")
        self.a.retired = retired

    def finish(self):
        a = self.a
        if self.o.get("trace"):
            a.retired = None
            a(f"s_mov_b64 exec, -1\ns_memrealtime s[74:75]\ns_waitcnt lgkmcnt(0)\nv_writelane_b32 v{self.treg}, s74, 63\nv_writelane_b32 v{self.treg}, s72, 0")
            a(f"s_lshl_b32 s3, s2, 2\ns_add_u32 s3, s3, s{sW}\ns_lshl_b32 s3, s3, 8\ns_add_u32 s3, s3, {WS_STAMP}")
            a(f"v_lshl_add_u32 v4, v{vL}, 2, s3\nglobal_store_dword v4, v{self.treg}, s[{P_WS}:{P_WS + 1}]")
        if self.o.get("holdat") and self.role in self.o["holdat"][0]:
            if self.o["holdat"][1] == 14: a("s_memrealtime s[72:73]")
            lp = a.label("hold")
            a(f"{lp}:\ns_memrealtime s[74:75]\ns_waitcnt lgkmcnt(0)\ns_sub_u32 s3, s74, s72\ns_cmp_lt_u32 s3, 3000\ns_cbranch_scc1 {lp}")
        if self.o.get("hold"):
            lp = a.label("hold")
            a(f"{lp}:\ns_memrealtime s[74:75]\ns_waitcnt lgkmcnt(0)\ns_sub_u32 s3, s74, s72\ns_cmp_lt_u32 s3, {self.o['hold'] * 100}\ns_cbranch_scc1 {lp}")
        if self.o["stamps"]:
            self.stamp(14)
            a(f"s_lshl_b32 s3, s2, 2\ns_add_u32 s3, s3, s{sW}\ns_lshl_b32 s3, s3, 6\ns_add_u32 s3, s3, {WS_STAMP}")
            a("s_mov_b64 exec, 1\nv_mov_b32 v4, s3")
            for i in ((0, 14) if self.o["stamps"] == "min" else range(15)):
                a(f"v_mov_b32 v5, s{sSTAMP + 2 * i}\nglobal_store_dword v4, v5, s[{P_WS}:{P_WS + 1}] offset:{4 * i}")
            a(f"s_getreg_b32 s3, hwreg(HW_REG_XCC_ID)\nv_mov_b32 v5, s3\nglobal_store_dword v4, v5, s[{P_WS}:{P_WS + 1}] offset:60")
        a("s_endpgm")

    def srd(self, r, ptr, size, off_lo=None, off_hi=None):
        a = self.a
        if off_lo is None:
            a(f"s_mov_b32 s{r}, s{ptr}\ns_and_b32 s{r + 1}, s{ptr + 1}, 0xffff")
        else:
            a(f"s_add_u32 s{r}, s{ptr}, {off_lo}\ns_addc_u32 s{r + 1}, s{ptr + 1}, {off_hi or 0}\ns_and_b32 s{r + 1}, s{r + 1}, 0xffff")
        a(f"s_mov_b32 s{r + 2}, {size}\ns_mov_b32 s{r + 3}, 0x20000")

    def consts(self, cst):
        a = self.a
        self.srd(RWS, P_WS, WS_SIZE)
        a(f"""
        s_mov_b32 s{sSPIN}, {self.o['spin']}
        s_movk_i32 s{sLOW}, 0xfff
        s_mov_b32 s{sHIGH}, 0xfffff000
        s_mov_b32 s{sCST}, {fbits(cst)}
        v_lshlrev_b32 v{vL16}, 4, v{vL}
        """)

    def selectors(self, perm=True):
        a = self.a
        a(f"""
        v_and_b32 v4, 1, v{vN}
        v_bfe_u32 v5, v{vN}, 1, 2
        v_cmp_eq_u32 vcc, 1, v4
        v_mov_b32 v6, 0xffff
        v_mov_b32 v7, 0xffff0000
        v_cndmask_b32 v8, v6, v7, vcc
        """)
        if perm:
            a(f"""
            v_mov_b32 v6, 0x0c0c0100
            v_mov_b32 v7, 0x01000c0c
            v_cndmask_b32 v{vA0}, v6, v7, vcc
            v_mov_b32 v6, 0x0c0c0302
            v_mov_b32 v7, 0x03020c0c
            v_cndmask_b32 v{vA0 + 1}, v6, v7, vcc
            v_mov_b32 v6, 0x0c0c0c0c
            """)
        for jj in range(4):
            a(f"v_cmp_eq_u32 vcc, {jj}, v5\nv_cndmask_b32 v{vM + jj}, 0, v8, vcc")
            if perm:
                a(f"v_cndmask_b32 v{vS + 2 * jj}, v6, v{vA0}, vcc\nv_cndmask_b32 v{vS + 2 * jj + 1}, v6, v{vA0 + 1}, vcc")

    def get_tag(self):
        self.a(f"s_waitcnt lgkmcnt(0)\ns_add_u32 s{sTAG}, s{sTAG}, 1\nv_mov_b32 v{vTAG}, s{sTAG}")

    def build_perm(self, x):
        def f(j, A):
            for jj in range(4):
                self.a(f"v_perm_b32 v{A + jj}, v{x + j // 2}, v{x + j // 2}, v{vS + 2 * jj + j % 2}")
        return f

    def build_dpp(self, src):
        def f(j, A):
            reg, lane = src(j)
            for jj in range(4):
                self.a(f"v_and_b32_dpp v{A + jj}, v{reg}, v{vM + jj} row_newbcast:{lane} row_mask:0xf bank_mask:0xf")
        return f

    def selgemv(self, j0, j1, build, B, D, zero, before=None):
        a = self.a
        build(j0, vA0 + 4 * (j0 % 2))
        for j in range(j0, j1):
            if j + 1 < j1:
                build(j + 1, vA0 + 4 * ((j + 1) % 2))
            if before:
                before(j)
            c = "0" if (zero and j == j0) else vr(D)
            a(f"v_mfma_f32_16x16x32_bf16 {vr(D)}, {vr(vA0 + 4 * (j % 2))}, {B(j)}, {c}")

    def tag4(self, r):
        for i in range(4):
            self.a(f"v_add_u32 v{r + i}, 0x800, v{r + i}")
        for i in range(4):
            self.a(f"v_bfi_b32 v{r + i}, s{sLOW}, v{vTAG}, v{r + i}")

    def poll(self, issue, regs, full, tracked_tag=None, fullregs=()):
        a = self.a
        chk, ok = a.label("chk"), a.label("ok")
        if tracked_tag is None:
            issue()
            a("s_waitcnt vmcnt(0)")
            a.vmreset()
        else:
            a.vmwait(tracked_tag)
        a(f"{chk}:")
        a(f"v_xor_b32 v4, s{sTAG}, v{regs[0]}")
        for r in regs[1:]:
            a(f"v_bitop3_b32 v4, v4, v{r}, s{sTAG} bitop3:0xf6")
        if not full:
            a(f"v_and_b32 v4, s{sLOW}, v4")
        for r in fullregs:
            a(f"v_bitop3_b32 v4, v4, v{r}, s{sTAG} bitop3:0xf6")
        a(f"v_cmp_ne_u32 vcc, 0, v4\ns_cbranch_vccz {ok}\ns_cmp_eq_u32 s{sSPIN}, 0\ns_cbranch_scc1 {ok}\ns_sub_u32 s{sSPIN}, s{sSPIN}, 1")
        issue()
        a(f"s_waitcnt vmcnt(0)\ns_branch {chk}\n{ok}:")

    def q_issue(self, mat, g0, track):
        a = self.a
        def issue(tr=False):
            for q in range(4):
                t = f"buffer_load_dwordx4 {vr(g0 + 4 * q)}, v{vL16}, {sr(RWS)}, s{sOF2} offen offset:{1024 * q} sc1"
                if tr: a.vm(t, track)
                else: a(t)
        a(f"s_lshl_b32 s{sOF2}, s{sH}, 12\ns_add_u32 s{sOF2}, s{sOF2}, {WS_QP + mat * 32 * 4096}")
        return issue

    def q_finish(self, g0, lds_base):
        a = self.a
        for i in range(16):
            a(f"v_and_b32 v{g0 + i}, s{sHIGH}, v{g0 + i}")
        for i in range(4):
            a(f"v_add_f32 v{g0 + i}, v{g0 + i}, v{g0 + 4 + i}\nv_add_f32 v{g0 + 8 + i}, v{g0 + 8 + i}, v{g0 + 12 + i}")
        for i in range(4):
            a(f"v_add_f32 v{g0 + i}, v{g0 + i}, v{g0 + 8 + i}")
        a(f"""
        v_cvt_pk_bf16_f32 v{g0}, v{g0}, v{g0 + 1}
        v_cvt_pk_bf16_f32 v{g0 + 1}, v{g0 + 2}, v{g0 + 3}
        s_lshl_b32 s3, s{sW}, 9
        s_add_u32 s3, s3, {lds_base}
        v_lshrrev_b32 v4, 1, v{vG}
        v_and_b32 v6, 1, v{vG}
        v_lshlrev_b32 v4, 8, v4
        v_lshl_add_u32 v4, v6, 3, v4
        v_lshl_add_u32 v4, v{vN}, 4, v4
        v_add_u32 v4, s3, v4
        ds_write_b64 v4, {vr(g0, 2)}
        """)

    def last_arriver(self, cnt, skip):
        self.a(f"""
        v_mov_b32 v4, 0
        v_mov_b32 v5, 1
        s_mov_b64 exec, 1
        ds_add_rtn_u32 v5, v4, v5 offset:{cnt}
        s_mov_b64 exec, -1
        s_waitcnt lgkmcnt(0)
        v_readfirstlane_b32 s3, v5
        s_cmp_lg_u32 s3, 3
        s_cbranch_scc1 {skip}
        """)
        if self.o["prio"]: self.a("s_setprio 3")

    def pin(self, dst, voff, srd, soff):
        self.a.vm(f"buffer_load_dword v{dst}, v{voff}, {sr(srd)}, {soff} offen nt", "t")
        self.a.vm(f"buffer_load_dword v{dst + 1}, v{voff}, {sr(srd)}, {soff} offen sc1", "t")

    def bit_tags(self, tb):
        a = self.a
        a(f"v_and_b32 v4, 3, v{vL}\nv_lshlrev_b32 v4, 3, v4\nv_lshrrev_b32 v4, v4, v{vTAG}\ns_mov_b32 s{sBIT}, 0x10001")
        for k in range(4):
            a(f"v_bfe_u32 v5, v4, {2 * k + 1}, 1\nv_bfe_u32 v6, v4, {2 * k}, 1\nv_lshl_or_b32 v{tb + k}, v5, 16, v6")

    def poll_bits(self, issue, r0, n, tb, tracked_tag=None, fullregs=()):
        a = self.a
        chk, ok = a.label("chk"), a.label("ok")
        if tracked_tag is None:
            issue()
            a("s_waitcnt vmcnt(0)")
            a.vmreset()
        else:
            a.vmwait(tracked_tag)
        a(f"{chk}:")
        for i in range(n):
            a(f"v_xor_b32 v{r0 + i}, v{tb + i % 4}, v{r0 + i}")
        a(f"v_or_b32 v4, v{r0}, v{r0 + 1}")
        for i in range(2, n, 2):
            a(f"v_or3_b32 v4, v4, v{r0 + i}, v{r0 + i + 1}")
        a(f"v_and_b32 v4, s{sBIT}, v4")
        for r in fullregs:
            a(f"v_bitop3_b32 v4, v4, v{r}, s{sTAG} bitop3:0xf6")
        a(f"v_cmp_ne_u32 vcc, 0, v4\ns_cbranch_vccz {ok}\ns_cmp_eq_u32 s{sSPIN}, 0\ns_cbranch_scc1 {ok}\ns_sub_u32 s{sSPIN}, s{sSPIN}, 1")
        issue()
        a(f"s_waitcnt vmcnt(0)\ns_branch {chk}\n{ok}:")

    def pretouch(self, dst, items):
        if self.o["tlb"]:
            self.a(f"v_mov_b32 v4, 0")
            for srd, off in items:
                self.a(f"s_mov_b32 s3, {off}")
                self.a.vm(f"buffer_load_dword v{dst}, v4, {sr(srd)}, s3 offen", "tlb")

    def id_publish(self):
        skip = self.a.label("noid")
        self.a(f"""
        s_mov_b32 s{sLOC}, 0
        s_cmp_lg_u32 s{sW}, 3
        s_cbranch_scc1 {skip}
        s_getreg_b32 s3, hwreg(HW_REG_XCC_ID, 0, 4)
        s_xor_b32 s3, s3, s{sTAG}
        v_mov_b32 v4, s3
        v_mov_b32 v5, s{sTAG}
        s_and_b32 s3, s2, 7
        s_lshl_b32 s3, s3, 5
        s_lshr_b32 s{sLOC}, s2, 3
        s_add_u32 s3, s3, s{sLOC}
        s_lshl_b32 s3, s3, 3
        s_add_u32 s3, s3, {WS_IDS}
        s_mov_b32 s{sLOC}, 0
        v_mov_b32 v6, 0
        s_mov_b64 exec, 1
        buffer_store_dwordx2 v[4:5], v6, {sr(RWS)}, s3 offen
        s_mov_b64 exec, -1
        {skip}:
        """)

    def id_load(self, r):
        self.a(f"s_and_b32 s3, s2, 7\ns_lshl_b32 s3, s3, 8\ns_add_u32 s3, s3, {WS_IDS}\nv_and_b32 v4, 31, v{vL}\nv_lshlrev_b32 v4, 3, v4")
        self.a.vm(f"buffer_load_dwordx2 {vr(r, 2)}, v4, {sr(RWS)}, s3 offen sc1", "id")

    def id_check(self, r):
        self.a.vmwait("id")
        self.a(f"""
        s_getreg_b32 s3, hwreg(HW_REG_XCC_ID, 0, 4)
        s_xor_b32 s3, s3, s{sTAG}
        v_xor_b32 v4, s3, v{r}
        v_bitop3_b32 v4, v4, v{r + 1}, s{sTAG} bitop3:0xf6
        v_cmp_ne_u32 vcc, 0, v4
        s_cmp_eq_u64 vcc, 0
        s_cselect_b32 s{sLOC}, {1 if self.o['local'] else 0}, 0
        """)

    def gstore(self, text, before="", tag=None):
        a = self.a
        far, join = a.label("far"), a.label("join")
        a(f"s_cmp_eq_u32 s{sLOC}, 0\ns_cbranch_scc1 {far}\n{text}\ns_branch {join}\n{far}:")
        if tag: a.vm(text + " sc1", tag)
        else: a(text + " sc1")
        a(f"{join}:\ns_nop 1")

    def warm(self, wave, nlines, soff):
        if not self.o["warm"]:
            return
        skip = self.a.label("nowarm")
        self.a(f"""
        s_cmp_lg_u32 s{sW}, {wave}
        s_cbranch_scc1 {skip}
        v_min_u32 v4, {nlines - 1}, v{vL}
        v_lshlrev_b32 v4, 7, v4
        buffer_load_dword v71, v4, {sr(RWS)}, {soff} offen
        {skip}:
        """)

    def p_wave(self, sJ, vW):
        self.a(f"""
        s_and_b32 s3, s{sJ}, 1
        s_lshl_b32 s3, s3, 1
        s_and_b32 s{sEX}, s{sW}, 1
        s_add_u32 s{sEX}, s{sEX}, s3
        s_lshr_b32 s{sEX + 1}, s{sW}, 1
        s_lshl_b32 s3, s{sEX + 1}, 8
        s_add_u32 s3, s3, s{sEX}
        s_lshl_b32 s3, s3, 8
        v_lshlrev_b32 v4, 10, v{vG}
        v_lshl_add_u32 v4, v{vN}, 4, v4
        v_add_u32 v{vW}, s3, v4
        """)

    def p_setup(self, base, sM):
        a = self.a
        P = dict(AA=base, AB=base + 1, AC=base + 2, C4=base + 3, OOB=base + 4, X=base + 6, RR=base + 8, SB=base + 24, M15=sM, MQ=sM + 2)
        m15, mq = sr(sM, 2), sr(sM + 2, 2)
        self.srd(R0, P_OUT, 4096)
        a(f"v_cmp_gt_u32 vcc, 8, v{vN}")
        for jj in range(4):
            a(f"v_cndmask_b32 v{P['SB'] + jj}, v{vS + 2 * jj + 1}, v{vS + 2 * jj}, vcc")
        a(f"""
        v_cmp_eq_u32 {m15}, 15, v{vN}
        v_and_b32 v4, 3, v{vN}
        v_cmp_eq_u32 {mq}, 0, v4
        v_mov_b32 v{P['OOB']}, 0x7fff0000
        v_cndmask_b32 v{P['C4']}, 0, 1.0, {m15}
        v_lshlrev_b32 v{P['AC']}, 7, v{vG}
        v_lshl_add_u32 v{P['AC']}, v{vN}, 2, v{P['AC']}
        s_mul_i32 s3, s{sEX}, {5 * self.o['la']}
        v_add_u32 v{P['AC']}, s3, v{P['AC']}
        v_and_b32 v4, 1, v{vG}
        v_lshlrev_b32 v4, 3, v4
        v_lshrrev_b32 v{P['X']}, 1, v{vG}
        v_lshl_add_u32 v4, v{P['X']}, 11, v4
        s_lshl_b32 s3, s{sEX}, 8
        v_add_u32 v4, s3, v4
        v_lshl_add_u32 v{P['X']}, v{vN}, 4, v4
        v_cndmask_b32 v{P['AA']}, v{P['X']}, v{P['OOB']}, {m15}
        v_lshrrev_b32 v{P['X']}, 1, v{vN}
        v_add_u32 v{P['X']}, v{P['X']}, v4
        v_add_u32 v{P['X']}, 240, v{P['X']}
        v_cndmask_b32 v{P['AB']}, v{P['OOB']}, v{P['X']}, {mq}
        """)
        return P

    def p_run(self, P, src, wbase, part, st):
        a = self.a
        dm = "row_mask:0xf bank_mask"
        vX, vRR = P["X"], P["RR"]
        m15, mq = sr(P["M15"], 2), sr(P["MQ"], 2)
        def build(j, A):
            a(f"v_mov_b32_dpp v{vX + j % 2}, v{src} row_newbcast:{j} {dm}:0xf")
            for jj in range(4):
                a(f"v_perm_b32 v{A + jj}, v{vX + j % 2}, v{vX + j % 2}, v{P['SB'] + jj}")
        self.selgemv(0, 16, build, lambda j: ar(wbase + 4 * j), vD, True)
        a(f"s_mov_b32 s3, {WS_ACC + self.o['lo'] + part * 20 * self.o['la']}\ns_mov_b32 s{sOFF}, {WS_ACC + self.o['lo'] + (part * 20 + 4) * self.o['la']}")
        for r in range(4):
            a(f"v_cndmask_b32 v{vRR + r}, v{vD + r}, 1.0, {m15}")
            a(f"buffer_atomic_add_f32 v{vRR + r}, v{P['AC']}, {sr(RWS)}, s3 offen offset:{self.o['la'] * r} sc0 sc1")
        for r in range(4):
            a(f"v_mov_b32_dpp v{vRR + 5}, v{vD + r} row_newbcast:15 {dm}:{1 << r}")
        a(f"v_cndmask_b32 v{vRR + 4}, v{P['C4']}, v{vRR + 5}, {mq}")
        a(f"buffer_atomic_add_f32 v{vRR + 4}, v{P['AC']}, {sr(RWS)}, s{sOFF} offen sc0 sc1")
        self.stamp(st)
        a("s_waitcnt vmcnt(0)")
        a.vmreset()
        t = vRR + 8
        for k in range(5):
            a(f"v_mov_b32_dpp v{t + k}, v{vRR + k} row_newbcast:15 {dm}:0xf")
        for k in range(5):
            a(f"""
            v_cmp_eq_f32 vcc, {fbits(63.0)}, v{t + k}
            v_add_f32 v{vRR + k}, v{vRR + k}, v{vD + k if k < 4 else vRR + 5}
            v_cvt_pk_bf16_f32 v{vRR + k}, v{vRR + k}, v{vRR + k}
            v_cndmask_b32 v{t + k}, v{P['OOB']}, v{P['AA'] if k < 4 else P['AB']}, vcc
            buffer_store_short v{vRR + k}, v{t + k}, {sr(R0)}, 0 offen offset:{1024 * part + (2 * k if k < 4 else 0)}
            """)

    def helper(self, rounds):
        a, o = self.a, self.o
        NL1 = o["NL1"]; NL2 = 128 - 2 * NL1
        top, out = a.label("help"), a.label("helped")
        self.srd(R1, P_V, 1 << 27)
        a(f"""
        s_cmp_eq_u32 s{sLOC}, 0
        s_cbranch_scc1 {out}
        s_lshr_b32 s3, s2, 3
        v_and_b32 v4, 31, v{vL}
        v_cmp_gt_u32 s[{sEX}:{sEX + 1}], 24, v4
        v_add_u32 v4, s3, v4
        v_mul_u32_u24 v5, 43, v4
        v_lshrrev_b32 v5, 8, v5
        v_mul_u32_u24 v6, 6, v5
        v_sub_u32 v6, v4, v6
        v_and_b32 v5, 3, v5
        v_mul_u32_u24 v4, 6, v5
        v_add_u32 v4, v4, v6
        v_lshrrev_b32 v7, 5, v{vL}
        v_lshlrev_b32 v4, 4, v4
        v_lshl_add_u32 v4, v7, 9, v4
        s_and_b32 s3, s2, 7
        s_lshl_b32 s{sA}, s3, 10
        s_lshl_b32 s{sC}, s{sW}, 2
        s_add_u32 s{sA}, s{sA}, s{sC}
        s_add_u32 s{sA}, s{sA}, {WS_PROG}
        s_lshl_b32 s3, s3, 2
        v_add_u32 v5, s3, v5
        v_and_b32 v8, 1, v6
        v_lshl_add_u32 v5, v8, 5, v5
        v_lshlrev_b32 v5, 21, v5
        v_lshrrev_b32 v6, 1, v6
        v_mul_u32_u24 v6, {NL1 * 4096}, v6
        v_add_u32 v5, v5, v6
        v_lshlrev_b32 v7, 15, v7
        v_sub_u32 v5, v5, v7
        s_lshl_b32 s3, s{sW}, 10
        s_add_u32 s3, s3, {6144 * 256 + (NL2 - 8) * 4096}
        v_add_u32 v5, s3, v5
        v_lshrrev_b32 v6, 3, v{vL}
        v_lshlrev_b32 v6, 12, v6
        v_and_b32 v7, 7, v{vL}
        v_lshl_add_u32 v6, v7, 7, v6
        s_movk_i32 s{sOFF}, {rounds}
        {top}:
        buffer_load_dword v7, v4, {sr(RWS)}, s{sA} offen sc1
        s_waitcnt vmcnt(0)
        v_cmp_ne_u32 vcc, s{sTAG}, v7
        s_and_b64 vcc, vcc, s[{sEX}:{sEX + 1}]
        s_cbranch_scc0 {out}
        s_ff1_i32_b64 s3, vcc
        v_readlane_b32 s{sC}, v5, s3
        s_lshl_b64 exec, 1, s3
        buffer_store_dword v{vTAG}, v4, {sr(RWS)}, s{sA} offen
        s_mov_b64 exec, -1
        s_nop 2
        buffer_load_dword v8, v6, {sr(R1)}, s{sC} offen
        s_waitcnt vmcnt(0)
        s_sub_u32 s{sOFF}, s{sOFF}, 1
        s_cmp_lg_u32 s{sOFF}, 0
        s_cbranch_scc1 {top}
        {out}:
        """)

    def allrows(self, op, r, t):
        for sw in ("v_permlane16_swap_b32", "v_permlane32_swap_b32"):
            self.a(f"v_mov_b32 v{t}, v{r}\n{sw} v{t}, v{r}\n{op} v{r}, v{r}, v{t}")

    def role_a(self, typ):
        a, o = self.a, self.o
        a.vmreset()
        NL1 = o["NL1"]; NL2 = 128 - 2 * NL1
        NL = NL1 if typ == 1 else NL2
        NG = (NL + 3) // 4
        vQ, vP, vSC, vGA, vK, vX0, vX1 = 36, 40, 44, 56, 72, 248, 252
        assert NL <= 46
        vO1, vO2 = 23, 0
        cnt = dict(u=0)
        def weight(t):
            if t in ("q", "qb", "id", "x1", None): return 0
            if t == "warm": return 8
            if t == "w0" and typ == 2:
                cnt["u"] += 1
                return int(cnt["u"] <= 16 - o["bu"])
            return 1
        self.trace_begin(23, weight)
        sROT = sEX
        RED0, RED1, QT, QT2, QO, CNT, ST, OP, UKB = 0, 4096, 8192, 10240, 12288, 13312, 13440, 14336, 16384
        a(f"v_mov_b32 v6, 0\nv_mov_b32 v7, 0\nds_write_b64 v6, v[6:7] offset:{CNT}\nds_write_b64 v6, v[6:7] offset:{CNT + 8}\nds_write_b64 v6, v[6:7] offset:{CNT + 16}")
        if o.get("holdat"): self.stamp(20)
        a("s_waitcnt lgkmcnt(0)")
        if o.get("holdat"): self.stamp(21)
        a(f"s_load_dword s{sTAG}, s[{P_WS}:{P_WS + 1}], 0")
        if typ == 1:
            self.srd(R0, P_BQ, 1 << 22)
            self.srd(R1, P_WQ, 1 << 22)
            a(f"""
            s_sub_u32 s{sI}, s{sI}, 2
            s_lshl_b32 s3, s{sI}, 2
            s_add_u32 s3, s3, s{sW}
            s_lshl_b32 s{sOFF}, s3, 18
            s_lshl_b32 s{sA}, s{sH}, 8
            s_add_u32 s{sOFF}, s{sOFF}, s{sA}
            s_lshl_b32 s3, s3, 6
            v_lshrrev_b32 v4, 3, v{vN}
            v_lshlrev_b32 v4, 10, v4
            v_lshl_add_u32 v4, v{vG}, 4, v4
            v_add_u32 v4, s3, v4
            v_lshlrev_b32 v{vQ}, 16, v{vG}
            v_lshl_add_u32 v{vQ}, v{vN}, 4, v{vQ}
            s_xor_b32 s{sOF2}, s{sOFF}, {o['hsh'] * 256}
            """)
            a.vm(f"global_load_dwordx4 {vr(vX0)}, v4, s[{P_BX}:{P_BX + 1}]", "w0")
            for j in range(8):
                a.vm(f"buffer_load_dwordx4 {ar(192 + 4 * j)}, v{vQ}, {sr(R0)}, s{sOFF} offen nt", "w0")
                if j < 7: a(f"s_add_u32 s{sOFF}, s{sOFF}, 0x2000")
            a.vm(f"global_load_dwordx4 {vr(vX1)}, v4, s[{P_AX}:{P_AX + 1}]", "x1")
        else:
            self.srd(R0, P_UK, 1 << 22)
            a(f"""
            s_lshl_b32 s3, s{sB}, 2
            s_add_u32 s3, s3, s{sW}
            s_lshl_b32 s{sOFF}, s3, 19
            s_lshl_b32 s{sA}, s{sH}, 8
            s_add_u32 s{sOFF}, s{sOFF}, s{sA}
            v_xor_b32 v4, v{vG}, v{vN}
            v_lshlrev_b32 v5, 13, v{vG}
            s_lshl_b32 s{sC}, s{sW}, 14
            s_add_u32 s{sC}, s{sC}, {UKB}
            """)
            for j in range(4):
                a(f"v_xor_b32 v6, {4 * j}, v4\nv_lshl_add_u32 v{vQ + j}, v6, 4, v5")
            def ukload(j):
                a(f"s_add_u32 m0, s{sC}, {1024 * j}")
                a.vm(f"buffer_load_dwordx4 v{vQ + j % 4}, {sr(R0)}, s{sOFF} offen nt lds", "w0")
                if j < 15: a(f"s_add_u32 s{sOFF}, s{sOFF}, 0x8000")
            for j in range(8): ukload(j)
        self.stamp(1)
        a(f"""
        s_lshl_b32 s3, s{sB}, 5
        s_add_u32 s3, s3, s{sH}
        s_lshl_b32 s3, s3, 21
        """)
        if typ == 1:
            a(f"s_mul_i32 s{sA}, s{sT3}, {NL1 * 4096}\ns_add_u32 s3, s3, s{sA}\ns_add_u32 s3, s3, {6144 * 256 + (NL2 - NL1) * 4096}")
        else:
            a(f"s_add_u32 s3, s3, {6144 * 256}")
        self.srd(R4, P_K, NL * 4096, "s3")
        self.srd(R5, P_V, NL * 4096, "s3")
        self.consts(LOG2E if o["mimicA"] else LOG2E * SCALE)
        a(f"""
        s_lshl_b32 s3, s{sW}, 10
        v_add_u32 v{vO2}, s3, v{vL16}
        """)
        self.selectors()
        if o["id0"]: self.id_load(70)
        if typ == 2:
            a(f"s_lshl_b32 s3, s{sB}, 5\ns_add_u32 s3, s3, s{sH}\ns_lshl_b32 s3, s3, 12\ns_add_u32 s3, s3, {WS_QP}")
            self.warm(0, 32, "s3")
        vWO = 23
        if typ == 2:
            a(f"s_lshl_b32 s3, s{sH}, 17")
            self.srd(R2, P_WO, 1 << 17, "s3")
        self.get_tag()
        if o.get("fine"): self.stamp(9)
        self.id_publish()
        if typ == 2: self.bit_tags(vA0)
        a("s_barrier")
        if o.get("fine"):
            self.stamp(10)
        if o.get("fine") == 2:
            a.vmwait("w0")
            self.stamp(11)
            a.vmwait("id")
            self.stamp(12)

        def vreg(j):
            return ar(4 * j)
        def ld_kv(which, j):
            def f():
                a(f"s_mov_b32 s{sOFF}, {j * 4096}")
                if which == "K":
                    a.vm(f"buffer_load_dwordx4 {vr(vK + 4 * j)}, v{vO2}, {sr(R4)}, s{sOFF} offen nt", f"K{j}")
                else:
                    a.vm(f"buffer_load_dwordx4 {vreg(j)}, v{vO2}, {sr(R5)}, s{sOFF} offen nt", f"V{j}")
            return f
        def ld_side(kind, j):
            def f():
                if kind == "U":
                    ukload(j)
                elif kind == "T":
                    a(f"s_lshl_b32 s3, s{sH}, 17")
                    self.srd(R2, P_WO, 1 << 17, "s3")
                    a(f"""
                    s_lshl_b32 s3, s{sI}, 1
                    s_lshr_b32 s{sA}, s{sW}, 1
                    s_add_u32 s3, s3, s{sA}
                    s_sub_u32 s3, 7, s3
                    s_lshl_b32 s3, s3, 13
                    s_and_b32 s{sA}, s{sW}, 1
                    s_lshl_b32 s{sA}, s{sA}, 16
                    s_add_u32 s3, s3, s{sA}
                    v_lshlrev_b32 v4, 7, v{vL}
                    """)
                    a.vm(f"buffer_load_dword v{vX0}, v4, {sr(R2)}, s3 offen", "T")
                elif kind == "A":
                    skip = a.label("nopace")
                    a(f"s_cmp_lg_u32 s{sW}, 0\ns_cbranch_scc1 {skip}\ns_mov_b64 exec, 1")
                    self.srd(R1, P_DBG, 256)
                    a(f"s_and_b32 s3, s{sI}, 1\ns_lshl_b32 s3, s3, 7" if typ == 1 else "s_mov_b32 s3, 64")
                    a(f"v_mov_b32 v55, 1\nv_mov_b32 v4, 0\nbuffer_atomic_add v55, v4, {sr(R1)}, s3 offen sc0")
                    a(f"s_mov_b64 exec, -1\n{skip}:")
                elif kind == "F":
                    a(f"s_mov_b64 exec, 1")
                    a.vm(f"buffer_store_dword v{vTAG}, v{vQ + 3}, {sr(RWS)}, 0 offen offset:{512 * j}", None)
                    a(f"s_mov_b64 exec, -1")
                elif kind == "W":
                    a(f"s_mov_b32 s{sOFF}, {4096 * j}")
                    a.vm(f"buffer_load_dwordx4 {ar(192 + 4 * j)}, v{vWO}, {sr(R2)}, s{sOFF} offen {o['wpol']}", "W")
                elif kind == "Q":
                    a.vm(f"buffer_load_dwordx4 {ar(224 + 4 * j)}, v{vQ}, {sr(R1)}, s{sOF2} offen nt", "w1")
                    if j < 7: a(f"s_add_u32 s{sOF2}, s{sOF2}, 0x2000")
                else:
                    if j == 0:
                        a(f"s_lshl_b32 s3, s{sH}, 2\ns_add_u32 s3, s3, s{sI}")
                        if kind == "C":
                            a(f"s_lshr_b32 s{sC}, s3, 1\ns_lshl_b32 s{sC}, s{sC}, 18\ns_and_b32 s3, s3, 1\ns_lshl_b32 s3, s3, 12")
                            a(f"s_add_u32 s{sC}, s{sC}, s3\ns_add_u32 s{sC}, s{sC}, {131072 + o['hx'] * 4096}")
                            self.srd(R0, P_CKV, 1 << 24)
                        else:
                            a(f"s_lshl_b32 s{sC}, s3, 15")
                            self.srd(R0, P_BO, 1 << 22)
                    a.vm(f"buffer_load_dwordx4 {ar(188)}, v{vO2}, {sr(R0)}, s{sC} offen {o['cpol'] if kind == 'C' else ''}", "t")
                    a(f"s_add_u32 s{sC}, s{sC}, {0x2000 if kind == 'C' else 0x1000}")
            return f
        R = lambda k, a0, a1: [(k, j) for j in range(a0, a1)]
        if typ == 1:
            parts = dict(C=R("C", 0, o["hc"] // 2), Q=R("Q", 0, 8))
            order = sum((parts[k] for k in o["seq"]), []) + R("K", 0, o["opos"]) + R("O", 0, o["no"]) + R("K", o["opos"], NL) + R("V", 0, NL)
        else:
            wp = min(NL, o["wpos"])
            order = R("U", 8, 16) + R("K", 0, NL) + R("V", 0, wp) + R("W", 0, 16) + R("V", wp, NL)
        if o["pace"]:
            assert NG <= 11
            order.insert(order.index(("K", NL - o["pace"][0])), ("A", 0))
        if typ == 1 and o["wt"] == 1:
            order.append(("T", 0))
        if o["help"]:
            for lvl in range(2):
                order.insert(order.index(("V", NL - 8 * (lvl + 1) - o["hlead"])), ("F", lvl))
        stream = [ld_kv(k, j) if k in "KV" else ld_side(k, j) for k, j in order]
        at = {it: i for i, it in enumerate(order)}
        pos = [0]
        paced = [False]
        def pace_read():
            a(f"""
            v_mov_b32 v4, 0
            ds_read_b32 v4, v4 offset:{CNT + 16}
            s_waitcnt lgkmcnt(0)
            v_readfirstlane_b32 s3, v4
            s_sub_u32 s3, s3, 1
            s_cmp_lt_u32 s3, {o['pace'][1]}
            s_cselect_b64 vcc, -1, 0
            s_cmp_lt_u32 s3, {o['pace'][2]}
            """)
        def pump(upto, lim=60):
            while pos[0] < min(upto, len(stream)):
                a.vmlimit(lim)
                if paced[0] and pos[0] < len(order) and order[pos[0]][0] in "KV":
                    l1, l2 = a.label("p"), a.label("p")
                    a(f"s_cbranch_scc0 {l2}\ns_cbranch_vccz {l1}\ns_waitcnt vmcnt({o['pace'][3] - 1})\n{l1}:\ns_waitcnt vmcnt({o['pace'][4] - 1})\n{l2}:")
                stream[pos[0]]()
                pos[0] += 1
        DE = o["DE"]

        if typ == 1:
            for mat, tag, x, base, red in ((1, "w0", vX0, 192, RED0), (0, "w1", vX1, 224, RED1)):
                if mat == 1:
                    a(f"s_mov_b32 s{sROT}, 0")
                    pump(DE, DE)
                else:
                    pump(at[("Q", 7)] + 1, DE)
                    self.id_load(vP)
                    pump(pos[0] + DE, DE)
                a.vmwait(tag)
                if mat == 1: self.stamp(2)
                self.selgemv(0, 8, self.build_perm(x), lambda j: ar(base + 4 * j), vD, True)
                a(f"ds_write_b128 v{vO2}, {vr(vD)} offset:{red}")
                if mat == 0:
                    self.id_check(vP)
                    late = a.label("nolate")
                    a(f"""
                    s_cmp_le_u32 s{sROT}, s{sLOC}
                    s_cbranch_scc1 {late}
                    buffer_store_dwordx4 {vr(vX0)}, v{vL16}, {sr(RWS)}, s{sROT + 1} offen sc1
                    {late}:
                    """)
                skip = a.label("nopub")
                self.last_arriver(CNT + 4 * mat, skip)
                for q in range(4):
                    a(f"ds_read_b128 {vr(vGA + 4 * q)}, v{vL16} offset:{red + 1024 * q}")
                a(f"""
                s_xor_b32 s3, s{sH}, {0 if mat else o['hsh']}
                s_lshl_b32 s3, s3, 2
                s_add_u32 s3, s3, s{sI}
                s_lshl_b32 s3, s3, 10
                s_add_u32 s3, s3, {WS_QP + mat * 32 * 4096}
                s_waitcnt lgkmcnt(0)
                """)
                for i in range(4):
                    a(f"v_add_f32 v{vGA + i}, v{vGA + i}, v{vGA + 4 + i}\nv_add_f32 v{vGA + 8 + i}, v{vGA + 8 + i}, v{vGA + 12 + i}")
                for i in range(4):
                    a(f"v_add_f32 v{x + i}, v{vGA + i}, v{vGA + 8 + i}")
                self.tag4(x)
                if mat == 1:
                    a(f"buffer_store_dwordx4 {vr(x)}, v{vL16}, {sr(RWS)}, s3 offen\ns_mov_b32 s{sROT}, 1\ns_mov_b32 s{sROT + 1}, s3")
                else:
                    self.gstore(f"buffer_store_dwordx4 {vr(x)}, v{vL16}, {sr(RWS)}, s3 offen")
                a(f"s_setprio 0\ns_nop 0\n{skip}:")
                if mat == 1:
                    self.stamp(3)
            self.stamp(4)
        else:
            pump(8 + o["pre2"], DE)
            issue = self.q_issue(1, vGA, "qb")
            a.vmlimit(o["qbw"])
            issue(True)
            pump(pos[0] + o["post2"], DE)
            a.vmwait("w0")
            if o.get("fine"): self.stamp(13)
            a(f"""
            v_xor_b32 v4, v{vG}, v{vN}
            v_lshl_add_u32 v5, v{vN}, 8, s{sC}
            """)
            for s in range(4):
                a(f"v_xor_b32 v6, {4 * s}, v4\nv_lshl_add_u32 v6, v6, 4, v5")
                for u in range(4):
                    a(f"ds_read_b128 {ar(192 + 16 * u + 4 * s)}, v6 offset:{4096 * u}")
            self.poll(issue, list(range(vGA, vGA + 16)), False, "qb")
            self.stamp(2)
            self.q_finish(vGA, QT2)
            a(f"""
            v_and_b32 v4, 1, v{vN}
            v_lshlrev_b32 v4, 8, v4
            v_lshl_add_u32 v4, v{vG}, 4, v4
            v_add_u32 v4, s3, v4
            s_waitcnt lgkmcnt(0)
            """)
            for s in range(4):
                a(f"ds_read_b128 {vr(vGA + 4 * s)}, v4 offset:{64 * s}")
            a("s_waitcnt lgkmcnt(0)")
            DU = 40
            for u in range(4):
                for s in range(4):
                    c = "0" if s == 0 else vr(DU + 4 * u)
                    a(f"v_mfma_f32_16x16x32_bf16 {vr(DU + 4 * u)}, {ar(192 + 16 * u + 4 * s)}, {vr(vGA + 4 * s)}, {c}")
            a(f"""
            s_lshl_b32 s3, s{sW}, 7
            v_and_b32 v4, 1, v{vN}
            v_lshlrev_b32 v4, 9, v4
            v_lshl_add_u32 v4, v{vG}, 3, v4
            v_add_u32 v4, s3, v4
            """)
            for u in range(4):
                a(f"v_cvt_pk_bf16_f32 v{DU + 4 * u}, v{DU + 4 * u}, v{DU + 4 * u + 1}")
                a(f"v_cvt_pk_bf16_f32 v{DU + 4 * u + 1}, v{DU + 4 * u + 2}, v{DU + 4 * u + 3}")
                a(f"ds_write_b64 v4, {vr(DU + 4 * u, 2)} offset:{QO + 32 * u}")
            a(f"""
            v_bfe_u32 v5, v{vL}, 3, 1
            v_and_b32 v6, 7, v{vL}
            v_lshlrev_b32 v6, 4, v6
            v_lshl_add_u32 v4, v5, 9, v6
            v_add_u32 v4, s3, v4
            ds_read_b128 {vr(vGA)}, v4 offset:{QO}
            v_lshl_add_u32 v4, v5, {15 + o['lq']}, v6
            s_lshl_b32 s{sA}, s{sH}, 1
            s_add_u32 s{sA}, s{sA}, s{sB}
            s_lshl_b32 s{sA}, s{sA}, {9 + o['lq']}
            s_add_u32 s{sA}, s{sA}, s3
            s_and_b32 s3, s3, {0x100 * o['lq']}
            s_add_u32 s3, s3, s{sA}
            s_add_u32 s3, s3, {WS_QA}
            s_waitcnt lgkmcnt(0)
            """)
            for k in range(4):
                a(f"v_bfi_b32 v{vGA + k}, s{sBIT}, v{vA0 + k}, v{vGA + k}")
            a(f"""
            s_mov_b64 exec, 0xffff
            buffer_store_dwordx4 {vr(vGA)}, v4, {sr(RWS)}, s3 offen sc1
            s_mov_b64 exec, -1
            s_nop 0
            """)
            self.stamp(3)

        D = o["D"]
        if typ == 2: self.p_wave(sB, vWO)
        if typ == 2 and o["pw"][0] == 2:
            pump(pos[0] + o["pw"][1], DE)
            a.vmlimit(1)
            a(f"s_lshl_b32 s3, s{sH}, 1\ns_add_u32 s3, s3, s{sB}\ns_lshl_b32 s3, s3, 2\ns_add_u32 s3, s3, s{sW}\ns_lshl_b32 s3, s3, 13\ns_add_u32 s3, s3, {WS_PART}\nv_lshlrev_b32 v4, 7, v{vL}")
            a.vm(f"buffer_load_dword v{vP + 2}, v4, {sr(RWS)}, s3 offen", "warm")
        pump(at[("K", o["qpos"][typ - 1])], DE)
        self.id_load(vP)
        issue = self.q_issue(0, vGA, "q")
        issue(True)
        pump(pos[0] + D)
        self.poll(issue, list(range(vGA, vGA + 16)), False, "q")
        self.stamp(5)
        self.id_check(vP)
        self.q_finish(vGA, QT)
        a(f"""
        s_lshl_b32 s{sA}, s{sB}, 8
        s_add_u32 s3, s3, s{sA}
        v_lshl_add_u32 v4, v{vN}, 4, s3
        s_waitcnt lgkmcnt(0)
        ds_read_b128 {vr(vQ)}, v4
        s_waitcnt lgkmcnt(0)
        """)
        dm = "row_mask:0xf bank_mask"
        for G in range(NG):
            nj = min(4, NL - 4 * G)
            if pos[0] >= at[("K", 4 * G + nj - 1)] + 1 + D:
                pump(pos[0] + o["cu"], D + 2)
            pump(at[("K", 4 * G + nj - 1)] + 1 + D)
            a.vmwait(f"K{4 * G + nj - 1}")
            if o["pace"] and G == (NL - o["pace"][0]) // 4:
                skip = a.label("nopace")
                a(f"s_cmp_lg_u32 s{sW}, 0\ns_cbranch_scc1 {skip}\ns_mov_b64 exec, 1")
                a(f"v_add_u32 v55, 1, v55\nv_mov_b32 v4, 0\nds_write_b32 v4, v55 offset:{CNT + 16}")
                a(f"s_mov_b64 exec, -1\n{skip}:")
            for jj in range(nj, 4):
                a(f"v_mov_b32 v{vP + jj}, {fbits(-1e30)}")
            for e in range(4):
                for jj in range(nj):
                    k = vK + 4 * (4 * G + jj) + e
                    if e == 0: a(f"v_dot2_f32_bf16 v{vP + jj}, v{k}, v{vQ}, 0")
                    else: a(f"v_dot2c_f32_bf16 v{vP + jj}, v{k}, v{vQ + e}")
            S = vSC + G
            a(f"""
            v_add_f32_dpp v{vP}, v{vP}, v{vP} row_ror:8 {dm}:0x3
            v_add_f32_dpp v{vP + 1}, v{vP + 1}, v{vP + 1} row_ror:8 {dm}:0x3
            v_add_f32_dpp v{vP}, v{vP + 2}, v{vP + 2} row_ror:8 {dm}:0xc
            v_add_f32_dpp v{vP + 1}, v{vP + 3}, v{vP + 3} row_ror:8 {dm}:0xc
            v_add_f32_dpp v{S}, v{vP}, v{vP} row_shl:4 {dm}:0x5
            v_add_f32_dpp v{S}, v{vP + 1}, v{vP + 1} row_shr:4 {dm}:0xa
            v_add_f32_dpp v{S}, v{S}, v{S} quad_perm:[1,0,3,2] {dm}:0xf
            v_add_f32_dpp v{S}, v{S}, v{S} quad_perm:[2,3,0,1] {dm}:0xf
            """)
            if o["mimicA"]:
                a(f"""
                v_cvt_pk_bf16_f32 v{S}, v{S}, v{S}
                v_and_b32 v{S}, 0xffff0000, v{S}
                v_mul_f32 v{S}, {fbits(SCALE)}, v{S}
                v_cvt_pk_bf16_f32 v{S}, v{S}, v{S}
                v_and_b32 v{S}, 0xffff0000, v{S}
                """)
            a(f"v_mov_b32 v8, v{S}" if G == 0 else f"v_max_f32 v8, v8, v{S}")
        self.stamp(6)
        a(f"""
        v_max_f32_dpp v8, v8, v8 row_ror:4 {dm}:0xf
        v_max_f32_dpp v8, v8, v8 row_ror:8 {dm}:0xf
        """)
        self.allrows("v_max_f32", 8, 7)
        a(f"v_mul_f32 v8, s{sCST}, v8")
        for G in range(NG):
            a(f"v_fma_f32 v{vSC + G}, v{vSC + G}, s{sCST}, -v8")
        for G in range(NG):
            a(f"v_exp_f32 v{vSC + G}, v{vSC + G}")
        a(f"v_add_f32 v5, v{vSC}, v{vSC + 1}")
        for G in range(2, NG):
            a(f"v_add_f32 v5, v5, v{vSC + G}")
        for G in range(NG):
            a(f"v_cvt_pk_bf16_f32 v{vSC + G}, v{vSC + G}, v{vSC + G}")
        a(f"""
        v_add_f32_dpp v5, v5, v5 row_ror:4 {dm}:0xf
        v_add_f32_dpp v5, v5, v5 row_ror:8 {dm}:0xf
        """)
        self.allrows("v_add_f32", 5, 7)
        a(f"""
        s_lshl_b32 s3, s{sW}, 2
        s_add_u32 s3, s3, {ST}
        v_mov_b32 v7, s3
        ds_write2_b32 v7, v8, v5 offset0:0 offset1:4
        s_lshl_b32 s{sA}, s{sH}, 1
        s_add_u32 s{sA}, s{sA}, s{sB}
        s_mul_i32 s{sA}, s{sA}, 3
        s_add_u32 s{sA}, s{sA}, s{sT3}
        s_lshl_b32 s{sA}, s{sA}, 10
        s_add_u32 s{sOF2}, s{sA}, {WS_OREC}
        v_mov_b32 v{vQ + 1}, 0
        """)
        skip = a.label("nostat")
        self.last_arriver(CNT + 12, skip)
        m, l = vGA, vGA + 4
        a(f"""
        ds_read_b128 {vr(m)}, v{vQ + 1} offset:{ST}
        ds_read_b128 {vr(l)}, v{vQ + 1} offset:{ST + 16}
        v_mov_b32 v6, s{sTAG}
        v_mov_b32 v7, s{sTAG}
        s_waitcnt lgkmcnt(0)
        v_max3_f32 v4, v{m}, v{m + 1}, v{m + 2}
        v_max_f32 v4, v4, v{m + 3}
        """)
        for i in range(4): a(f"v_sub_f32 v{m + i}, v{m + i}, v4")
        for i in range(4): a(f"v_exp_f32 v{m + i}, v{m + i}")
        a(f"v_mul_f32 v5, v{l}, v{m}")
        for q in range(1, 4): a(f"v_fmac_f32 v5, v{l + q}, v{m + q}")
        a(f"ds_write_b128 v{vQ + 1}, {vr(m)} offset:{ST + 32}\ns_mov_b64 exec, 1")
        self.gstore(f"buffer_store_dwordx4 v[4:7], v{vQ + 1}, {sr(RWS)}, s{sOF2} offen offset:512")
        a(f"s_mov_b64 exec, -1\n{skip}:")
        self.stamp(7)
        if o["help"]:
            assert pos[0] <= at[("F", 1)]
            a(f"""
            s_and_b32 s3, s2, 7
            s_lshl_b32 s3, s3, 6
            s_lshr_b32 s{sA}, s2, 3
            s_add_u32 s3, s3, s{sA}
            s_lshl_b32 s3, s3, 2
            s_add_u32 s3, s3, s{sW}
            s_lshl_b32 s3, s3, 2
            s_add_u32 s3, s3, {WS_PROG}
            v_mov_b32 v{vQ + 3}, s3
            """)
        if typ == 2:
            vT = vK
            P = self.p_setup(vK + 16, R1)
            a(f"""
            s_mul_i32 s{sA}, s{sH}, 6144
            s_add_u32 s{sA}, s{sA}, {WS_OREC}
            s_add_u32 s{sC}, s{sA}, 3072
            v_min_u32 v5, 2, v{vG}
            v_lshlrev_b32 v5, 10, v5
            v_lshrrev_b32 v6, 3, v{vN}
            v_mul_u32_u24 v6, 3072, v6
            v_add_u32 v{vT + 14}, v6, v5
            v_lshl_add_u32 v5, v{vN}, 4, v5
            s_lshl_b32 s3, s{sEX + 1}, 8
            v_add_u32 v{vT + 15}, s3, v5
            v_mov_b32 v{vQ + 2}, {WS_ZOK}
            """)
            def stld(tr=False):
                for t in (f"buffer_load_dwordx4 {vr(vT + 8)}, v{vT + 14}, {sr(RWS)}, s{sA} offen offset:512 sc1",
                          f"buffer_load_dwordx2 {vr(vT + 12, 2)}, v{vQ + 2}, {sr(RWS)}, 0 offen sc1"):
                    if tr: a.vm(t, "st")
                    else: a(t)
            stream.append(lambda: stld(True))
        def before(j):
            cap = at[("V", NL - 1)] + 1 + (max(0, j - (NL - o["wlead"])) if o["wlead"] < 99 else 99)
            if j % 4 == 0 or j > NL - o["wlead"]:
                pump(min(cap, at[("V", min(j + 3, NL - 1))] + 1 + min(o["DV"], D + o["dvr"] * (j // 4 + 1))))
            if j >= NL - max(4, o["wlead"] % 99): a.vmwait(f"V{j}")
            elif j % 4 == 0: a.vmwait(f"V{j + 3}")
        a(f"""
        v_and_b32 v4, 1, v{vG}
        v_lshlrev_b32 v5, 5, v{vN}
        v_lshl_add_u32 v5, v4, 4, v5
        s_lshl_b32 s3, s{sW}, 9
        v_add_u32 v5, s3, v5
        v_mov_b32 v{vQ}, v5
        """)
        if o["pace"]:
            pace_read()
            paced[0] = True
        self.selgemv(0, NL, self.build_dpp(lambda j: (vSC + j // 4, 4 * (j % 4))), vreg, vD, True, before)
        paced[0] = False
        self.stamp(8)
        m, l, g = vP, vSC, vGA
        done = a.label("done")
        a(f"ds_write_b128 v{vQ}, {vr(vD)} offset:{OP}")
        self.last_arriver(CNT + 8, done)
        a(f"ds_read_b128 {vr(m)}, v{vQ + 1} offset:{ST + 32}")
        for q in range(4):
            a(f"ds_read_b128 {vr(g + 4 * q)}, v{vL16} offset:{OP + 512 * q}")
        a("s_mov_b32 exec_hi, 0")
        for q in range(4):
            a(f"s_waitcnt lgkmcnt({3 - q})")
            for i in range(4):
                a(f"{'v_fmac_f32' if q else 'v_mul_f32'} v{vD + i}, v{g + 4 * q + i}, v{m + q}")
        self.tag4(vD)
        self.gstore(f"buffer_store_dwordx4 {vr(vD)}, v{vL16}, {sr(RWS)}, s{sOF2} offen")
        a(f"s_mov_b64 exec, -1\n{done}:")
        pump(len(stream))
        if typ == 2:
            self.stamp(9)
            self.poll(stld, [vT + 10, vT + 11, vT + 12, vT + 13], True, "st")
            def old(tr=False):
                for b in range(2):
                    t = f"buffer_load_dwordx4 {vr(vT + 4 * b)}, v{vT + 15}, {sr(RWS)}, s{(sA, sC)[b]} offen sc1"
                    if tr: a.vm(t, "o")
                    else: a(t)
            old(True)
            a(f"v_mov_b32 v5, v{vT + 8}")
            self.allrows("v_max_f32", 5, 7)
            a(f"""
            v_sub_f32 v5, v{vT + 8}, v5
            v_exp_f32 v5, v5
            v_cmp_gt_u32 vcc, 3, v{vG}
            v_cndmask_b32 v6, 0, v5, vcc
            v_mul_f32 v5, v6, v{vT + 9}
            """)
            self.allrows("v_add_f32", 5, 7)
            a(f"""
            v_rcp_f32 v5, v5
            v_mul_f32 v5, v5, v6
            v_mov_b32_dpp v6, v5 row_newbcast:0 {dm}:0xf
            v_mov_b32_dpp v7, v5 row_newbcast:8 {dm}:0xf
            """)
            self.poll(old, list(range(vT, vT + 8)), False, "o")
            self.stamp(10)
            for i in range(8):
                a(f"v_and_b32 v{vT + i}, s{sHIGH}, v{vT + i}")
            for i in range(8):
                a(f"v_mul_f32 v{vT + i}, v{6 + i // 4}, v{vT + i}")
            for i in range(0, 8, 2):
                a(f"v_permlane16_swap_b32 v{vT + i}, v{vT + i + 1}")
            for i in range(0, 8, 2):
                a(f"v_add_f32 v{vT + i}, v{vT + i}, v{vT + i + 1}")
            a(f"""
            v_permlane32_swap_b32 v{vT}, v{vT + 2}
            v_permlane32_swap_b32 v{vT + 4}, v{vT + 6}
            v_add_f32 v{vT}, v{vT}, v{vT + 2}
            v_add_f32 v{vT + 4}, v{vT + 4}, v{vT + 6}
            v_cvt_pk_bf16_f32 v{vT}, v{vT}, v{vT + 4}
            """)
            self.p_run(P, vT, 192, 0, 11)
        elif o["wt"] == 2:
            ld_side("T", 0)()
        elif o["help"]:
            self.stamp(9)
            self.helper(o["help"])
        self.finish()

    def role_b(self):
        a, o = self.a, self.o
        a.vmreset()
        self.inb = True
        if o.get("bstop") == -1:
            a("s_waitcnt lgkmcnt(0)")
            self.finish()
        vDM, vH1, vQK, vTR, vW1, vMX, vLS, vHL, vHD = 36, 40, 44, 52, 60, 63, 64, 65, 66
        vSS, vFR, vO, vUV, vQQ, vPK = 72, 88, 112, 176, 240, 248
        QB = 131072
        PB, MXB, LSB, XC, RED, XT, FIN = QB, QB + 8192, QB + 9216, QB + 10240, QB + 12288, QB + 16384, QB + 20480
        dm = "row_mask:0xf bank_mask"
        sS = sT3
        cnt = dict(c=0)
        def weight(t):
            if t and t[0] == "c":
                cnt["c"] += 1
                return int(not (32 + o["hx"] < cnt["c"] <= 32 + o["hx"] + o["hc"]))
            return int(t in ("u", "uv", "bo"))
        self.trace_begin(69, weight)
        a(f"""
        s_lshl_b32 s3, s{sW}, 2
        s_lshl_b32 s{sA}, s{sW}, 10
        v_xor_b32 v4, s3, v{vL}
        s_lshl_b32 s{sC}, s{sW}, 8
        v_lshlrev_b32 v5, 2, v{vG}
        v_xor_b32 v5, v5, v{vN}
        v_lshlrev_b32 v6, 10, v{vG}
        v_add_u32 v6, s{sC}, v6
        """)
        for j in range(4):
            a(f"v_xor_b32 v7, {j}, v4\nv_lshl_add_u32 v{vDM + j}, v7, 4, s{sA}")
            a(f"v_xor_b32 v7, {j}, v5\nv_lshl_add_u32 v{vH1 + j}, v7, 4, v6")
        a(f"v_lshl_add_u32 v{vW1}, v{vN}, 4, v6")
        if o.get("holdat"): self.stamp(20)
        a("s_waitcnt lgkmcnt(0)")
        if o.get("holdat"): self.stamp(21)
        a(f"s_load_dword s{sTAG}, s[{P_WS}:{P_WS + 1}], 0")
        a(f"s_lshl_b32 s3, s{sI}, 18")
        self.srd(R0, P_CKV, 1 << 18, "s3")
        a(f"s_mov_b32 s{sOFF}, 0")
        def dma(j):
            a.vmlimit(o["DB"] - 1)
            a(f"s_add_u32 m0, s{sOFF}, s{sA}")
            a.vm(f"buffer_load_dwordx4 v{vDM + j % 4}, {sr(R0)}, s{sOFF} offen nt lds", "c0")
            a(f"s_add_u32 s{sOFF}, s{sOFF}, 0x1000")
        c1 = [0]
        def c1load(n):
            for j in range(c1[0], min(32, c1[0] + n)):
                a(f"s_mov_b32 s3, {131072 + 4096 * j}")
                a.vm(f"buffer_load_dwordx4 {ar(128 + 4 * j)}, v{vH1 + j % 4}, {sr(R0)}, s3 offen nt", f"c{j}")
                c1[0] = j + 1
        if o["bu"]:
            self.srd(R1, P_UK, 1 << 22)
            a(f"""
            s_and_b32 s3, s{sI}, 1
            s_lshl_b32 s3, s3, 2
            s_add_u32 s3, s3, s{sW}
            s_lshl_b32 s3, s3, 19
            s_lshr_b32 s{sH}, s{sI}, 1
            s_lshl_b32 s{sOF2}, s{sH}, 8
            s_add_u32 s3, s3, s{sOF2}
            s_add_u32 s3, s3, {0x80000 - 0x8000 * o['bu']}
            v_lshlrev_b32 v4, 13, v{vG}
            v_lshl_add_u32 v4, v{vN}, 4, v4
            """)
            for j in range(o["bu"]):
                a.vm(f"buffer_load_dwordx4 {vr(vPK)}, v4, {sr(R1)}, s3 offen {o['upol']}", "u")
                if j < o["bu"] - 1: a("s_add_u32 s3, s3, 0x8000")
        for j in range(8 - o["bu"]): dma(j)
        self.consts(LOG2E * SCALE)
        self.selectors()
        a(f"""
        s_lshr_b32 s{sB}, s{sI}, 5
        s_and_b32 s{sS}, s{sI}, 31
        s_lshr_b32 s{sH}, s{sI}, 1
        v_add_u32 v{vW1 + 1}, 0x10000, v{vW1}
        v_lshrrev_b32 v{vHL}, 5, v{vL}
        v_and_b32 v{vHD}, 31, v{vL}
        v_and_b32 v4, 3, v{vL}
        v_bfe_u32 v5, v{vL}, 2, 2
        v_lshl_add_u32 v6, v4, 2, v5
        v_xor_b32 v6, v6, v{vHL}
        v_lshlrev_b32 v7, 10, v{vHD}
        s_lshl_b32 s3, s{sW}, 15
        """)
        for s in range(8):
            a(f"v_xor_b32 v8, {2 * s}, v6\nv_lshl_add_u32 v8, v8, 4, v7\nv_add_u32 v{vQK + s}, s3, v8\nv_add_u32 v{vQQ + s}, {QB}, v8")
        a(f"""
        v_bfe_u32 v6, v{vL}, 4, 1
        v_lshrrev_b32 v7, 1, v4
        v_lshl_add_u32 v6, v6, 1, v7
        v_xor_b32 v6, v6, v{vHL}
        v_lshl_add_u32 v6, v5, 2, v6
        v_lshl_add_u32 v7, v{vHL}, 2, v5
        v_lshlrev_b32 v7, 10, v7
        v_and_b32 v8, 1, v{vL}
        v_lshl_add_u32 v7, v8, 3, v7
        v_add_u32 v7, s{sC}, v7
        """)
        for T in range(4):
            for z in range(2):
                a(f"v_xor_b32 v8, {4 * T + 2 * z}, v6\nv_lshl_add_u32 v{vTR + 2 * T + z}, v8, 4, v7")
                if z: a(f"v_add_u32 v{vTR + 2 * T + z}, 0x2000, v{vTR + 2 * T + z}")
        self.get_tag()
        self.srd(R1, P_UV, 1 << 22)
        a(f"s_lshl_b32 s3, s{sH}, 17")
        self.srd(R2, P_BO, 1 << 17, "s3")
        vTB = 104
        self.id_publish()
        self.bit_tags(vTB)
        noz = a.label("nozero")
        a(f"""
        s_lshl_b32 s3, s{sI}, 2
        s_add_u32 s3, s3, s{sW}
        s_cmp_lg_u32 s3, 1
        s_cbranch_scc1 {noz}
        v_bfe_u32 v8, v{vL}, 2, 2
        v_lshlrev_b32 v8, 7, v8
        v_lshl_add_u32 v8, v{vG}, {o['la'].bit_length() - 1}, v8
        v_and_b32 v4, 3, v{vL}
        v_lshl_add_u32 v8, v4, 4, v8
        v_mov_b32 v4, 0
        v_mov_b32 v5, 0
        v_mov_b32 v6, 0
        v_mov_b32 v7, 0
        """)
        for k in range(10):
            a(f"s_mov_b32 s3, {WS_ACC + o['lo'] + 4 * o['la'] * k}\nbuffer_store_dwordx4 v[4:7], v8, {sr(RWS)}, s3 offen sc1")
        a(f"s_nop 1\n{noz}:")
        a(f"s_mul_i32 s3, s{sI}, 3072\ns_add_u32 s3, s3, {WS_OREC}")
        self.warm(0, 24, "s3")
        a(f"s_lshl_b32 s3, s{sI}, 10\ns_add_u32 s3, s3, {WS_CREC}")
        self.warm(1, 8, "s3")
        a(f"s_lshl_b32 s3, s{sI}, 9\ns_add_u32 s3, s3, {WS_STATB}")
        self.warm(2, 4, "s3")
        a(f"s_lshr_b32 s3, s{sI}, 3\ns_lshl_b32 s3, s3, 8\ns_add_u32 s3, s3, {WS_RDY}")
        self.warm(3, 2, "s3")
        if o["help"]:
            a(f"s_lshr_b32 s3, s{sI}, 3\ns_lshl_b32 s3, s3, 10\ns_add_u32 s3, s3, {WS_PROG}")
            self.warm(2, 8, "s3")
        for j in range(8 - o["bu"], 32): dma(j)
        for j in range(o["he"]):
            a.vmlimit(o["DB"] - 1)
            c1load(1)
        a(f"""
        s_lshl_b32 s{sOFF}, s{sB}, {15 + o['lq']}
        s_add_u32 s{sOFF}, s{sOFF}, {WS_QA}
        s_lshl_b32 s3, s{sW}, {10 + o['lq']}
        v_mul_u32_u24 v5, {256 * o['lq']}, v{vG}
        v_add_u32 v5, v5, v{vL16}
        v_add_u32 v5, s3, v5
        """)
        for j in range(4):
            a(f"v_add_u32 v{vDM + j}, {QB}, v{vDM + j}")
        def qld():
            for j in range(8):
                a(f"s_add_u32 s3, s{sOFF}, {(4096 << o['lq']) * j}\nbuffer_load_dwordx4 {vr(vSS + 4 * j)}, v5, {sr(RWS)}, s3 offen sc1")
        self.id_load(vPK)
        if o["qsel"]:
            top, out = a.label("qtop"), a.label("qout")
            a(f"s_movk_i32 s{sOF2}, 0xff\n{top}:")
            for j in range(8):
                sk = a.label("qs")
                a(f"s_bitcmp0_b32 s{sOF2}, {j}\ns_cbranch_scc1 {sk}\ns_add_u32 s3, s{sOFF}, {(4096 << o['lq']) * j}")
                a(f"buffer_load_dwordx4 {vr(vSS + 4 * j)}, v5, {sr(RWS)}, s3 offen sc1\n{sk}:")
            a("s_waitcnt vmcnt(0)")
            a.vmreset()
            for j in range(8):
                sk = a.label("qc")
                r = vSS + 4 * j
                a(f"s_bitcmp0_b32 s{sOF2}, {j}\ns_cbranch_scc1 {sk}")
                for k in range(4):
                    a(f"v_xor_b32 v{r + k}, v{vTB + k}, v{r + k}")
                a(f"""
                v_or3_b32 v4, v{r}, v{r + 1}, v{r + 2}
                v_or_b32 v4, v4, v{r + 3}
                v_and_b32 v4, s{sBIT}, v4
                v_cmp_ne_u32 vcc, 0, v4
                s_cbranch_vccnz {sk}
                s_bitset0_b32 s{sOF2}, {j}
                ds_write_b128 v{vDM + j % 4}, {vr(r)} offset:{4096 * j}
                {sk}:
                """)
            a(f"""
            s_cmp_eq_u32 s{sOF2}, 0
            s_cbranch_scc1 {out}
            s_cmp_eq_u32 s{sSPIN}, 0
            s_cbranch_scc1 {out}
            s_sub_u32 s{sSPIN}, s{sSPIN}, 1
            s_branch {top}
            {out}:
            """)
            self.stamp(2)
            self.id_check(vPK)
        else:
            self.poll_bits(qld, vSS, 32, vTB)
            self.stamp(2)
            self.id_check(vPK)
            for j in range(8):
                a(f"ds_write_b128 v{vDM + j % 4}, {vr(vSS + 4 * j)} offset:{4096 * j}")
        noz = a.label("noflag")
        a(f"""
        s_lshl_b32 s3, s{sI}, 2
        s_add_u32 s3, s3, s{sW}
        s_cmp_lg_u32 s3, 1
        s_cbranch_scc1 {noz}
        v_mov_b32 v8, s{sTAG}
        v_mov_b32 v4, {WS_ZOK}
        s_mov_b64 exec, 1
        buffer_store_dwordx2 v[8:9], v4, {sr(RWS)}, 0 offen sc1
        s_mov_b64 exec, -1
        {noz}:
        """)
        for k in range(4):
            a(f"v_mov_b32 v{vDM + k}, v{vTB + k}")
        vTB = vDM
        a(f"""
        s_and_b32 s3, s{sI}, 1
        s_lshl_b32 s3, s3, 2
        s_add_u32 s3, s3, s{sW}
        s_lshl_b32 s{sOFF}, s3, 19
        s_lshl_b32 s3, s{sH}, 8
        s_add_u32 s{sOFF}, s{sOFF}, s3
        v_lshlrev_b32 v4, 17, v{vG}
        v_lshl_add_u32 v4, v{vN}, 4, v4
        """)
        a("v_mov_b32 v67, v4")
        self.p_wave(sI, 68)
        wl = [0]
        def wload(n, lim=32):
            for i in range(wl[0], min(lim, wl[0] + n)):
                if i < 16:
                    a.vm(f"buffer_load_dwordx4 {vr(vUV + 4 * i)}, v67, {sr(R1)}, s{sOFF} offen nt", "uv")
                    if i < 15: a(f"s_add_u32 s{sOFF}, s{sOFF}, 0x2000")
                else:
                    a(f"s_mov_b32 s3, {4096 * (i % 16)}")
                    a.vm(f"buffer_load_dwordx4 {ar(128 + 4 * (i - 16))}, v68, {sr(R2)}, s3 offen nt", "bo")
                wl[0] = i + 1
        def bg(n, rnd, ks=-9):
            for _ in range(n):
                if c1[0] < 32: c1load(1)
                else: wload(1, min(o["wlim"], 32 if rnd else 16 + max(0, 4 * (ks - 1))))
        c1load(o["hq"])
        a("s_waitcnt lgkmcnt(0)\ns_barrier")
        self.stamp(3)

        for rnd in range(2):
            PF = 3 if rnd == 0 else 5
            def rd(s):
                if rnd == 0:
                    a(f"ds_read_b128 {ar(4 * s)}, v{vQQ + s % 8} offset:{256 * (s // 8)}")
                a(f"ds_read_b128 {vr(vFR + 4 * (s % 6))}, v{vQK + s % 8} offset:{256 * (s // 8)}")
            per = 2 if rnd == 0 else 1
            for s in range(PF): rd(s)
            for s in range(32):
                if s + PF < 32: rd(s + PF)
                left = min(PF, 31 - s)
                a(f"s_waitcnt lgkmcnt({left * per})")
                c = "0" if s == 0 else vr(vSS, 16)
                a(f"v_mfma_f32_32x32x16_bf16 {vr(vSS, 16)}, {vr(vFR + 4 * (s % 6))}, {ar(4 * s)}, {c}")
                if rnd == o["pw"][0] and s == o["pw"][1]:
                    a(f"s_lshl_b32 s3, s{sI}, 2\ns_add_u32 s3, s3, s{sW}\ns_lshl_b32 s3, s3, 13\ns_add_u32 s3, s3, {WS_PART}\nv_lshlrev_b32 v4, 7, v{vL}")
                    a.vm(f"buffer_load_dword v71, v4, {sr(RWS)}, s3 offen", "warm")
                if o["bq"][rnd] and s % (32 // o["bq"][rnd]) == 0: bg(1, rnd)
            if o.get("fine"): self.stamp((1, 13)[rnd])
            if rnd == 0:
                a("s_barrier")
            bg(o["bm"][rnd], rnd)
            a(f"""
            v_lshlrev_b32 v6, 4, v{vHD}
            v_add_u32 v6, {MXB + 512 * rnd}, v6
            s_lshl_b32 s3, s{sW}, 2
            v_add_u32 v7, s3, v6
            v_max3_f32 v4, v{vSS}, v{vSS + 1}, v{vSS + 2}
            """)
            for i in range(3, 15, 2):
                a(f"v_max3_f32 v4, v4, v{vSS + i}, v{vSS + i + 1}")
            a(f"""
            v_max_f32 v4, v4, v{vSS + 15}
            v_mov_b32 v5, v4
            v_permlane32_swap_b32 v4, v5
            v_max_f32 v4, v4, v5
            ds_write_b32 v7, v4
            s_waitcnt lgkmcnt(0)
            s_barrier
            ds_read_b128 {vr(vPK)}, v6
            s_lshl_b32 s3, s{sW}, 11
            s_add_u32 s3, s3, {PB}
            v_add_u32 v7, s3, v{vL16}
            s_waitcnt lgkmcnt(0)
            v_max3_f32 v4, v{vPK}, v{vPK + 1}, v{vPK + 2}
            v_max_f32 v4, v4, v{vPK + 3}
            v_mul_f32 v4, s{sCST}, v4
            """)
            if rnd == 0:
                a(f"v_mov_b32 v{vMX}, v4")
            else:
                a(f"v_max_f32 v4, v4, v{vMX}\nv_sub_f32 v8, v{vMX}, v4\nv_exp_f32 v8, v8\nv_mov_b32 v{vMX}, v4\nv_mul_f32 v{vLS}, v{vLS}, v8")
            a(f"v_mov_b32 v5, s{sCST}")
            for i in range(0, 16, 2):
                a(f"v_pk_fma_f32 {vr(vSS + i, 2)}, {vr(vSS + i, 2)}, v[4:5], v[4:5] op_sel:[0,1,0] op_sel_hi:[1,1,0] neg_lo:[0,0,1] neg_hi:[0,0,1]")
            for u in range(2):
                for i in range(8 * u, 8 * u + 8):
                    a(f"v_exp_f32 v{vSS + i}, v{vSS + i}")
                for i in range(4 * u, 4 * u + 4):
                    a(f"v_cvt_pk_bf16_f32 v{vPK + i}, v{vSS + 2 * i}, v{vSS + 2 * i + 1}")
                a(f"ds_write_b128 v7, {vr(vPK + 4 * u)} offset:{1024 * u}")
            for st in (8, 4, 2):
                for i in range(0, st, 2):
                    a(f"v_pk_add_f32 {vr(vSS + i, 2)}, {vr(vSS + i, 2)}, {vr(vSS + i + st, 2)}")
            if rnd == 0: a(f"v_add_f32 v{vLS}, v{vSS}, v{vSS + 1}")
            else: a(f"v_add_f32 v{vLS}, v{vLS}, v{vSS}\nv_add_f32 v{vLS}, v{vLS}, v{vSS + 1}")
            if rnd == 1:
                a(f"""
                v_mov_b32 v5, v{vLS}
                v_lshlrev_b32 v6, 4, v{vHD}
                v_add_u32 v6, {LSB}, v6
                v_permlane32_swap_b32 v5, v{vLS}
                s_lshl_b32 s3, s{sW}, 2
                v_add_f32 v5, v5, v{vLS}
                v_add_u32 v7, s3, v6
                ds_write_b32 v7, v5
                """)
            a(f"v_add_u32 v7, {PB}, v{vL16}")
            a("s_waitcnt lgkmcnt(0)\ns_barrier")
            if rnd == 1:
                skip = a.label("nostat")
                a(f"""
                s_cmp_lg_u32 s{sW}, 0
                s_cbranch_scc1 {skip}
                ds_read_b128 {vr(vPK + 4)}, v6
                v_mov_b32 v{vPK}, v{vMX}
                v_mov_b32 v{vPK + 2}, s{sTAG}
                v_mov_b32 v{vPK + 3}, s{sTAG}
                v_lshlrev_b32 v4, 7, v{vHD}
                s_lshr_b32 s3, s{sI}, 3
                s_lshl_b32 s3, s3, 8
                s_and_b32 s{sA}, s{sI}, 7
                s_add_u32 s3, s3, s{sA}
                s_lshl_b32 s3, s3, 4
                s_add_u32 s3, s3, {WS_STATB}
                s_waitcnt lgkmcnt(0)
                v_add_f32 v{vPK + 1}, v{vPK + 4}, v{vPK + 5}
                v_add_f32 v{vPK + 1}, v{vPK + 1}, v{vPK + 6}
                v_add_f32 v{vPK + 1}, v{vPK + 1}, v{vPK + 7}
                s_mov_b32 exec_hi, 0
                """)
                self.gstore(f"buffer_store_dwordx4 {vr(vPK)}, v4, {sr(RWS)}, s3 offen")
                a(f"s_mov_b64 exec, -1\n{skip}:")
            if o.get("fine"): self.stamp((6, 2)[rnd])
            bg(o["bs"][rnd], rnd)
            def bump(d):
                for i in range(8):
                    a(f"v_add_u32 v{vTR + i}, {d}, v{vTR + i}")
            if rnd == 0:
                bufs = [(72, 76), (92, 96), (vD, vQQ)]
                def reads(ks):
                    pb, cb = bufs[ks % 3]
                    L = [f"ds_read_b128 {vr(pb)}, v7 offset:{1024 * ks}"]
                    for T in range(4):
                        for z in range(2):
                            L.append(f"ds_read_b64_tr_b16 {vr(cb + 4 * T + 2 * z, 2)}, v{vTR + 2 * T + z} offset:{16384 * (ks % 4)}")
                    return L
                for t in reads(0) + reads(1): a(t)
                prev = 9
                for ks in range(8):
                    a(f"s_waitcnt lgkmcnt({prev})")
                    if ks == 2: bump("0x10000")
                    nx = reads(ks + 2) if ks < 6 else []
                    wr = [f"ds_write_b128 v{vW1 + j // 16}, {ar(128 + 4 * j)} offset:{4096 * (j % 16)}" for j in range(4 * ks, 4 * ks + 4)]
                    c1load(4 * ks + 4 - c1[0])
                    a.vmwait(f"c{4 * ks + 3}")
                    prev = min(15, len(nx) + (8 if o["w64"] else 4))
                    pb, cb = bufs[ks % 3]
                    cut = [0, 3, 5, 7, 9]
                    for T in range(4):
                        c = "0" if ks == 0 else vr(vO + 16 * T, 16)
                        a(f"v_mfma_f32_32x32x16_bf16 {vr(vO + 16 * T, 16)}, {vr(cb + 4 * T)}, {vr(pb)}, {c}")
                        if o["w64"]:
                            j = 4 * ks + T
                            for z in range(2):
                                a(f"ds_write_b64 v{vW1 + j // 16}, {ar(128 + 4 * j + 2 * z, 2)} offset:{4096 * (j % 16) + 8 * z}")
                        else:
                            a(wr[T])
                        for t in nx[cut[T]:cut[T + 1]]: a(t)
                        if o["bp"][0] and (4 * ks + T) % (32 // o["bp"][0]) == 0: bg(1, 0, ks)
                bump("0xffff0000")
                a("s_waitcnt lgkmcnt(0)\ns_barrier")
            else:
                vPF, ring = 72, [104, 108, vQQ, vQQ + 4, vA0, vA0 + 4]
                for ks in range(8):
                    a(f"ds_read_b128 {vr(vPF + 4 * ks)}, v7 offset:{1024 * ks}")
                for i in range(8):
                    a(f"v_add_u32 v{vQK + i}, 0x10000, v{vTR + i}")
                def rd2(n):
                    T, ks = divmod(n, 8)
                    base = vTR if ks < 4 else vQK
                    for z in range(2):
                        a(f"ds_read_b64_tr_b16 {vr(ring[n % 6] + 2 * z, 2)}, v{base + 2 * T + z} offset:{16384 * (ks % 4)}")
                    lg.extend([n, n])
                def scale(T):
                    return [f"v_pk_mul_f32 {vr(vO + 16 * T + i, 2)}, {vr(vO + 16 * T + i, 2)}, v[8:9] op_sel_hi:[1,0]" for i in range(0, 16, 2)]
                def pack(T):
                    L = []
                    for rq in range(4):
                        r = vO + 16 * T + 4 * rq
                        L += [f"v_cvt_pk_bf16_f32 v{r}, v{r}, v{r + 1}", f"v_cvt_pk_bf16_f32 v{r + 1}, v{r + 2}, v{r + 3}",
                              f"v_xor_b32 v{r + 2}, {16 * (4 * T + rq)}, v{vH1}", f"ds_write_b64 v{r + 2}, {vr(r, 2)}"]
                    return L
                lg = []
                for n in range(3): rd2(n)
                a(f"""
                v_and_b32 v4, 3, v{vL}
                v_bfe_u32 v5, v{vL}, 2, 2
                v_lshl_add_u32 v4, v4, 2, v5
                v_lshlrev_b32 v5, 10, v{vHD}
                v_lshl_add_u32 v5, v{vHL}, 3, v5
                v_lshl_add_u32 v4, v4, 4, v5
                v_add_u32 v{vH1}, s{sC}, v4
                """)
                for T in range(4 if o["sc"] == 0 else 1):
                    for t in scale(T): a(t)
                def scale1(T):
                    return [f"v_mul_f32 v{vO + 16 * T + i}, v{vO + 16 * T + i}, v8" for i in range(16)]
                for n in range(3, 5): rd2(n)
                for n in range(32):
                    T, ks = divmod(n, 8)
                    if n + 5 < 32: rd2(n + 5)
                    last = max(i for i, x in enumerate(lg) if x == n)
                    a(f"s_waitcnt lgkmcnt({min(15, len(lg) - 1 - last)})")
                    del lg[:last + 1]
                    a(f"v_mfma_f32_32x32x16_bf16 {vr(vO + 16 * T, 16)}, {vr(ring[n % 6])}, {vr(vPF + 4 * ks)}, {vr(vO + 16 * T, 16)}")
                    if ks == 0:
                        sc = [] if (T == 3 or o["sc"] == 0) else scale(T + 1) if o["sc"] == 1 else scale1(T + 1)
                        fill = (sc or [None] * 6) + (pack(T - 1) if T else [])
                        per = (len(fill) + 7) // 8
                    for t in fill[per * ks:per * ks + per]:
                        if t:
                            a(t)
                            if t.startswith("ds_"): lg.append(None)
                tail_pack = pack(3)
            self.stamp(5 + 2 * rnd)

        a(f"""
        s_lshl_b32 s{sS}, s{sI}, 2
        s_add_u32 s{sS}, s{sS}, s{sW}
        s_lshl_b32 s3, s{sS}, 7
        s_add_u32 s{sOF2}, s3, {WS_STATB}
        v_and_b32 v5, 1, v{vN}
        v_lshl_add_u32 v5, v5, 2, v{vG}
        v_lshlrev_b32 v5, 4, v5
        """)
        stld = f"buffer_load_dwordx4 {vr(vPK)}, v5, {sr(RWS)}, s{sOF2} offen sc1"
        a(f"""
        v_lshlrev_b32 v4, 2, v{vG}
        v_xor_b32 v4, v4, v{vN}
        v_lshlrev_b32 v7, 10, v{vG}
        v_lshl_add_u32 v7, v4, 4, v7
        v_add_u32 v{vQK}, s{sC}, v7
        """)
        for q in range(1, 4):
            a(f"v_xor_b32 v{vQK + q}, {16 * q}, v{vQK}")
        for t in tail_pack: a(t)
        for jj in range(8):
            a(f"ds_read_b128 {vr(vSS + 4 * jj)}, v{vQK + jj % 4} offset:{4096 * jj}")
        a(f"""
        s_lshr_b32 s{sOFF}, s{sI}, 3
        s_lshl_b32 s{sOFF}, s{sOFF}, 7
        s_add_u32 s{sOFF}, s{sOFF}, s{sW}
        s_lshl_b32 s{sOFF}, s{sOFF}, 3
        s_and_b32 s3, s{sI}, 7
        s_add_u32 s{sOFF}, s{sOFF}, s3
        s_lshl_b32 s{sOFF}, s{sOFF}, 8
        s_add_u32 s{sOFF}, s{sOFF}, {WS_PART}
        v_lshlrev_b32 v7, 13, v{vG}
        v_lshl_add_u32 v7, v{vN}, 4, v7
        """)
        a.vm(stld, "st")
        far, join = a.label("far"), a.label("join")
        a(f"""
        s_lshl_b32 s3, s{sS}, 3
        s_add_u32 s3, s3, {WS_RDY}
        v_mov_b32 v6, s3
        v_mov_b32 v8, s{sTAG}
        s_cmp_eq_u32 s{sLOC}, 0
        s_cbranch_scc1 {far}
        """)
        for pol in (o["spol"], " sc1"):
            for jj in range(8):
                a(f"s_waitcnt lgkmcnt({7 - jj})")
                for k in range(4):
                    a(f"v_bfi_b32 v{vSS + 4 * jj + k}, s{sBIT}, v{vTB + k}, v{vSS + 4 * jj + k}")
                a(f"buffer_store_dwordx4 {vr(vSS + 4 * jj)}, v7, {sr(RWS)}, s{sOFF} offen{pol}")
                if jj < 7: a(f"s_add_u32 s{sOFF}, s{sOFF}, 0x8000")
            a(f"s_mov_b64 exec, 1\nbuffer_store_dwordx2 v[8:9], v6, {sr(RWS)}, 0 offen{pol.replace(' nt', '')}\ns_mov_b64 exec, -1")
            a(f"s_branch {join}\n{far}:" if pol != " sc1" else f"{join}:")
        a.q += ["part"] * 9
        self.stamp(8)
        assert wl[0] >= 16
        a(f"""
        s_lshl_b32 s{sOFF}, s{sS}, 13
        s_add_u32 s{sOFF}, s{sOFF}, {WS_PART}
        """)
        self.poll(lambda: a(stld), [vPK + 2, vPK + 3], True, "st")
        a(f"s_add_u32 s{sOF2}, s{sOFF}, 0x1000")
        def pld(tr=False):
            for j in range(8):
                t = f"buffer_load_dwordx4 {vr(vSS + 4 * j)}, v{vL16}, {sr(RWS)}, s{(sOFF, sOF2)[j // 4]} offen offset:{1024 * (j % 4)} sc1{o['gpol']}"
                if tr: a.vm(t, "p")
                else: a(t)
        vR = vPK + 4
        a(f"v_max_f32_dpp v{vR}, v{vPK}, v{vPK} quad_perm:[1,0,3,2] {dm}:0xf")
        self.allrows("v_max_f32", vR, 6)
        a(f"v_sub_f32 v5, v{vPK}, v{vR}\nv_exp_f32 v5, v5\nv_mul_f32 v{vR + 1}, v5, v{vPK + 1}")
        a(f"v_add_f32_dpp v{vR + 1}, v{vR + 1}, v{vR + 1} quad_perm:[1,0,3,2] {dm}:0xf")
        self.allrows("v_add_f32", vR + 1, 6)
        a(f"""
        v_cvt_pk_bf16_f32 v{vPK}, v5, v5
        v_mov_b32 v{vR + 2}, s{sTAG}
        v_mov_b32 v{vR + 3}, s{sTAG}
        s_and_b32 s3, s{sS}, 31
        s_lshl_b32 s3, s3, 5
        s_lshr_b32 s{sA}, s{sI}, 3
        s_add_u32 s3, s3, s{sA}
        s_lshl_b32 s3, s3, 4
        s_add_u32 s3, s3, {WS_STAT2}
        v_mov_b32 v6, s3
        s_and_b32 s3, s{sS}, 31
        s_lshl_b32 s3, s3, 5
        s_add_u32 s3, s3, s{sA}
        s_lshl_b32 s3, s3, {8 + o['l2']}
        s_add_u32 s{sS}, s3, {WS_PART2}
        v_lshlrev_b32 v7, {11 + o['l2']}, v{vG}
        v_lshl_add_u32 v7, v{vN}, 4, v7
        """)
        bd = self.build_dpp(lambda j: (vPK, j))
        bd(0, vA0); bd(1, vA0 + 4)
        a(f"s_lshl_b32 s{sB}, s{sA}, 8\ns_add_u32 s{sB}, s{sB}, {WS_RDY}\nv_lshlrev_b32 v8, 3, v{vHD}")
        self.poll(lambda: a(f"buffer_load_dwordx2 {vr(vSS, 2)}, v8, {sr(RWS)}, s{sB} offen sc1"), [vSS, vSS + 1], True)
        self.stamp(4)
        self.poll_bits(pld, vSS, 32, vTB)
        self.stamp(10)
        for q in range(8):
            d = vO + 4 * (q % 4)
            a(f"v_mfma_f32_16x16x32_bf16 {vr(d)}, {vr(vA0 + 4 * (q // 4))}, {vr(vSS + 8 * (q % 4) + 4 * (q // 4))}, {'0' if q < 4 else vr(d)}")
        a(f"s_mov_b64 exec, 1\nbuffer_store_dwordx4 {vr(vR)}, v6, {sr(RWS)}, 0 offen sc1\ns_mov_b64 exec, -1")
        a(f"v_cmp_eq_u32 vcc, 1, v{vHL}")
        for i in range(8):
            a(f"v_cndmask_b32 v{vO + i}, v{vO + i}, v{vO + 8 + i}, vcc")
        for i in range(4):
            a(f"v_cvt_pk_bf16_f32 v{vD + i}, v{vO + 2 * i}, v{vO + 2 * i + 1}")
        a(f"v_permlane16_swap_b32 v{vD}, v{vD + 2}\nv_permlane16_swap_b32 v{vD + 1}, v{vD + 3}")
        for k in range(4):
            a(f"v_bfi_b32 v{vD + k}, s{sBIT}, v{vTB + k}, v{vD + k}")
        a(f"buffer_store_dwordx4 {vr(vD)}, v7, {sr(RWS)}, s{sS} offen sc1")
        wload(32, o["w2"][0])
        P = self.p_setup(vO + 16, R5)
        vIN = vQK + 2
        a(f"""
        s_lshl_b32 s3, s{sEX + 1}, 8
        v_lshlrev_b32 v{vIN}, 2, v{vG}
        v_lshl_add_u32 v{vIN}, v{vN}, 4, v{vIN}
        v_add_u32 v{vIN}, s3, v{vIN}
        """)
        a(f"""
        s_lshr_b32 s{sA}, s{sW}, 1
        s_lshl_b32 s3, s{sH}, 3
        s_add_u32 s3, s3, s{sA}
        s_lshl_b32 s3, s3, 6
        s_add_u32 s{sOF2}, s3, {WS_STAT2}
        v_mul_u32_u24 v{vQK}, {256 * o['l2']}, v{vG}
        v_add_u32 v{vQK}, v{vQK}, v{vL16}
        v_lshlrev_b32 v5, 4, v{vG}
        s_and_b32 s3, s{sW}, 1
        s_lshl_b32 s{sOFF}, s{sI}, 1
        s_add_u32 s{sOFF}, s{sOFF}, s3
        s_lshl_b32 s{sOFF}, s{sOFF}, 1
        s_add_u32 s{sOFF}, s{sOFF}, s{sA}
        s_lshl_b32 s{sOFF}, s{sOFF}, {10 + o['l2']}
        s_add_u32 s{sOFF}, s{sOFF}, {WS_PART2}
        s_lshl_b32 s3, s{sW}, 8
        s_add_u32 s3, s3, {XC}
        v_and_b32 v6, 1, v{vG}
        v_lshlrev_b32 v6, 3, v6
        v_lshl_add_u32 v6, v{vN}, 4, v6
        v_add_u32 v7, s3, v6
        s_lshl_b32 s3, s{sW}, 7
        s_add_u32 s3, s3, {XC}
        v_lshrrev_b32 v4, 3, v{vN}
        v_lshlrev_b32 v4, 9, v4
        v_lshl_add_u32 v4, v{vG}, 5, v4
        v_add_u32 v8, s3, v4
        """)
        def l2ld():
            a(f"buffer_load_dwordx4 {vr(vPK)}, v5, {sr(RWS)}, s{sOF2} offen sc1")
            a(f"buffer_load_dwordx4 {vr(vSS)}, v{vQK}, {sr(RWS)}, s{sOFF} offen sc1")
        self.poll_bits(l2ld, vSS, 4, vTB, None, [vPK + 2, vPK + 3])
        self.stamp(9)
        wload(32, o["w2"][1])
        a(f"v_mov_b32 v4, v{vPK}")
        self.allrows("v_max_f32", 4, vR)
        a(f"v_sub_f32 v4, v{vPK}, v4\nv_exp_f32 v4, v4\nv_mul_f32 v5, v4, v{vPK + 1}")
        self.allrows("v_add_f32", 5, vR)
        a(f"v_rcp_f32 v5, v5\nv_mul_f32 v4, v4, v5\nv_cvt_pk_bf16_f32 v{vPK}, v4, v4")
        for jj in range(4):
            a(f"v_and_b32 v{vA0 + jj}, v{vPK}, v{vM + jj}")
        a(f"v_mfma_f32_16x16x32_bf16 {vr(vD)}, {vr(vA0)}, {vr(vSS)}, 0")
        a(f"""
        v_cvt_pk_bf16_f32 v{vD}, v{vD}, v{vD + 1}
        v_cvt_pk_bf16_f32 v{vD + 1}, v{vD + 2}, v{vD + 3}
        ds_write_b64 v7, {vr(vD, 2)}
        s_waitcnt lgkmcnt(0)
        s_barrier
        ds_read_b128 {vr(vSS)}, v8
        ds_read_b128 {vr(vSS + 4)}, v8 offset:16
        """)
        skip = a.label("noepoch")
        a(f"""
        s_or_b32 s3, s{sI}, s{sW}
        s_cmp_lg_u32 s3, 0
        s_cbranch_scc1 {skip}
        v_mov_b32 v4, 0
        s_mov_b64 exec, 1
        buffer_store_dword v{vTAG}, v4, {sr(RWS)}, 0 offen sc1
        s_mov_b64 exec, -1
        {skip}:
        s_lshl_b32 s3, s{sW}, 10
        s_add_u32 s3, s3, {RED}
        v_add_u32 v7, s3, v{vL16}
        v_add_u32 v8, {RED}, v{vL16}
        v_lshrrev_b32 v4, 1, v{vG}
        v_lshlrev_b32 v6, 1, v6
        v_lshl_add_u32 v6, v4, 9, v6
        s_lshl_b32 s{sOFF}, s{sI}, 10
        s_add_u32 s{sOFF}, s{sOFF}, {WS_CREC}
        s_waitcnt lgkmcnt(0)
        """)
        self.stamp(11)
        self.selgemv(0, 16, self.build_perm(vSS), lambda j: vr(vUV + 4 * j), vD, True)
        skip = a.label("nopub")
        a(f"ds_write_b128 v7, {vr(vD)}\ns_waitcnt lgkmcnt(0)\ns_barrier\ns_cmp_lg_u32 s{sW}, 0\ns_cbranch_scc1 {skip}")
        for q in range(4):
            a(f"ds_read_b128 {vr(vSS + 4 * q)}, v8 offset:{1024 * q}")
        a("s_waitcnt lgkmcnt(0)")
        for i in range(4):
            a(f"v_add_f32 v{vSS + i}, v{vSS + i}, v{vSS + 4 + i}\nv_add_f32 v{vSS + 8 + i}, v{vSS + 8 + i}, v{vSS + 12 + i}")
        for i in range(4):
            a(f"v_add_f32 v{vSS + i}, v{vSS + i}, v{vSS + 8 + i}")
        self.tag4(vSS)
        self.gstore(f"buffer_store_dwordx4 {vr(vSS)}, v6, {sr(RWS)}, s{sOFF} offen")
        a(f"{skip}:")

        wload(32, 32)
        a(f"s_lshl_b32 s{sOF2}, s{sH}, 11\ns_add_u32 s{sOF2}, s{sOF2}, {WS_CREC}")
        def cld():
            for q in range(4):
                a(f"buffer_load_dword v{vSS + q}, v{vIN}, {sr(RWS)}, s{sOF2} offen offset:{512 * q} sc1")
        self.poll(cld, list(range(vSS, vSS + 4)), False)
        for q in range(4):
            a(f"v_and_b32 v{vSS + q}, s{sHIGH}, v{vSS + q}")
        a(f"""
        v_add_f32 v{vSS}, v{vSS}, v{vSS + 2}
        v_add_f32 v{vSS + 1}, v{vSS + 1}, v{vSS + 3}
        v_cvt_pk_bf16_f32 v{vSS}, v{vSS}, v{vSS + 1}
        """)
        self.p_run(P, vSS, 128, 1, 12)
        if o["help"] and o["bhelp"]:
            self.helper(o["help"])
        if o["fl"]:
            a(f"s_lshl_b32 s3, s{sI}, 2\ns_add_u32 s3, s3, s{sW}\ns_lshl_b32 s3, s3, 13\ns_add_u32 s3, s3, {WS_PART}")
            for j in range(8):
                if j == 4: a("s_add_u32 s3, s3, 0x1000")
                a(f"buffer_store_dwordx4 {vr(vTB)}, v{vL16}, {sr(RWS)}, s3 offen offset:{1024 * (j % 4)} sc1")
        self.finish()

    def build(self, header):
        a = self.a
        a(f"""
        s_load_dwordx16 s[8:23], s[0:1], 0
        s_load_dwordx8 s[24:31], s[0:1], 64
        s_load_dwordx4 s[32:35], s[0:1], 96
        s_cmp_ge_u32 s2, 256
        s_cbranch_scc1 L_exit
        """)
        self.traces = {}
        if self.o.get("hold") or self.o.get("trace"):
            a(f"s_memrealtime s[{sSTAMP}:{sSTAMP + 1}]")
        if self.o["stamps"]:
            for i in range(1, 15):
                a(f"s_mov_b32 s{sSTAMP + 2 * i}, 0")
            a(f"s_memrealtime s[{sSTAMP}:{sSTAMP + 1}]")
        if self.o["pf"]:
            a(f"""
            s_getpc_b64 s[{R0}:{R0 + 1}]
            L_pc:
            s_lshr_b32 s3, s2, 3
            s_lshl_b32 s3, s3, 4
            v_add_u32 v4, s3, v0
            v_lshlrev_b32 v4, 7, v4
            v_mov_b32 v7, s{R0 + 1}
            v_add_co_u32 v6, vcc, s{R0}, v4
            v_addc_co_u32 v7, vcc, 0, v7, vcc
            v_cmp_gt_u32 vcc, 16, v0
            s_mov_b32 s3, L_code_end - L_pc
            v_cmp_gt_u32 s[{R1}:{R1 + 1}], s3, v4
            s_and_b64 vcc, vcc, s[{R1}:{R1 + 1}]
            s_and_saveexec_b64 s[{sEX}:{sEX + 1}], vcc
            s_cbranch_execz L_nopf
            global_load_dword v71, v[6:7], off
            L_nopf:
            s_mov_b64 exec, s[{sEX}:{sEX + 1}]
            """)
        a(f"""
        v_lshrrev_b32 v4, 6, v0
        v_and_b32 v{vL}, 63, v0
        v_readfirstlane_b32 s{sW}, v4
        v_and_b32 v{vN}, 15, v0
        v_bfe_u32 v{vG}, v0, 4, 2
        s_and_b32 s{sA}, s2, 7
        s_lshr_b32 s{sC}, s2, 3
        s_lshl_b32 s{sI}, s{sA}, 3
        s_add_u32 s{sI}, s{sI}, s{sC}
        s_sub_u32 s{sI}, s{sI}, 24
        s_cmp_ge_u32 s{sC}, 24
        s_cbranch_scc1 L_role_b
        s_mul_i32 s3, s{sC}, 43
        s_lshr_b32 s3, s3, 8
        s_lshl_b32 s{sH}, s{sA}, 2
        s_add_u32 s{sH}, s{sH}, s3
        s_mul_i32 s3, s3, 6
        s_sub_u32 s{sI}, s{sC}, s3
        s_and_b32 s{sB}, s{sI}, 1
        s_lshr_b32 s{sT3}, s{sI}, 1
        s_cmp_eq_u32 s{sT3}, 0
        s_cbranch_scc1 L_role_a2
        """)
        self.role = '1'
        self.role_a(1)
        a("L_exit:\ns_endpgm\nL_role_a2:")
        self.role = '2'
        self.role_a(2)
        a("L_role_b:")
        self.role = 'B'
        self.role_b()
        a("L_code_end:")
        body = a.text()
        return (header + f"""; @launch grid=(256,1,1) block=(256,1,1) lds=163840
.amdgcn_target "amdgcn-amd-amdhsa--gfx950"
.text
.globl {KERNEL}
.p2align 8
.type {KERNEL},@function
{KERNEL}:
""" + body + f""".section .rodata,"a"
.p2align 6
.amdhsa_kernel {KERNEL}
  .amdhsa_next_free_vgpr 512
  .amdhsa_next_free_sgpr 102
  .amdhsa_accum_offset 256
  .amdhsa_group_segment_fixed_size 0
  .amdhsa_kernarg_size 112
  .amdhsa_user_sgpr_count 2
  .amdhsa_user_sgpr_kernarg_segment_ptr 1
  .amdhsa_system_sgpr_workgroup_id_x 1
.end_amdhsa_kernel
""")


def header():
    ref = open(f"cdna_kernels/{NAME}.s.ref").read().split("\n")
    return "\n".join(l for l in ref if l.startswith(";") and "@launch" not in l) + "\n"


if __name__ == "__main__":
    out = sys.argv[1]
    kw = eval("dict(" + (sys.argv[2] if len(sys.argv) > 2 else "") + ")")
    g = Gen(**kw)
    open(out, "w").write(g.build(header()))
    if kw.get("trace"):
        import json
        json.dump(g.traces, open(out + ".json", "w"))
```

```python
import sys, math
from asmlib import Asm

NAME = "concat_heads__sliding_block_cached__compressed_kv_cla__decode"
KERNEL = NAME + "_kernel"

WS_IDS = 0x1000
WS_STAT2 = 0x50000
WS_RDY = 0x58000
WS_ZOK = 0x3800
WS_ACC = 0x4000
WS_PROG = 0xe000
WS_QP = 0x10000
WS_QA = 0xc0000
WS_STATB = 0x60000
WS_CREC = 0x70000
WS_OREC = 0x80000
WS_PART2 = 0x100000
WS_PART = 0x200000
WS_SIZE = 0x400000
WS_STAMP = 0x1000000

P_AX, P_K, P_V, P_WQ, P_WO, P_BX, P_CKV, P_BQ, P_UK, P_UV, P_BO, P_OUT, P_DBG, P_WS = [8 + 2 * i for i in range(14)]
R0, R1, R2, RWS, R4, R5 = 36, 40, 44, 48, 52, 4
sW, sH, sB, sT3, sTAG, sOFF, sA, sC, sSPIN, sLOW, sHIGH, sCST, sOF2, sI = range(56, 70)
sEX = 70
sBIT = 1
sLOC = 0
sSTAMP = 72
vL, vN, vG, vTAG = 1, 2, 3, 9
vM, vS, vA0, vD = 10, 14, 24, 32
vL16 = 22

LOG2E = math.log2(math.e)
SCALE = 128 ** -0.5
import struct
def fbits(x): return "0x%08x" % struct.unpack("<I", struct.pack("<f", x))[0]
def vr(b, n=4): return f"v[{b}:{b + n - 1}]"
def ar(b, n=4): return f"a[{b}:{b + n - 1}]"
def sr(b, n=4): return f"s[{b}:{b + n - 1}]"

DEF = dict(stamps=False, D=14, DV=44, dvr=40, DE=7, DB=10, spin=1000000, mimicA=True, pf=True, NL1=43, bu=8, hx=-8, hc=40, gpol='', spol='', hq=0, he=32, seq='CQ', qpos=(14, 28), pre2=0, post2=0, cnt=0, upol='', prio=0, bq=(8, 4), bm=(0, 2), bs=(4, 0), bp=(8, 0), wlim=16, opos=0, no=0, wpos=99, help=0, hlead=2, bhelp=1, local=True, warm=True, qbw=2, pw=(2, 16), cu=2, id0=0, qsel=1, fl=0, hsh=2, la=512, lo=0, lq=0, l2=0, w2=(16, 16), wlead=8, sc=0, w64=0, pace=None, fa=0, ptag=0, cd=1, wsk=0, NP=2, tord=(0, 1), twait=0, bopol='', pair=(0, 0), wt=2, wpol='')


class Gen:
    def __init__(self, **kw):
        self.o = dict(DEF); self.o.update(kw)
        self.a = Asm()

    def stamp(self, i):
        if self.o.get("holdat") and self.role in self.o["holdat"][0] and self.o["holdat"][1] == i:
            self.a("s_memrealtime s[72:73]")
        if getattr(self, "inb", False) and self.o.get("bstop") == i:
            self.inb = False
            self.a("s_waitcnt vmcnt(0) lgkmcnt(0)")
            self.finish()
        if self.o["stamps"] and (self.o["stamps"] != "min" or i == 14 or (i in self.o.get("only", (8,)) and self.role != "B") or (i in self.o.get("onlyb", ()) and self.role == "B")):
            self.a(f"s_memrealtime s[{sSTAMP + 2 * i}:{sSTAMP + 2 * i + 1}]\ns_waitcnt lgkmcnt(0)")

    def trace_begin(self, reg, weight):
        if not self.o.get("trace"):
            return
        self.tr = dict(n=0, last=0, pts=[])
        self.traces[self.role] = self.tr["pts"]
        self.treg = reg
        def retired(tags):
            t = self.tr
            t["n"] += sum(weight(x) for x in tags)
            if t["n"] - t["last"] >= 4 and len(t["pts"]) < 62:
                t["last"] = t["n"]
                t["pts"].append(t["n"])
                self.a(f"s_memrealtime s[74:75]\ns_waitcnt lgkmcnt(0)\nv_writelane_b32 v{reg}, s74, {len(t['pts'])}")
        self.a.retired = retired

    def finish(self):
        a = self.a
        if self.o.get("trace"):
            a.retired = None
            a(f"s_mov_b64 exec, -1\ns_memrealtime s[74:75]\ns_waitcnt lgkmcnt(0)\nv_writelane_b32 v{self.treg}, s74, 63\nv_writelane_b32 v{self.treg}, s72, 0")
            a(f"s_lshl_b32 s3, s2, 2\ns_add_u32 s3, s3, s{sW}\ns_lshl_b32 s3, s3, 8\ns_add_u32 s3, s3, {WS_STAMP}")
            a(f"v_lshl_add_u32 v4, v{vL}, 2, s3\nglobal_store_dword v4, v{self.treg}, s[{P_WS}:{P_WS + 1}]")
        if self.o.get("holdat") and self.role in self.o["holdat"][0]:
            if self.o["holdat"][1] == 14: a("s_memrealtime s[72:73]")
            lp = a.label("hold")
            a(f"{lp}:\ns_memrealtime s[74:75]\ns_waitcnt lgkmcnt(0)\ns_sub_u32 s3, s74, s72\ns_cmp_lt_u32 s3, 3000\ns_cbranch_scc1 {lp}")
        if self.o.get("holdmin"):
            self.srd(R1, P_DBG, 256)
            lp = a.label("hold")
            a(f"""
            s_mov_b64 exec, 1
            s_not_b32 s3, s72
            v_mov_b32 v5, s3
            v_mov_b32 v4, 0
            buffer_atomic_umax v5, v4, {sr(R1)}, 0 offen sc1
            {lp}_a:
            s_memrealtime s[74:75]
            s_waitcnt lgkmcnt(0)
            s_sub_u32 s3, s74, s72
            s_cmp_lt_u32 s3, 2500
            s_cbranch_scc1 {lp}_a
            buffer_load_dword v5, v4, {sr(R1)}, 0 offen sc1
            s_waitcnt vmcnt(0)
            v_readfirstlane_b32 s3, v5
            s_not_b32 s72, s3
            """)
        if self.o.get("hold"):
            lp = a.label("hold")
            a(f"{lp}:\ns_memrealtime s[74:75]\ns_waitcnt lgkmcnt(0)\ns_sub_u32 s3, s74, s72\ns_cmp_lt_u32 s3, {self.o['hold'] * 100}\ns_cbranch_scc1 {lp}")
        if self.o["stamps"]:
            self.stamp(14)
            a(f"s_lshl_b32 s3, s2, 2\ns_add_u32 s3, s3, s{sW}\ns_lshl_b32 s3, s3, 6\ns_add_u32 s3, s3, {WS_STAMP}")
            a("s_mov_b64 exec, 1\nv_mov_b32 v4, s3")
            for i in ((0, 14) + tuple(self.o.get("only", (8,))) + tuple(self.o.get("onlyb", ())) if self.o["stamps"] == "min" else range(15)):
                a(f"v_mov_b32 v5, s{sSTAMP + 2 * i}\nglobal_store_dword v4, v5, s[{P_WS}:{P_WS + 1}] offset:{4 * i}")
            a(f"s_getreg_b32 s3, hwreg(HW_REG_XCC_ID)\nv_mov_b32 v5, s3\nglobal_store_dword v4, v5, s[{P_WS}:{P_WS + 1}] offset:60")
        a("s_endpgm")

    def srd(self, r, ptr, size, off_lo=None, off_hi=None):
        a = self.a
        if off_lo is None:
            a(f"s_mov_b32 s{r}, s{ptr}\ns_and_b32 s{r + 1}, s{ptr + 1}, 0xffff")
        else:
            a(f"s_add_u32 s{r}, s{ptr}, {off_lo}\ns_addc_u32 s{r + 1}, s{ptr + 1}, {off_hi or 0}\ns_and_b32 s{r + 1}, s{r + 1}, 0xffff")
        a(f"s_mov_b32 s{r + 2}, {size}\ns_mov_b32 s{r + 3}, 0x20000")

    def consts(self, cst):
        a = self.a
        self.srd(RWS, P_WS, WS_SIZE)
        a(f"""
        s_mov_b32 s{sSPIN}, {self.o['spin']}
        s_movk_i32 s{sLOW}, 0xfff
        s_mov_b32 s{sHIGH}, 0xfffff000
        s_mov_b32 s{sCST}, {fbits(cst)}
        v_lshlrev_b32 v{vL16}, 4, v{vL}
        """)

    def selectors(self, perm=True):
        a = self.a
        a(f"""
        v_and_b32 v4, 1, v{vN}
        v_bfe_u32 v5, v{vN}, 1, 2
        v_cmp_eq_u32 vcc, 1, v4
        v_mov_b32 v6, 0xffff
        v_mov_b32 v7, 0xffff0000
        v_cndmask_b32 v8, v6, v7, vcc
        """)
        if perm:
            a(f"""
            v_mov_b32 v6, 0x0c0c0100
            v_mov_b32 v7, 0x01000c0c
            v_cndmask_b32 v{vA0}, v6, v7, vcc
            v_mov_b32 v6, 0x0c0c0302
            v_mov_b32 v7, 0x03020c0c
            v_cndmask_b32 v{vA0 + 1}, v6, v7, vcc
            v_mov_b32 v6, 0x0c0c0c0c
            """)
        for jj in range(4):
            a(f"v_cmp_eq_u32 vcc, {jj}, v5\nv_cndmask_b32 v{vM + jj}, 0, v8, vcc")
            if perm:
                a(f"v_cndmask_b32 v{vS + 2 * jj}, v6, v{vA0}, vcc\nv_cndmask_b32 v{vS + 2 * jj + 1}, v6, v{vA0 + 1}, vcc")

    def get_tag(self):
        self.a(f"s_waitcnt lgkmcnt(0)\ns_add_u32 s{sTAG}, s{sTAG}, 1\nv_mov_b32 v{vTAG}, s{sTAG}")

    def build_perm(self, x):
        def f(j, A):
            for jj in range(4):
                self.a(f"v_perm_b32 v{A + jj}, v{x + j // 2}, v{x + j // 2}, v{vS + 2 * jj + j % 2}")
        return f

    def build_dpp(self, src):
        def f(j, A):
            reg, lane = src(j)
            for jj in range(4):
                self.a(f"v_and_b32_dpp v{A + jj}, v{reg}, v{vM + jj} row_newbcast:{lane} row_mask:0xf bank_mask:0xf")
        return f

    def selgemv(self, j0, j1, build, B, D, zero, before=None):
        a = self.a
        build(j0, vA0 + 4 * (j0 % 2))
        for j in range(j0, j1):
            if j + 1 < j1:
                build(j + 1, vA0 + 4 * ((j + 1) % 2))
            if before:
                before(j)
            c = "0" if (zero and j == j0) else vr(D)
            a(f"v_mfma_f32_16x16x32_bf16 {vr(D)}, {vr(vA0 + 4 * (j % 2))}, {B(j)}, {c}")

    def tag4(self, r):
        for i in range(4):
            self.a(f"v_add_u32 v{r + i}, 0x800, v{r + i}")
        for i in range(4):
            self.a(f"v_bfi_b32 v{r + i}, s{sLOW}, v{vTAG}, v{r + i}")

    def poll(self, issue, regs, full, tracked_tag=None, fullregs=()):
        a = self.a
        chk, ok = a.label("chk"), a.label("ok")
        if tracked_tag is None:
            issue()
            a("s_waitcnt vmcnt(0)")
            a.vmreset()
        else:
            a.vmwait(tracked_tag)
        a(f"{chk}:")
        a(f"v_xor_b32 v4, s{sTAG}, v{regs[0]}")
        for r in regs[1:]:
            a(f"v_bitop3_b32 v4, v4, v{r}, s{sTAG} bitop3:0xf6")
        if not full:
            a(f"v_and_b32 v4, s{sLOW}, v4")
        for r in fullregs:
            a(f"v_bitop3_b32 v4, v4, v{r}, s{sTAG} bitop3:0xf6")
        a(f"v_cmp_ne_u32 vcc, 0, v4\ns_cbranch_vccz {ok}\ns_cmp_eq_u32 s{sSPIN}, 0\ns_cbranch_scc1 {ok}\ns_sub_u32 s{sSPIN}, s{sSPIN}, 1")
        issue()
        a(f"s_waitcnt vmcnt(0)\ns_branch {chk}\n{ok}:")

    def q_issue(self, mat, g0, track):
        a = self.a
        def issue(tr=False):
            for q in range(4):
                t = f"buffer_load_dwordx4 {vr(g0 + 4 * q)}, v{vL16}, {sr(RWS)}, s{sOF2} offen offset:{1024 * q} sc1"
                if tr: a.vm(t, track)
                else: a(t)
        a(f"s_lshl_b32 s{sOF2}, s{sH}, 12\ns_add_u32 s{sOF2}, s{sOF2}, {WS_QP + mat * 32 * 4096}")
        return issue

    def q_finish(self, g0, lds_base):
        a = self.a
        for i in range(16):
            a(f"v_and_b32 v{g0 + i}, s{sHIGH}, v{g0 + i}")
        for i in range(4):
            a(f"v_add_f32 v{g0 + i}, v{g0 + i}, v{g0 + 4 + i}\nv_add_f32 v{g0 + 8 + i}, v{g0 + 8 + i}, v{g0 + 12 + i}")
        for i in range(4):
            a(f"v_add_f32 v{g0 + i}, v{g0 + i}, v{g0 + 8 + i}")
        a(f"""
        v_cvt_pk_bf16_f32 v{g0}, v{g0}, v{g0 + 1}
        v_cvt_pk_bf16_f32 v{g0 + 1}, v{g0 + 2}, v{g0 + 3}
        s_lshl_b32 s3, s{sW}, 9
        s_add_u32 s3, s3, {lds_base}
        v_lshrrev_b32 v4, 1, v{vG}
        v_and_b32 v6, 1, v{vG}
        v_lshlrev_b32 v4, 8, v4
        v_lshl_add_u32 v4, v6, 3, v4
        v_lshl_add_u32 v4, v{vN}, 4, v4
        v_add_u32 v4, s3, v4
        ds_write_b64 v4, {vr(g0, 2)}
        """)

    def last_arriver(self, cnt, skip):
        self.a(f"""
        v_mov_b32 v4, 0
        v_mov_b32 v5, 1
        s_mov_b64 exec, 1
        ds_add_rtn_u32 v5, v4, v5 offset:{cnt}
        s_mov_b64 exec, -1
        s_waitcnt lgkmcnt(0)
        v_readfirstlane_b32 s3, v5
        s_cmp_lg_u32 s3, 3
        s_cbranch_scc1 {skip}
        """)
        if self.o["prio"]: self.a("s_setprio 3")

    def pin(self, dst, voff, srd, soff):
        self.a.vm(f"buffer_load_dword v{dst}, v{voff}, {sr(srd)}, {soff} offen nt", "t")
        self.a.vm(f"buffer_load_dword v{dst + 1}, v{voff}, {sr(srd)}, {soff} offen sc1", "t")

    def bit_tags(self, tb):
        a = self.a
        a(f"v_and_b32 v4, 3, v{vL}\nv_lshlrev_b32 v4, 3, v4\nv_lshrrev_b32 v4, v4, v{vTAG}\ns_mov_b32 s{sBIT}, 0x10001")
        for k in range(4):
            a(f"v_bfe_u32 v5, v4, {2 * k + 1}, 1\nv_bfe_u32 v6, v4, {2 * k}, 1\nv_lshl_or_b32 v{tb + k}, v5, 16, v6")

    def poll_bits(self, issue, r0, n, tb, tracked_tag=None, fullregs=()):
        a = self.a
        chk, ok = a.label("chk"), a.label("ok")
        if tracked_tag is None:
            issue()
            a("s_waitcnt vmcnt(0)")
            a.vmreset()
        else:
            a.vmwait(tracked_tag)
        a(f"{chk}:")
        for i in range(n):
            a(f"v_xor_b32 v{r0 + i}, v{tb + i % 4}, v{r0 + i}")
        a(f"v_or_b32 v4, v{r0}, v{r0 + 1}")
        for i in range(2, n, 2):
            a(f"v_or3_b32 v4, v4, v{r0 + i}, v{r0 + i + 1}")
        a(f"v_and_b32 v4, s{sBIT}, v4")
        for r in fullregs:
            a(f"v_bitop3_b32 v4, v4, v{r}, s{sTAG} bitop3:0xf6")
        a(f"v_cmp_ne_u32 vcc, 0, v4\ns_cbranch_vccz {ok}\ns_cmp_eq_u32 s{sSPIN}, 0\ns_cbranch_scc1 {ok}\ns_sub_u32 s{sSPIN}, s{sSPIN}, 1")
        issue()
        a(f"s_waitcnt vmcnt(0)\ns_branch {chk}\n{ok}:")

    def pretouch(self, dst, items):
        if self.o["tlb"]:
            self.a(f"v_mov_b32 v4, 0")
            for srd, off in items:
                self.a(f"s_mov_b32 s3, {off}")
                self.a.vm(f"buffer_load_dword v{dst}, v4, {sr(srd)}, s3 offen", "tlb")

    def id_publish(self):
        skip = self.a.label("noid")
        self.a(f"""
        s_mov_b32 s{sLOC}, 0
        s_cmp_lg_u32 s{sW}, 3
        s_cbranch_scc1 {skip}
        s_getreg_b32 s3, hwreg(HW_REG_XCC_ID, 0, 4)
        s_xor_b32 s3, s3, s{sTAG}
        v_mov_b32 v4, s3
        v_mov_b32 v5, s{sTAG}
        s_and_b32 s3, s2, 7
        s_lshl_b32 s3, s3, 5
        s_lshr_b32 s{sLOC}, s2, 3
        s_add_u32 s3, s3, s{sLOC}
        s_lshl_b32 s3, s3, 3
        s_add_u32 s3, s3, {WS_IDS}
        s_mov_b32 s{sLOC}, 0
        v_mov_b32 v6, 0
        s_mov_b64 exec, 1
        buffer_store_dwordx2 v[4:5], v6, {sr(RWS)}, s3 offen
        s_mov_b64 exec, -1
        {skip}:
        """)

    def id_load(self, r):
        self.a(f"s_and_b32 s3, s2, 7\ns_lshl_b32 s3, s3, 8\ns_add_u32 s3, s3, {WS_IDS}\nv_and_b32 v4, 31, v{vL}\nv_lshlrev_b32 v4, 3, v4")
        self.a.vm(f"buffer_load_dwordx2 {vr(r, 2)}, v4, {sr(RWS)}, s3 offen sc1", "id")

    def id_check(self, r):
        self.a.vmwait("id")
        self.a(f"""
        s_getreg_b32 s3, hwreg(HW_REG_XCC_ID, 0, 4)
        s_xor_b32 s3, s3, s{sTAG}
        v_xor_b32 v4, s3, v{r}
        v_bitop3_b32 v4, v4, v{r + 1}, s{sTAG} bitop3:0xf6
        v_cmp_ne_u32 vcc, 0, v4
        s_cmp_eq_u64 vcc, 0
        s_cselect_b32 s{sLOC}, {1 if self.o['local'] else 0}, 0
        """)

    def gstore(self, text, before="", tag=None):
        a = self.a
        far, join = a.label("far"), a.label("join")
        a(f"s_cmp_eq_u32 s{sLOC}, 0\ns_cbranch_scc1 {far}\n{text}\ns_branch {join}\n{far}:")
        if tag: a.vm(text + " sc1", tag)
        else: a(text + " sc1")
        a(f"{join}:\ns_nop 1")

    def warm(self, wave, nlines, soff):
        if not self.o["warm"]:
            return
        skip = self.a.label("nowarm")
        self.a(f"""
        s_cmp_lg_u32 s{sW}, {wave}
        s_cbranch_scc1 {skip}
        v_min_u32 v4, {nlines - 1}, v{vL}
        v_lshlrev_b32 v4, 7, v4
        buffer_load_dword v71, v4, {sr(RWS)}, {soff} offen
        {skip}:
        """)

    def p_wave(self, sJ, vW):
        self.a(f"""
        s_and_b32 s3, s{sJ}, 1
        s_lshl_b32 s3, s3, 1
        s_and_b32 s{sEX}, s{sW}, 1
        s_add_u32 s{sEX}, s{sEX}, s3
        s_lshr_b32 s{sEX + 1}, s{sW}, 1
        s_lshl_b32 s3, s{sEX + 1}, 8
        s_add_u32 s3, s3, s{sEX}
        s_lshl_b32 s3, s3, 8
        v_lshlrev_b32 v4, 10, v{vG}
        v_lshl_add_u32 v4, v{vN}, 4, v4
        v_add_u32 v{vW}, s3, v4
        """)

    def p_setup(self, base, sM, lds):
        a = self.a
        P = dict(AA=base, AB=base + 1, AC=base + 2, C4=base + 3, OOB=base + 4, X=base + 6, RR=base + 8, SB=base + 24, L=base + 28, M15=sM, MQ=sM + 2)
        m15, mq = sr(sM, 2), sr(sM + 2, 2)
        self.srd(R0, P_OUT, 4096)
        a(f"v_cmp_gt_u32 vcc, 8, v{vN}")
        for jj in range(4):
            a(f"v_cndmask_b32 v{P['SB'] + jj}, v{vS + 2 * jj + 1}, v{vS + 2 * jj}, vcc")
        a(f"""
        v_cmp_eq_u32 {m15}, 15, v{vN}
        v_and_b32 v4, 3, v{vN}
        v_cmp_eq_u32 {mq}, 0, v4
        v_mov_b32 v{P['OOB']}, 0x7fff0000
        v_cndmask_b32 v{P['C4']}, 0, 1.0, {m15}
        v_lshlrev_b32 v{P['AC']}, 7, v{vG}
        v_lshl_add_u32 v{P['AC']}, v{vN}, 2, v{P['AC']}
        s_mul_i32 s3, s{sEX}, {5 * self.o['la']}
        v_add_u32 v{P['AC']}, s3, v{P['AC']}
        v_and_b32 v4, 1, v{vG}
        v_lshlrev_b32 v4, 3, v4
        v_lshrrev_b32 v{P['X']}, 1, v{vG}
        v_lshl_add_u32 v4, v{P['X']}, 11, v4
        s_lshl_b32 s3, s{sEX}, 8
        v_add_u32 v4, s3, v4
        v_lshl_add_u32 v{P['X']}, v{vN}, 4, v4
        v_cndmask_b32 v{P['AA']}, v{P['X']}, v{P['OOB']}, {m15}
        v_lshrrev_b32 v{P['X']}, 1, v{vN}
        v_add_u32 v{P['X']}, v{P['X']}, v4
        v_add_u32 v{P['X']}, 240, v{P['X']}
        v_cndmask_b32 v{P['AB']}, v{P['OOB']}, v{P['X']}, {mq}
        s_lshl_b32 s3, s{sW}, 10
        s_add_u32 s3, s3, {lds}
        v_add_u32 v{P['L']}, s3, v{vL16}
        v_xor_b32 v{P['L'] + 1}, 0x800, v{P['L']}
        """)
        return P

    def p_run(self, P, src, wbase, part, st):
        a = self.a
        dm = "row_mask:0xf bank_mask"
        vX, vRR = P["X"], P["RR"]
        m15, mq = sr(P["M15"], 2), sr(P["MQ"], 2)
        def build(j, A):
            a(f"v_mov_b32_dpp v{vX + j % 2}, v{src} row_newbcast:{j} {dm}:0xf")
            for jj in range(4):
                a(f"v_perm_b32 v{A + jj}, v{vX + j % 2}, v{vX + j % 2}, v{P['SB'] + jj}")
        self.selgemv(0, 16, build, lambda j: ar(wbase + 4 * j), vD, True)
        la = self.o["la"]
        base = WS_ACC + self.o["lo"] + part * 20 * la
        pair = self.o["pair"][part]
        a(f"s_mov_b32 s3, {base}\ns_mov_b32 s{sOFF}, {base + 4 * la}")
        t = vRR + 8
        def add(ks):
            for r in ks:
                if r < 4:
                    a(f"v_cndmask_b32 v{vRR + r}, v{vD + r}, 1.0, {m15}")
                    a(f"buffer_atomic_add_f32 v{vRR + r}, v{P['AC']}, {sr(RWS)}, s3 offen offset:{la * r} sc0 sc1")
                else:
                    for q in range(4):
                        a(f"v_mov_b32_dpp v{vRR + 5}, v{vD + q} row_newbcast:15 {dm}:{1 << q}")
                    a(f"v_cndmask_b32 v{vRR + 4}, v{P['C4']}, v{vRR + 5}, {mq}")
                    a(f"buffer_atomic_add_f32 v{vRR + 4}, v{P['AC']}, {sr(RWS)}, s{sOFF} offen sc0 sc1")
            self.stamp(st)
            a("s_waitcnt vmcnt(0)")
            for k in ks:
                a(f"v_mov_b32_dpp v{t + k}, v{vRR + k} row_newbcast:15 {dm}:0xf")
            for k in ks:
                a(f"""
                v_cmp_eq_f32 vcc, {fbits(31.0 if pair else 63.0)}, v{t + k}
                v_add_f32 v{vRR + k}, v{vRR + k}, v{vD + k if k < 4 else vRR + 5}
                v_cvt_pk_bf16_f32 v{vRR + k}, v{vRR + k}, v{vRR + k}
                v_cndmask_b32 v{t + k}, v{P['OOB']}, v{P['AA'] if k < 4 else P['AB']}, vcc
                buffer_store_short v{vRR + k}, v{t + k}, {sr(R0)}, 0 offen offset:{1024 * part + (2 * k if k < 4 else 0)}
                """)
        if pair:
            hi, join = a.label("hi"), a.label("join")
            a(f"""
            ds_write_b128 v{P['L']}, {vr(vD)}
            s_waitcnt lgkmcnt(0)
            s_barrier
            ds_read_b128 {vr(t)}, v{P['L'] + 1}
            s_cmp_lg_u32 s{sEX + 1}, 0
            s_waitcnt lgkmcnt(0)
            """)
            for r in range(4):
                a(f"v_add_f32 v{vD + r}, v{vD + r}, v{t + r}")
            a(f"s_cbranch_scc1 {hi}")
            add([0, 1, 2])
            a(f"s_branch {join}\n{hi}:\ns_nop 1")
            add([3, 4])
            a(f"{join}:")
        else:
            add(range(5))
        a.vmreset()

    def helper(self, rounds):
        a, o = self.a, self.o
        NL1 = o["NL1"]; NL2 = 128 - 2 * NL1
        top, out = a.label("help"), a.label("helped")
        self.srd(R1, P_V, 1 << 27)
        a(f"""
        s_cmp_eq_u32 s{sLOC}, 0
        s_cbranch_scc1 {out}
        s_lshr_b32 s3, s2, 3
        v_and_b32 v4, 31, v{vL}
        v_cmp_gt_u32 s[{sEX}:{sEX + 1}], 24, v4
        v_add_u32 v4, s3, v4
        v_mul_u32_u24 v5, 43, v4
        v_lshrrev_b32 v5, 8, v5
        v_mul_u32_u24 v6, 6, v5
        v_sub_u32 v6, v4, v6
        v_and_b32 v5, 3, v5
        v_mul_u32_u24 v4, 6, v5
        v_add_u32 v4, v4, v6
        v_lshrrev_b32 v7, 5, v{vL}
        v_lshlrev_b32 v4, 4, v4
        v_lshl_add_u32 v4, v7, 9, v4
        s_and_b32 s3, s2, 7
        s_lshl_b32 s{sA}, s3, 10
        s_lshl_b32 s{sC}, s{sW}, 2
        s_add_u32 s{sA}, s{sA}, s{sC}
        s_add_u32 s{sA}, s{sA}, {WS_PROG}
        s_lshl_b32 s3, s3, 2
        v_add_u32 v5, s3, v5
        v_and_b32 v8, 1, v6
        v_lshl_add_u32 v5, v8, 5, v5
        v_lshlrev_b32 v5, 21, v5
        v_lshrrev_b32 v6, 1, v6
        v_mul_u32_u24 v6, {NL1 * 4096}, v6
        v_add_u32 v5, v5, v6
        v_lshlrev_b32 v7, 15, v7
        v_sub_u32 v5, v5, v7
        s_lshl_b32 s3, s{sW}, 10
        s_add_u32 s3, s3, {6144 * 256 + (NL2 - 8) * 4096}
        v_add_u32 v5, s3, v5
        v_lshrrev_b32 v6, 3, v{vL}
        v_lshlrev_b32 v6, 12, v6
        v_and_b32 v7, 7, v{vL}
        v_lshl_add_u32 v6, v7, 7, v6
        s_movk_i32 s{sOFF}, {rounds}
        {top}:
        buffer_load_dword v7, v4, {sr(RWS)}, s{sA} offen sc1
        s_waitcnt vmcnt(0)
        v_cmp_ne_u32 vcc, s{sTAG}, v7
        s_and_b64 vcc, vcc, s[{sEX}:{sEX + 1}]
        s_cbranch_scc0 {out}
        s_ff1_i32_b64 s3, vcc
        v_readlane_b32 s{sC}, v5, s3
        s_lshl_b64 exec, 1, s3
        buffer_store_dword v{vTAG}, v4, {sr(RWS)}, s{sA} offen
        s_mov_b64 exec, -1
        s_nop 2
        buffer_load_dword v8, v6, {sr(R1)}, s{sC} offen
        s_waitcnt vmcnt(0)
        s_sub_u32 s{sOFF}, s{sOFF}, 1
        s_cmp_lg_u32 s{sOFF}, 0
        s_cbranch_scc1 {top}
        {out}:
        """)

    def tag_bits(self, r, tb, t):
        for k in range(4):
            self.a(f"v_lshrrev_b32 v{t}, 1, v{r + k}\nv_and_b32 v{t}, s{sBIT}, v{t}\nv_add_u32 v{r + k}, v{r + k}, v{t}\nv_bfi_b32 v{r + k}, s{sBIT}, v{tb + k}, v{r + k}")

    def allrows(self, op, r, t):
        for sw in ("v_permlane16_swap_b32", "v_permlane32_swap_b32"):
            self.a(f"v_mov_b32 v{t}, v{r}\n{sw} v{t}, v{r}\n{op} v{r}, v{r}, v{t}")

    def role_a(self, typ):
        a, o = self.a, self.o
        a.vmreset()
        NL1 = o["NL1"]; NL2 = 128 - 2 * NL1
        NL = NL1 if typ == 1 else NL2
        NG = (NL + 3) // 4
        vQ, vP, vSC, vGA, vK, vX0, vX1 = 36, 40, 44, 56, 72, 248, 252
        assert NL <= 46
        vO1, vO2 = 23, 0
        cnt = dict(u=0)
        def weight(t):
            if t in ("q", "qb", "id", "x1", None): return 0
            if t == "warm": return 8
            if t == "w0" and typ == 2:
                cnt["u"] += 1
                return int(cnt["u"] <= 16 - o["bu"])
            return 1
        self.trace_begin(23, weight)
        sROT = sEX
        RED0, RED1, QT, QT2, QO, CNT, ST, OP, UKB = 0, 4096, 8192, 10240, 12288, 13312, 13440, 14336, 16384
        if typ == 1:
            a(f"""
            s_sub_u32 s{sI}, s{sI}, 2
            s_lshl2_add_u32 s3, s{sI}, s{sW}
            s_lshl_b32 s{sOFF}, s3, 18
            s_add_u32 s{sOFF}, s{sOFF}, s{sA}
            v_lshlrev_b32 v{vQ}, 16, v{vG}
            v_lshl_add_u32 v{vQ}, v{vN}, 4, v{vQ}
            s_xor_b32 s{sOF2}, s{sOFF}, {o['hsh'] * 256}
            s_movk_i32 s{sLOW}, 0x2000
            s_waitcnt lgkmcnt(0)
            s_mov_b32 s{R0}, s{P_BQ}
            s_and_b32 s{R0 + 1}, s{P_BQ + 1}, 0xffff
            """)
            for j in range(8):
                a.vm(f"buffer_load_dwordx4 {ar(192 + 4 * j)}, v{vQ}, {sr(R0)}, s{sOFF} offen nt", "w0")
                if j < 7: a(f"s_add_u32 s{sOFF}, s{sOFF}, s{sLOW}")
            a(f"""
            s_load_dword s{sTAG}, s[{P_WS}:{P_WS + 1}], 0
            s_lshl_b32 s3, s3, 6
            v_lshrrev_b32 v4, 3, v{vN}
            v_lshlrev_b32 v4, 10, v4
            v_lshl_add_u32 v4, v{vG}, 4, v4
            v_add_u32 v4, s3, v4
            """)
            a.vm(f"global_load_dwordx4 {vr(vX0)}, v4, s[{P_BX}:{P_BX + 1}]", "w0")
            a.vm(f"global_load_dwordx4 {vr(vX1)}, v4, s[{P_AX}:{P_AX + 1}]", "x1")
            self.srd(R1, P_WQ, 1 << 22)
        else:
            a.q += ["w0"] * 8
            a(f"s_mov_b32 s{sC}, s{sOF2}")
            def ukload(j):
                a(f"s_add_u32 m0, s{sC}, {1024 * j}")
                a.vm(f"buffer_load_dwordx4 v{vQ + j % 4}, {sr(R0)}, s{sOFF} offen nt lds", "w0")
                if j < 15: a(f"s_add_u32 s{sOFF}, s{sOFF}, 0x8000")
        a(f"v_mov_b32 v6, 0\nv_mov_b32 v7, 0\nds_write_b64 v6, v[6:7] offset:{CNT}\nds_write_b64 v6, v[6:7] offset:{CNT + 8}\nds_write_b64 v6, v[6:7] offset:{CNT + 16}")
        self.stamp(1)
        a(f"""
        s_lshl_b32 s3, s{sB}, 5
        s_add_u32 s3, s3, s{sH}
        s_lshl_b32 s3, s3, 21
        """)
        if typ == 1:
            a(f"s_mul_i32 s{sA}, s{sT3}, {NL1 * 4096}\ns_add_u32 s3, s3, s{sA}\ns_add_u32 s3, s3, {6144 * 256 + (NL2 - NL1) * 4096}")
        else:
            a(f"s_add_u32 s3, s3, {6144 * 256}")
        self.srd(R4, P_K, NL * 4096, "s3")
        self.srd(R5, P_V, NL * 4096, "s3")
        self.consts(LOG2E if o["mimicA"] else LOG2E * SCALE)
        a(f"""
        s_lshl_b32 s3, s{sW}, 10
        v_add_u32 v{vO2}, s3, v{vL16}
        """)
        self.selectors()
        if o["id0"]: self.id_load(70)
        if typ == 2:
            a(f"s_lshl_b32 s3, s{sB}, 5\ns_add_u32 s3, s3, s{sH}\ns_lshl_b32 s3, s3, 12\ns_add_u32 s3, s3, {WS_QP}")
            self.warm(0, 32, "s3")
        vWO = 23
        if typ == 2:
            a(f"s_lshl_b32 s3, s{sH}, 17")
            self.srd(R2, P_WO, 1 << 17, "s3")
        self.get_tag()
        if o.get("fine"): self.stamp(9)
        self.id_publish()
        if typ == 2: self.bit_tags(vA0)
        a("s_barrier")
        if o.get("fine"):
            self.stamp(10)
        if o.get("fine") == 2:
            a.vmwait("w0")
            self.stamp(11)
            a.vmwait("id")
            self.stamp(12)

        def vreg(j):
            return ar(4 * j)
        def ld_kv(which, j):
            def f():
                a(f"s_mov_b32 s{sOFF}, {j * 4096}")
                if which == "K":
                    a.vm(f"buffer_load_dwordx4 {vr(vK + 4 * j)}, v{vO2}, {sr(R4)}, s{sOFF} offen nt", f"K{j}")
                else:
                    a.vm(f"buffer_load_dwordx4 {vreg(j)}, v{vO2}, {sr(R5)}, s{sOFF} offen nt", f"V{j}")
            return f
        def ld_side(kind, j):
            def f():
                if kind == "U":
                    ukload(j)
                elif kind == "T":
                    a(f"s_lshl_b32 s3, s{sH}, 17")
                    self.srd(R2, (P_WO, P_BO)[j], 1 << 17, "s3")
                    a(f"""
                    s_lshl_b32 s3, s{sI}, 1
                    s_lshr_b32 s{sA}, s{sW}, 1
                    s_add_u32 s3, s3, s{sA}
                    s_sub_u32 s3, 7, s3
                    s_lshl_b32 s3, s3, 13
                    s_and_b32 s{sA}, s{sW}, 1
                    s_lshl_b32 s{sA}, s{sA}, 16
                    s_add_u32 s3, s3, s{sA}
                    v_lshlrev_b32 v4, 7, v{vL}
                    """)
                    a.vm(f"buffer_load_dword v{vX0}, v4, {sr(R2)}, s3 offen", "T")
                elif kind == "A":
                    skip = a.label("nopace")
                    a(f"s_cmp_lg_u32 s{sW}, 0\ns_cbranch_scc1 {skip}\ns_mov_b64 exec, 1")
                    self.srd(R1, P_DBG, 256)
                    a(f"s_and_b32 s3, s{sI}, 1\ns_lshl_b32 s3, s3, 7" if typ == 1 else "s_mov_b32 s3, 64")
                    a(f"v_mov_b32 v55, 1\nv_mov_b32 v4, 0\nbuffer_atomic_add v55, v4, {sr(R1)}, s3 offen sc0")
                    a(f"s_mov_b64 exec, -1\n{skip}:")
                elif kind == "F":
                    a(f"s_mov_b64 exec, 1")
                    a.vm(f"buffer_store_dword v{vTAG}, v{vQ + 3}, {sr(RWS)}, 0 offen offset:{512 * j}", None)
                    a(f"s_mov_b64 exec, -1")
                elif kind == "W":
                    a(f"s_mov_b32 s{sOFF}, {4096 * j}")
                    a.vm(f"buffer_load_dwordx4 {ar(192 + 4 * j)}, v{vWO}, {sr(R2)}, s{sOFF} offen {o['wpol']}", "W")
                elif kind == "Q":
                    a.vm(f"buffer_load_dwordx4 {ar(224 + 4 * j)}, v{vQ}, {sr(R1)}, s{sOF2} offen nt", "w1")
                    if j < 7: a(f"s_add_u32 s{sOF2}, s{sOF2}, 0x2000")
                else:
                    n = o["hc"] // 2 - o["cd"]
                    if j == 0:
                        a(f"""
                        s_lshr_b32 s3, s{sH}, 1
                        s_lshl2_add_u32 s{sC}, s3, s{sI}
                        s_lshl_b32 s{sC}, s{sC}, 18
                        s_and_b32 s3, s{sH}, 1
                        s_lshl_b32 s3, s3, 12
                        s_add_u32 s{sC}, s{sC}, s3
                        s_add_u32 s{sC}, s{sC}, {131072 + o['hx'] * 4096}
                        """)
                        self.srd(R0, P_CKV, 1 << 24)
                    t = f"buffer_load_dwordx4 {ar(188)}, v{vO2}, {sr(R0)}, s{sC} offen"
                    if j < n:
                        a.vm(t, "t")
                        a(f"s_add_u32 s{sC}, s{sC}, 0x2000")
                    else:
                        skip = a.label("odd")
                        a(f"s_bitcmp1_b32 s{sH}, 0\ns_cbranch_scc1 {skip}")
                        for _ in range(2 * o["cd"]):
                            a(f"s_waitcnt vmcnt({o['DE']})\n{t}\ns_add_u32 s{sC}, s{sC}, 0x1000")
                        a(f"{skip}:")
            return f
        R = lambda k, a0, a1: [(k, j) for j in range(a0, a1)]
        if typ == 1:
            parts = dict(C=R("C", 0, o["hc"] // 2 - o["cd"] + (1 if o["cd"] else 0)), Q=R("Q", 0, 8))
            order = sum((parts[k] for k in o["seq"]), []) + R("K", 0, o["opos"]) + R("O", 0, o["no"]) + R("K", o["opos"], NL) + R("V", 0, NL)
        else:
            wp = min(NL, o["wpos"])
            order = R("U", 8, 16) + R("K", 0, NL) + R("V", 0, wp) + R("W", 0, 16) + R("V", wp, NL)
        if o["pace"]:
            assert NG <= 11
            order.insert(order.index(("K", NL - o["pace"][0])), ("A", 0))
        if typ == 1 and o["wt"] == 1:
            order.append(("T", 0))
        if o["help"]:
            for lvl in range(2):
                order.insert(order.index(("V", NL - 8 * (lvl + 1) - o["hlead"])), ("F", lvl))
        stream = [ld_kv(k, j) if k in "KV" else ld_side(k, j) for k, j in order]
        at = {it: i for i, it in enumerate(order)}
        pos = [0]
        paced = [False]
        def pace_read():
            a(f"""
            v_mov_b32 v4, 0
            ds_read_b32 v4, v4 offset:{CNT + 16}
            s_waitcnt lgkmcnt(0)
            v_readfirstlane_b32 s3, v4
            s_sub_u32 s3, s3, 1
            s_cmp_lt_u32 s3, {o['pace'][1]}
            s_cselect_b64 vcc, -1, 0
            s_cmp_lt_u32 s3, {o['pace'][2]}
            """)
        def pump(upto, lim=60):
            while pos[0] < min(upto, len(stream)):
                a.vmlimit(lim)
                if paced[0] and pos[0] < len(order) and order[pos[0]][0] in "KV":
                    l1, l2 = a.label("p"), a.label("p")
                    a(f"s_cbranch_scc0 {l2}\ns_cbranch_vccz {l1}\ns_waitcnt vmcnt({o['pace'][3] - 1})\n{l1}:\ns_waitcnt vmcnt({o['pace'][4] - 1})\n{l2}:")
                stream[pos[0]]()
                pos[0] += 1
        DE = o["DE"]

        if typ == 1:
            for mat, tag, x, base, red in ((1, "w0", vX0, 192, RED0), (0, "w1", vX1, 224, RED1)):
                if mat == 1:
                    a(f"s_mov_b32 s{sROT}, 0")
                    pump(DE, DE)
                else:
                    pump(at[("Q", 7)] + 1, DE)
                    self.id_load(vP)
                    pump(pos[0] + DE, DE)
                a.vmwait(tag)
                if mat == 1: self.stamp(2)
                self.selgemv(0, 8, self.build_perm(x), lambda j: ar(base + 4 * j), vD, True)
                a(f"ds_write_b128 v{vO2}, {vr(vD)} offset:{red}")
                if mat == 0:
                    self.id_check(vP)
                    late = a.label("nolate")
                    a(f"""
                    s_cmp_le_u32 s{sROT}, s{sLOC}
                    s_cbranch_scc1 {late}
                    buffer_store_dwordx4 {vr(vX0)}, v{vL16}, {sr(RWS)}, s{sROT + 1} offen sc1
                    {late}:
                    """)
                skip = a.label("nopub")
                self.last_arriver(CNT + 4 * mat, skip)
                for q in range(4):
                    a(f"ds_read_b128 {vr(vGA + 4 * q)}, v{vL16} offset:{red + 1024 * q}")
                a(f"""
                s_xor_b32 s3, s{sH}, {0 if mat else o['hsh']}
                s_lshl_b32 s3, s3, 2
                s_add_u32 s3, s3, s{sI}
                s_lshl_b32 s3, s3, 10
                s_add_u32 s3, s3, {WS_QP + mat * 32 * 4096}
                s_waitcnt lgkmcnt(0)
                """)
                for i in range(4):
                    a(f"v_add_f32 v{vGA + i}, v{vGA + i}, v{vGA + 4 + i}\nv_add_f32 v{vGA + 8 + i}, v{vGA + 8 + i}, v{vGA + 12 + i}")
                for i in range(4):
                    a(f"v_add_f32 v{x + i}, v{vGA + i}, v{vGA + 8 + i}")
                self.tag4(x)
                if mat == 1:
                    a(f"buffer_store_dwordx4 {vr(x)}, v{vL16}, {sr(RWS)}, s3 offen\ns_mov_b32 s{sROT}, 1\ns_mov_b32 s{sROT + 1}, s3")
                else:
                    self.gstore(f"buffer_store_dwordx4 {vr(x)}, v{vL16}, {sr(RWS)}, s3 offen")
                a(f"s_setprio 0\ns_nop 0\n{skip}:")
                if mat == 1:
                    self.stamp(3)
            self.stamp(4)
        else:
            pump(8 + o["pre2"], DE)
            issue = self.q_issue(1, vGA, "qb")
            a.vmlimit(o["qbw"])
            issue(True)
            pump(pos[0] + o["post2"], DE)
            a.vmwait("w0")
            if o.get("fine"): self.stamp(13)
            a(f"""
            v_xor_b32 v4, v{vG}, v{vN}
            v_lshl_add_u32 v5, v{vN}, 8, s{sC}
            """)
            for s in range(4):
                a(f"v_xor_b32 v6, {4 * s}, v4\nv_lshl_add_u32 v6, v6, 4, v5")
                for u in range(4):
                    a(f"ds_read_b128 {ar(192 + 16 * u + 4 * s)}, v6 offset:{4096 * u}")
            self.poll(issue, list(range(vGA, vGA + 16)), False, "qb")
            self.stamp(2)
            self.q_finish(vGA, QT2)
            a(f"""
            v_and_b32 v4, 1, v{vN}
            v_lshlrev_b32 v4, 8, v4
            v_lshl_add_u32 v4, v{vG}, 4, v4
            v_add_u32 v4, s3, v4
            s_waitcnt lgkmcnt(0)
            """)
            for s in range(4):
                a(f"ds_read_b128 {vr(vGA + 4 * s)}, v4 offset:{64 * s}")
            a("s_waitcnt lgkmcnt(0)")
            DU = 40
            for u in range(4):
                for s in range(4):
                    c = "0" if s == 0 else vr(DU + 4 * u)
                    a(f"v_mfma_f32_16x16x32_bf16 {vr(DU + 4 * u)}, {ar(192 + 16 * u + 4 * s)}, {vr(vGA + 4 * s)}, {c}")
            a(f"""
            s_lshl_b32 s3, s{sW}, 7
            v_and_b32 v4, 1, v{vN}
            v_lshlrev_b32 v4, 9, v4
            v_lshl_add_u32 v4, v{vG}, 3, v4
            v_add_u32 v4, s3, v4
            """)
            for u in range(4):
                a(f"v_cvt_pk_bf16_f32 v{DU + 4 * u}, v{DU + 4 * u}, v{DU + 4 * u + 1}")
                a(f"v_cvt_pk_bf16_f32 v{DU + 4 * u + 1}, v{DU + 4 * u + 2}, v{DU + 4 * u + 3}")
                a(f"ds_write_b64 v4, {vr(DU + 4 * u, 2)} offset:{QO + 32 * u}")
            a(f"""
            v_bfe_u32 v5, v{vL}, 3, 1
            v_and_b32 v6, 7, v{vL}
            v_lshlrev_b32 v6, 4, v6
            v_lshl_add_u32 v4, v5, 9, v6
            v_add_u32 v4, s3, v4
            ds_read_b128 {vr(vGA)}, v4 offset:{QO}
            v_lshl_add_u32 v4, v5, {15 + o['lq']}, v6
            s_lshl_b32 s{sA}, s{sH}, 1
            s_add_u32 s{sA}, s{sA}, s{sB}
            s_lshl_b32 s{sA}, s{sA}, {9 + o['lq']}
            s_add_u32 s{sA}, s{sA}, s3
            s_and_b32 s3, s3, {0x100 * o['lq']}
            s_add_u32 s3, s3, s{sA}
            s_add_u32 s3, s3, {WS_QA}
            s_waitcnt lgkmcnt(0)
            """)
            self.tag_bits(vGA, vA0, 5)
            a(f"""
            s_mov_b64 exec, 0xffff
            buffer_store_dwordx4 {vr(vGA)}, v4, {sr(RWS)}, s3 offen sc1
            s_mov_b64 exec, -1
            s_nop 0
            """)
            self.stamp(3)

        D = o["D"]
        if typ == 2: self.p_wave(sB, vWO)
        if typ == 2 and o["pw"][0] == 2:
            pump(pos[0] + o["pw"][1], DE)
            a.vmlimit(9 - 8 // o["NP"])
            nl = 64 // o["NP"]
            a(f"""
            s_and_b32 s3, s{sH}, 3
            s_lshl1_add_u32 s3, s3, s{sB}
            s_lshl2_add_u32 s3, s3, s{sW}
            s_mul_i32 s3, s3, {128 * nl}
            s_lshr_b32 s{sA}, s{sH}, 2
            s_lshl_b32 s{sA}, s{sA}, 18
            s_add_u32 s3, s3, s{sA}
            s_add_u32 s3, s3, {WS_PART}
            v_min_u32 v4, {nl - 1}, v{vL}
            v_lshlrev_b32 v4, 7, v4
            """)
            a.vm(f"buffer_load_dword v{vP + 2}, v4, {sr(RWS)}, s3 offen", "warm")
        pump(at[("K", o["qpos"][typ - 1])], DE)
        self.id_load(vP)
        issue = self.q_issue(0, vGA, "q")
        issue(True)
        pump(pos[0] + D)
        self.poll(issue, list(range(vGA, vGA + 16)), False, "q")
        self.stamp(5)
        self.id_check(vP)
        self.q_finish(vGA, QT)
        a(f"""
        s_lshl_b32 s{sA}, s{sB}, 8
        s_add_u32 s3, s3, s{sA}
        v_lshl_add_u32 v4, v{vN}, 4, s3
        s_waitcnt lgkmcnt(0)
        ds_read_b128 {vr(vQ)}, v4
        s_waitcnt lgkmcnt(0)
        """)
        dm = "row_mask:0xf bank_mask"
        for G in range(NG):
            nj = min(4, NL - 4 * G)
            if pos[0] >= at[("K", 4 * G + nj - 1)] + 1 + D:
                pump(pos[0] + o["cu"], D + 2)
            pump(at[("K", 4 * G + nj - 1)] + 1 + D)
            a.vmwait(f"K{4 * G + nj - 1}")
            if o["pace"] and G == (NL - o["pace"][0]) // 4:
                skip = a.label("nopace")
                a(f"s_cmp_lg_u32 s{sW}, 0\ns_cbranch_scc1 {skip}\ns_mov_b64 exec, 1")
                a(f"v_add_u32 v55, 1, v55\nv_mov_b32 v4, 0\nds_write_b32 v4, v55 offset:{CNT + 16}")
                a(f"s_mov_b64 exec, -1\n{skip}:")
            for jj in range(nj, 4):
                a(f"v_mov_b32 v{vP + jj}, {fbits(-1e30)}")
            for e in range(4):
                for jj in range(nj):
                    k = vK + 4 * (4 * G + jj) + e
                    if e == 0: a(f"v_dot2_f32_bf16 v{vP + jj}, v{k}, v{vQ}, 0")
                    else: a(f"v_dot2c_f32_bf16 v{vP + jj}, v{k}, v{vQ + e}")
            S = vSC + G
            a(f"""
            v_add_f32_dpp v{vP}, v{vP}, v{vP} row_ror:8 {dm}:0x3
            v_add_f32_dpp v{vP + 1}, v{vP + 1}, v{vP + 1} row_ror:8 {dm}:0x3
            v_add_f32_dpp v{vP}, v{vP + 2}, v{vP + 2} row_ror:8 {dm}:0xc
            v_add_f32_dpp v{vP + 1}, v{vP + 3}, v{vP + 3} row_ror:8 {dm}:0xc
            v_add_f32_dpp v{S}, v{vP}, v{vP} row_shl:4 {dm}:0x5
            v_add_f32_dpp v{S}, v{vP + 1}, v{vP + 1} row_shr:4 {dm}:0xa
            v_add_f32_dpp v{S}, v{S}, v{S} quad_perm:[1,0,3,2] {dm}:0xf
            v_add_f32_dpp v{S}, v{S}, v{S} quad_perm:[2,3,0,1] {dm}:0xf
            """)
            if o["mimicA"]:
                a(f"""
                v_cvt_pk_bf16_f32 v{S}, v{S}, v{S}
                v_and_b32 v{S}, 0xffff0000, v{S}
                v_mul_f32 v{S}, {fbits(SCALE)}, v{S}
                v_cvt_pk_bf16_f32 v{S}, v{S}, v{S}
                v_and_b32 v{S}, 0xffff0000, v{S}
                """)
            a(f"v_mov_b32 v8, v{S}" if G == 0 else f"v_max_f32 v8, v8, v{S}")
        self.stamp(6)
        a(f"""
        v_max_f32_dpp v8, v8, v8 row_ror:4 {dm}:0xf
        v_max_f32_dpp v8, v8, v8 row_ror:8 {dm}:0xf
        """)
        self.allrows("v_max_f32", 8, 7)
        a(f"v_mul_f32 v8, s{sCST}, v8")
        for G in range(NG):
            a(f"v_fma_f32 v{vSC + G}, v{vSC + G}, s{sCST}, -v8")
        for G in range(NG):
            a(f"v_exp_f32 v{vSC + G}, v{vSC + G}")
        a(f"v_add_f32 v5, v{vSC}, v{vSC + 1}")
        for G in range(2, NG):
            a(f"v_add_f32 v5, v5, v{vSC + G}")
        for G in range(NG):
            a(f"v_cvt_pk_bf16_f32 v{vSC + G}, v{vSC + G}, v{vSC + G}")
        a(f"""
        v_add_f32_dpp v5, v5, v5 row_ror:4 {dm}:0xf
        v_add_f32_dpp v5, v5, v5 row_ror:8 {dm}:0xf
        """)
        self.allrows("v_add_f32", 5, 7)
        a(f"""
        s_lshl_b32 s3, s{sW}, 2
        s_add_u32 s3, s3, {ST}
        v_mov_b32 v7, s3
        ds_write2_b32 v7, v8, v5 offset0:0 offset1:4
        s_lshl_b32 s{sA}, s{sH}, 1
        s_add_u32 s{sA}, s{sA}, s{sB}
        s_mul_i32 s{sA}, s{sA}, 3
        s_add_u32 s{sA}, s{sA}, s{sT3}
        s_lshl_b32 s{sA}, s{sA}, 10
        s_add_u32 s{sOF2}, s{sA}, {WS_OREC}
        v_mov_b32 v{vQ + 1}, 0
        """)
        skip = a.label("nostat")
        self.last_arriver(CNT + 12, skip)
        m, l = vGA, vGA + 4
        a(f"""
        ds_read_b128 {vr(m)}, v{vQ + 1} offset:{ST}
        ds_read_b128 {vr(l)}, v{vQ + 1} offset:{ST + 16}
        v_mov_b32 v6, s{sTAG}
        v_mov_b32 v7, s{sTAG}
        s_waitcnt lgkmcnt(0)
        v_max3_f32 v4, v{m}, v{m + 1}, v{m + 2}
        v_max_f32 v4, v4, v{m + 3}
        """)
        for i in range(4): a(f"v_sub_f32 v{m + i}, v{m + i}, v4")
        for i in range(4): a(f"v_exp_f32 v{m + i}, v{m + i}")
        a(f"v_mul_f32 v5, v{l}, v{m}")
        for q in range(1, 4): a(f"v_fmac_f32 v5, v{l + q}, v{m + q}")
        a(f"ds_write_b128 v{vQ + 1}, {vr(m)} offset:{ST + 32}\ns_mov_b64 exec, 1")
        self.gstore(f"buffer_store_dwordx4 v[4:7], v{vQ + 1}, {sr(RWS)}, s{sOF2} offen offset:512")
        a(f"s_mov_b64 exec, -1\n{skip}:")
        self.stamp(7)
        if o["help"]:
            assert pos[0] <= at[("F", 1)]
            a(f"""
            s_and_b32 s3, s2, 7
            s_lshl_b32 s3, s3, 6
            s_lshr_b32 s{sA}, s2, 3
            s_add_u32 s3, s3, s{sA}
            s_lshl_b32 s3, s3, 2
            s_add_u32 s3, s3, s{sW}
            s_lshl_b32 s3, s3, 2
            s_add_u32 s3, s3, {WS_PROG}
            v_mov_b32 v{vQ + 3}, s3
            """)
        if typ == 2:
            vT = vK
            P = self.p_setup(vK + 16, R1, RED0)
            a(f"""
            s_mul_i32 s{sA}, s{sH}, 6144
            s_add_u32 s{sA}, s{sA}, {WS_OREC}
            s_add_u32 s{sC}, s{sA}, 3072
            v_min_u32 v5, 2, v{vG}
            v_lshlrev_b32 v5, 10, v5
            v_lshrrev_b32 v6, 3, v{vN}
            v_mul_u32_u24 v6, 3072, v6
            v_add_u32 v{vT + 14}, v6, v5
            v_lshl_add_u32 v5, v{vN}, 4, v5
            s_lshl_b32 s3, s{sEX + 1}, 8
            v_add_u32 v{vT + 15}, s3, v5
            v_mov_b32 v{vQ + 2}, {WS_ZOK}
            """)
            def stld(tr=False):
                for t in (f"buffer_load_dwordx4 {vr(vT + 8)}, v{vT + 14}, {sr(RWS)}, s{sA} offen offset:512 sc1",
                          f"buffer_load_dwordx2 {vr(vT + 12, 2)}, v{vQ + 2}, {sr(RWS)}, 0 offen sc1"):
                    if tr: a.vm(t, "st")
                    else: a(t)
            assert pos[0] <= at[("V", NL - 1)]
            stream.insert(at[("V", NL - 1)] + 1, lambda: stld(True))
        def before(j):
            cap = at[("V", NL - 1)] + 1 + (max(0, j - (NL - o["wlead"])) if o["wlead"] < 99 else 99)
            if j % 4 == 0 or j > NL - o["wlead"]:
                pump(min(cap, at[("V", min(j + 3, NL - 1))] + 1 + min(o["DV"], D + o["dvr"] * (j // 4 + 1))))
            if j >= NL - max(4, o["wlead"] % 99): a.vmwait(f"V{j}")
            elif j % 4 == 0: a.vmwait(f"V{j + 3}")
        a(f"""
        v_and_b32 v4, 1, v{vG}
        v_lshlrev_b32 v5, 5, v{vN}
        v_lshl_add_u32 v5, v4, 4, v5
        s_lshl_b32 s3, s{sW}, 9
        v_add_u32 v5, s3, v5
        v_mov_b32 v{vQ}, v5
        v_mov_b32 v8, 1
        """)
        if o["pace"]:
            pace_read()
            paced[0] = True
        self.selgemv(0, NL, self.build_dpp(lambda j: (vSC + j // 4, 4 * (j % 4))), vreg, vD, True, before)
        paced[0] = False
        self.stamp(8)
        m, l, g = vP, vSC, vGA
        done = a.label("done")
        a(f"ds_write_b128 v{vQ}, {vr(vD)} offset:{OP}")
        a(f"""
        s_mov_b64 exec, 1
        ds_add_rtn_u32 v5, v{vQ + 1}, v8 offset:{CNT + 8}
        s_mov_b64 exec, -1
        ds_read_b128 {vr(m)}, v{vQ + 1} offset:{ST + 32}
        """)
        for q in range(4):
            a(f"ds_read_b128 {vr(g + 4 * q)}, v{vL16} offset:{OP + 512 * q}")
        a(f"""
        s_waitcnt lgkmcnt(5)
        v_readfirstlane_b32 s3, v5
        s_cmp_lg_u32 s3, 3
        s_cbranch_scc1 {done}
        s_mov_b32 exec_hi, 0
        """)
        for q in range(4):
            a(f"s_waitcnt lgkmcnt({3 - q})")
            for i in range(4):
                a(f"{'v_fmac_f32' if q else 'v_mul_f32'} v{vD + i}, v{g + 4 * q + i}, v{m + q}")
        self.tag4(vD)
        self.gstore(f"buffer_store_dwordx4 {vr(vD)}, v{vL16}, {sr(RWS)}, s{sOF2} offen")
        a(f"s_mov_b64 exec, -1\n{done}:")
        pump(len(stream))
        if typ == 2:
            self.stamp(9)
            def old(tr=False):
                for b in range(2):
                    t = f"buffer_load_dwordx4 {vr(vT + 4 * b)}, v{vT + 15}, {sr(RWS)}, s{(sA, sC)[b]} offen sc1"
                    if tr: a.vm(t, "o")
                    else: a(t)
            old(True)
            self.poll(stld, [vT + 10, vT + 11, vT + 12, vT + 13], True, "st")
            a(f"v_mov_b32 v5, v{vT + 8}")
            self.allrows("v_max_f32", 5, 7)
            a(f"""
            v_sub_f32 v5, v{vT + 8}, v5
            v_exp_f32 v5, v5
            v_cmp_gt_u32 vcc, 3, v{vG}
            v_cndmask_b32 v6, 0, v5, vcc
            v_mul_f32 v5, v6, v{vT + 9}
            """)
            self.allrows("v_add_f32", 5, 7)
            a(f"""
            v_rcp_f32 v5, v5
            v_mul_f32 v5, v5, v6
            v_mov_b32_dpp v6, v5 row_newbcast:0 {dm}:0xf
            v_mov_b32_dpp v7, v5 row_newbcast:8 {dm}:0xf
            """)
            if o["stamps"]:
                a.vmwait("W")
                self.stamp(12)
            self.poll(old, list(range(vT, vT + 8)), False, "o")
            self.stamp(10)
            for i in range(8):
                a(f"v_and_b32 v{vT + i}, s{sHIGH}, v{vT + i}")
            for i in range(8):
                a(f"v_mul_f32 v{vT + i}, v{6 + i // 4}, v{vT + i}")
            for i in range(0, 8, 2):
                a(f"v_permlane16_swap_b32 v{vT + i}, v{vT + i + 1}")
            for i in range(0, 8, 2):
                a(f"v_add_f32 v{vT + i}, v{vT + i}, v{vT + i + 1}")
            a(f"""
            v_permlane32_swap_b32 v{vT}, v{vT + 2}
            v_permlane32_swap_b32 v{vT + 4}, v{vT + 6}
            v_add_f32 v{vT}, v{vT}, v{vT + 2}
            v_add_f32 v{vT + 4}, v{vT + 4}, v{vT + 6}
            v_cvt_pk_bf16_f32 v{vT}, v{vT}, v{vT + 4}
            """)
            self.p_run(P, vT, 192, 0, 11)
        elif o["wt"] == 2:
            for j in o["tord"]:
                ld_side("T", j)()
                if o["twait"]: a("s_waitcnt vmcnt(0)")
            if o["fa"]:
                nof = a.label("noflush")
                a(f"""
                s_cmp_eq_u32 s{sLOC}, 0
                s_cbranch_scc1 {nof}
                s_lshl2_add_u32 s{sA}, s{sH}, s{sI}
                s_lshr_b32 s3, s{sA}, 1
                s_lshl_b32 s3, s3, 10
                s_add_u32 s3, s3, {WS_CREC}
                buffer_load_dwordx4 {vr(vGA)}, v{vQ + 1}, {sr(RWS)}, s3 offen sc1
                """)
                self.bit_tags(vP)
                a(f"""
                s_lshl2_add_u32 s3, s{sA}, s{sW}
                s_lshl_b32 s3, s3, 12
                s_add_u32 s3, s3, {WS_PART}
                s_waitcnt vmcnt(0)
                v_xor_b32 v4, s{sTAG}, v{vGA}
                """)
                for r in range(1, 4):
                    a(f"v_bitop3_b32 v4, v4, v{vGA + r}, s{sTAG} bitop3:0xf6")
                a(f"v_and_b32 v4, s{sLOW}, v4\nv_cmp_ne_u32 vcc, 0, v4\ns_cbranch_vccnz {nof}")
                for j in range(o["fa"]):
                    a(f"buffer_store_dwordx4 {vr(vP)}, v{vL16}, {sr(RWS)}, s3 offen offset:{1024 * j} sc1")
                a(f"{nof}:")
        elif o["help"]:
            self.stamp(9)
            self.helper(o["help"])
        self.finish()

    def role_b(self):
        a, o = self.a, self.o
        a.vmreset()
        self.inb = True
        if o.get("bstop") == -1:
            a("s_waitcnt lgkmcnt(0)")
            self.finish()
        vDM, vH1, vQK, vTR, vW1, vMX, vLS, vHL, vHD = 36, 40, 44, 52, 60, 63, 64, 65, 66
        vSS, vFR, vO, vUV, vQQ, vPK = 72, 88, 112, 176, 240, 248
        QB = 131072
        PB, MXB, LSB, XC, RED, XT, FIN = QB, QB + 8192, QB + 9216, QB + 10240, QB + 12288, QB + 16384, QB + 20480
        dm = "row_mask:0xf bank_mask"
        sS = sT3
        cnt = dict(c=0)
        def weight(t):
            if t and t[0] == "c":
                cnt["c"] += 1
                return int(not (32 + o["hx"] < cnt["c"] <= 32 + o["hx"] + o["hc"]))
            return int(t in ("u", "uv", "bo"))
        self.trace_begin(69, weight)
        a(f"""
        s_lshl_b32 s3, s{sW}, 2
        s_lshl_b32 s{sA}, s{sW}, 10
        v_xor_b32 v4, s3, v{vL}
        s_lshl_b32 s{sC}, s{sW}, 8
        v_lshlrev_b32 v5, 2, v{vG}
        v_xor_b32 v5, v5, v{vN}
        v_lshlrev_b32 v6, 10, v{vG}
        v_add_u32 v6, s{sC}, v6
        """)
        for j in range(4):
            a(f"v_xor_b32 v7, {j}, v4\nv_lshl_add_u32 v{vDM + j}, v7, 4, s{sA}")
            a(f"v_xor_b32 v7, {j}, v5\nv_lshl_add_u32 v{vH1 + j}, v7, 4, v6")
        a(f"v_lshl_add_u32 v{vW1}, v{vN}, 4, v6")
        a.q += ["u"] * 8
        self.stamp(1)
        a(f"s_lshl_b32 s3, s{sI}, 18")
        self.srd(R0, P_CKV, 1 << 18, "s3")
        a(f"s_mov_b32 s{sOFF}, 0")
        def dma(j):
            a.vmlimit(o["DB"] - 1)
            a(f"s_add_u32 m0, s{sOFF}, s{sA}")
            a.vm(f"buffer_load_dwordx4 v{vDM + j % 4}, {sr(R0)}, s{sOFF} offen nt lds", "c0")
            a(f"s_add_u32 s{sOFF}, s{sOFF}, 0x1000")
        c1 = [0]
        def c1load(n):
            for j in range(c1[0], min(32, c1[0] + n)):
                a(f"s_mov_b32 s3, {131072 + 4096 * j}")
                a.vm(f"buffer_load_dwordx4 {ar(128 + 4 * j)}, v{vH1 + j % 4}, {sr(R0)}, s3 offen nt", f"c{j}")
                c1[0] = j + 1
        self.consts(LOG2E * SCALE)
        self.selectors()
        a(f"""
        s_lshr_b32 s{sB}, s{sI}, 5
        s_and_b32 s{sS}, s{sI}, 31
        s_lshr_b32 s{sH}, s{sI}, 1
        v_add_u32 v{vW1 + 1}, 0x10000, v{vW1}
        v_lshrrev_b32 v{vHL}, 5, v{vL}
        v_and_b32 v{vHD}, 31, v{vL}
        v_and_b32 v4, 3, v{vL}
        v_bfe_u32 v5, v{vL}, 2, 2
        v_lshl_add_u32 v6, v4, 2, v5
        v_xor_b32 v6, v6, v{vHL}
        v_lshlrev_b32 v7, 10, v{vHD}
        s_lshl_b32 s3, s{sW}, 15
        """)
        for s in range(8):
            a(f"v_xor_b32 v8, {2 * s}, v6\nv_lshl_add_u32 v8, v8, 4, v7\nv_add_u32 v{vQK + s}, s3, v8\nv_add_u32 v{vQQ + s}, {QB}, v8")
        a(f"""
        v_bfe_u32 v6, v{vL}, 4, 1
        v_lshrrev_b32 v7, 1, v4
        v_lshl_add_u32 v6, v6, 1, v7
        v_xor_b32 v6, v6, v{vHL}
        v_lshl_add_u32 v6, v5, 2, v6
        v_lshl_add_u32 v7, v{vHL}, 2, v5
        v_lshlrev_b32 v7, 10, v7
        v_and_b32 v8, 1, v{vL}
        v_lshl_add_u32 v7, v8, 3, v7
        v_add_u32 v7, s{sC}, v7
        """)
        for T in range(4):
            for z in range(2):
                a(f"v_xor_b32 v8, {4 * T + 2 * z}, v6\nv_lshl_add_u32 v{vTR + 2 * T + z}, v8, 4, v7")
                if z: a(f"v_add_u32 v{vTR + 2 * T + z}, 0x2000, v{vTR + 2 * T + z}")
        self.get_tag()
        self.srd(R1, P_UV, 1 << 22)
        a(f"s_lshl_b32 s3, s{sH}, 17")
        self.srd(R2, P_BO, 1 << 17, "s3")
        vTB = 104
        self.id_publish()
        self.bit_tags(vTB)
        noz = a.label("nozero")
        a(f"""
        s_lshl_b32 s3, s{sI}, 2
        s_add_u32 s3, s3, s{sW}
        s_cmp_lg_u32 s3, 1
        s_cbranch_scc1 {noz}
        v_bfe_u32 v8, v{vL}, 2, 2
        v_lshlrev_b32 v8, 7, v8
        v_lshl_add_u32 v8, v{vG}, {o['la'].bit_length() - 1}, v8
        v_and_b32 v4, 3, v{vL}
        v_lshl_add_u32 v8, v4, 4, v8
        v_mov_b32 v4, 0
        v_mov_b32 v5, 0
        v_mov_b32 v6, 0
        v_mov_b32 v7, 0
        """)
        for k in range(10):
            a(f"s_mov_b32 s3, {WS_ACC + o['lo'] + 4 * o['la'] * k}\nbuffer_store_dwordx4 v[4:7], v8, {sr(RWS)}, s3 offen sc1")
        a(f"s_nop 1\n{noz}:")
        a(f"s_mul_i32 s3, s{sI}, 3072\ns_add_u32 s3, s3, {WS_OREC}")
        self.warm(0, 24, "s3")
        a(f"s_lshl_b32 s3, s{sI}, 10\ns_add_u32 s3, s3, {WS_CREC}")
        self.warm(1, 8, "s3")
        a(f"s_lshl_b32 s3, s{sI}, 9\ns_add_u32 s3, s3, {WS_STATB}")
        self.warm(2, 4, "s3")
        a(f"s_lshr_b32 s3, s{sI}, 3\ns_lshl_b32 s3, s3, 11\ns_add_u32 s3, s3, {WS_RDY}")
        self.warm(3, 4 * o["NP"] - 2, "s3")
        if o["help"]:
            a(f"s_lshr_b32 s3, s{sI}, 3\ns_lshl_b32 s3, s3, 10\ns_add_u32 s3, s3, {WS_PROG}")
            self.warm(2, 8, "s3")
        for j in range(32): dma(j)
        assert "u" not in a.q
        a("s_barrier")
        for j in range(o["he"]):
            a.vmlimit(o["DB"] - 1)
            c1load(1)
        a(f"""
        s_lshl_b32 s{sOFF}, s{sB}, {15 + o['lq']}
        s_add_u32 s{sOFF}, s{sOFF}, {WS_QA}
        s_lshl_b32 s3, s{sW}, {10 + o['lq']}
        v_mul_u32_u24 v5, {256 * o['lq']}, v{vG}
        v_add_u32 v5, v5, v{vL16}
        v_add_u32 v5, s3, v5
        """)
        for j in range(4):
            a(f"v_add_u32 v{vDM + j}, {QB}, v{vDM + j}")
        def qld():
            for j in range(8):
                a(f"s_add_u32 s3, s{sOFF}, {(4096 << o['lq']) * j}\nbuffer_load_dwordx4 {vr(vSS + 4 * j)}, v5, {sr(RWS)}, s3 offen sc1")
        self.id_load(vPK)
        if o["qsel"]:
            top, out = a.label("qtop"), a.label("qout")
            a(f"s_movk_i32 s{sOF2}, 0xff\n{top}:")
            for j in range(8):
                sk = a.label("qs")
                a(f"s_bitcmp0_b32 s{sOF2}, {j}\ns_cbranch_scc1 {sk}\ns_add_u32 s3, s{sOFF}, {(4096 << o['lq']) * j}")
                a(f"buffer_load_dwordx4 {vr(vSS + 4 * j)}, v5, {sr(RWS)}, s3 offen sc1\n{sk}:")
            a("s_waitcnt vmcnt(0)")
            a.vmreset()
            for j in range(8):
                sk = a.label("qc")
                r = vSS + 4 * j
                a(f"s_bitcmp0_b32 s{sOF2}, {j}\ns_cbranch_scc1 {sk}")
                for k in range(4):
                    a(f"v_xor_b32 v{r + k}, v{vTB + k}, v{r + k}")
                a(f"""
                v_or3_b32 v4, v{r}, v{r + 1}, v{r + 2}
                v_or_b32 v4, v4, v{r + 3}
                v_and_b32 v4, s{sBIT}, v4
                v_cmp_ne_u32 vcc, 0, v4
                s_cbranch_vccnz {sk}
                s_bitset0_b32 s{sOF2}, {j}
                ds_write_b128 v{vDM + j % 4}, {vr(r)} offset:{4096 * j}
                {sk}:
                """)
            a(f"""
            s_cmp_eq_u32 s{sOF2}, 0
            s_cbranch_scc1 {out}
            s_cmp_eq_u32 s{sSPIN}, 0
            s_cbranch_scc1 {out}
            s_sub_u32 s{sSPIN}, s{sSPIN}, 1
            s_branch {top}
            {out}:
            """)
            self.stamp(2)
            self.id_check(vPK)
        else:
            self.poll_bits(qld, vSS, 32, vTB)
            self.stamp(2)
            self.id_check(vPK)
            for j in range(8):
                a(f"ds_write_b128 v{vDM + j % 4}, {vr(vSS + 4 * j)} offset:{4096 * j}")
        noz = a.label("noflag")
        a(f"""
        s_lshl_b32 s3, s{sI}, 2
        s_add_u32 s3, s3, s{sW}
        s_cmp_lg_u32 s3, 1
        s_cbranch_scc1 {noz}
        v_mov_b32 v8, s{sTAG}
        v_mov_b32 v4, {WS_ZOK}
        s_mov_b64 exec, 1
        buffer_store_dwordx2 v[8:9], v4, {sr(RWS)}, 0 offen sc1
        s_mov_b64 exec, -1
        {noz}:
        """)
        for k in range(4):
            a(f"v_mov_b32 v{vDM + k}, v{vTB + k}")
        vTB = vDM
        a(f"""
        s_and_b32 s3, s{sI}, 1
        s_lshl_b32 s3, s3, 2
        s_add_u32 s3, s3, s{sW}
        s_lshl_b32 s{sOFF}, s3, 19
        s_lshl_b32 s3, s{sH}, 8
        s_add_u32 s{sOFF}, s{sOFF}, s3
        v_lshlrev_b32 v4, 17, v{vG}
        v_lshl_add_u32 v4, v{vN}, 4, v4
        """)
        a("v_mov_b32 v67, v4")
        self.p_wave(sI, 68)
        wl = [0]
        def wload(n, lim=32):
            for i in range(wl[0], min(lim, wl[0] + n)):
                if i < 16:
                    a.vm(f"buffer_load_dwordx4 {vr(vUV + 4 * i)}, v67, {sr(R1)}, s{sOFF} offen nt", "uv")
                    if i < 15: a(f"s_add_u32 s{sOFF}, s{sOFF}, 0x2000")
                else:
                    a(f"s_mov_b32 s3, {4096 * (i % 16)}")
                    a.vm(f"buffer_load_dwordx4 {ar(128 + 4 * (i - 16))}, v68, {sr(R2)}, s3 offen {o['bopol']}", "bo")
                wl[0] = i + 1
        def bg(n, rnd, ks=-9):
            for _ in range(n):
                if c1[0] < 32: c1load(1)
                else: wload(1, min(o["wlim"], 32 if rnd else 16 + max(0, 4 * (ks - 1))))
        c1load(o["hq"])
        a("s_waitcnt lgkmcnt(0)\ns_barrier")
        self.stamp(3)

        for rnd in range(2):
            PF = 3 if rnd == 0 else 5
            def rd(s):
                if rnd == 0:
                    a(f"ds_read_b128 {ar(4 * s)}, v{vQQ + s % 8} offset:{256 * (s // 8)}")
                a(f"ds_read_b128 {vr(vFR + 4 * (s % 6))}, v{vQK + s % 8} offset:{256 * (s // 8)}")
            per = 2 if rnd == 0 else 1
            for s in range(PF): rd(s)
            for s in range(32):
                if s + PF < 32: rd(s + PF)
                left = min(PF, 31 - s)
                a(f"s_waitcnt lgkmcnt({left * per})")
                c = "0" if s == 0 else vr(vSS, 16)
                a(f"v_mfma_f32_32x32x16_bf16 {vr(vSS, 16)}, {vr(vFR + 4 * (s % 6))}, {ar(4 * s)}, {c}")
                if rnd == o["pw"][0] and s == o["pw"][1]:
                    a(f"s_lshl_b32 s3, s{sI}, 2\ns_add_u32 s3, s3, s{sW}\ns_lshl_b32 s3, s3, 13\ns_add_u32 s3, s3, {WS_PART}\nv_lshlrev_b32 v4, 7, v{vL}")
                    a.vm(f"buffer_load_dword v71, v4, {sr(RWS)}, s3 offen", "warm")
                if rnd == 1 and s == 0 and o["wsk"] and o["pw"][0] == 2:
                    a(f"s_lshl2_add_u32 s3, s{sI}, s{sW}\ns_lshl_b32 s3, s3, 13\ns_add_u32 s3, s3, {WS_PART}")
                    a(f"s_and_b32 s{sA}, s{sH}, 3\ns_cselect_b32 s{sA}, 0, {o['wsk'] - 1}\nv_min_u32 v4, s{sA}, v{vL}\nv_lshlrev_b32 v4, 7, v4")
                    a.vm(f"buffer_load_dword v71, v4, {sr(RWS)}, s3 offen", "warm")
                if o["bq"][rnd] and s % (32 // o["bq"][rnd]) == 0: bg(1, rnd)
            if o.get("fine"): self.stamp((1, 13)[rnd])
            if rnd == 0:
                a("s_barrier")
            bg(o["bm"][rnd], rnd)
            a(f"""
            v_lshlrev_b32 v6, 4, v{vHD}
            v_add_u32 v6, {MXB + 512 * rnd}, v6
            s_lshl_b32 s3, s{sW}, 2
            v_add_u32 v7, s3, v6
            v_max3_f32 v4, v{vSS}, v{vSS + 1}, v{vSS + 2}
            """)
            for i in range(3, 15, 2):
                a(f"v_max3_f32 v4, v4, v{vSS + i}, v{vSS + i + 1}")
            a(f"""
            v_max_f32 v4, v4, v{vSS + 15}
            v_mov_b32 v5, v4
            v_permlane32_swap_b32 v4, v5
            v_max_f32 v4, v4, v5
            ds_write_b32 v7, v4
            s_waitcnt lgkmcnt(0)
            s_barrier
            ds_read_b128 {vr(vPK)}, v6
            s_lshl_b32 s3, s{sW}, 11
            s_add_u32 s3, s3, {PB}
            v_add_u32 v7, s3, v{vL16}
            s_waitcnt lgkmcnt(0)
            v_max3_f32 v4, v{vPK}, v{vPK + 1}, v{vPK + 2}
            v_max_f32 v4, v4, v{vPK + 3}
            v_mul_f32 v4, s{sCST}, v4
            """)
            if rnd == 0:
                a(f"v_mov_b32 v{vMX}, v4")
            else:
                a(f"v_max_f32 v4, v4, v{vMX}\nv_sub_f32 v8, v{vMX}, v4\nv_exp_f32 v8, v8\nv_mov_b32 v{vMX}, v4\nv_mul_f32 v{vLS}, v{vLS}, v8")
            a(f"v_mov_b32 v5, s{sCST}")
            for i in range(0, 16, 2):
                a(f"v_pk_fma_f32 {vr(vSS + i, 2)}, {vr(vSS + i, 2)}, v[4:5], v[4:5] op_sel:[0,1,0] op_sel_hi:[1,1,0] neg_lo:[0,0,1] neg_hi:[0,0,1]")
            for u in range(2):
                for i in range(8 * u, 8 * u + 8):
                    a(f"v_exp_f32 v{vSS + i}, v{vSS + i}")
                for i in range(4 * u, 4 * u + 4):
                    a(f"v_cvt_pk_bf16_f32 v{vPK + i}, v{vSS + 2 * i}, v{vSS + 2 * i + 1}")
                a(f"ds_write_b128 v7, {vr(vPK + 4 * u)} offset:{1024 * u}")
            for st in (8, 4, 2):
                for i in range(0, st, 2):
                    a(f"v_pk_add_f32 {vr(vSS + i, 2)}, {vr(vSS + i, 2)}, {vr(vSS + i + st, 2)}")
            if rnd == 0: a(f"v_add_f32 v{vLS}, v{vSS}, v{vSS + 1}")
            else: a(f"v_add_f32 v{vLS}, v{vLS}, v{vSS}\nv_add_f32 v{vLS}, v{vLS}, v{vSS + 1}")
            if rnd == 1:
                a(f"""
                v_mov_b32 v5, v{vLS}
                v_lshlrev_b32 v6, 4, v{vHD}
                v_add_u32 v6, {LSB}, v6
                v_permlane32_swap_b32 v5, v{vLS}
                s_lshl_b32 s3, s{sW}, 2
                v_add_f32 v5, v5, v{vLS}
                v_add_u32 v7, s3, v6
                ds_write_b32 v7, v5
                """)
            a(f"v_add_u32 v7, {PB}, v{vL16}")
            a("s_waitcnt lgkmcnt(0)\ns_barrier")
            if rnd == 1:
                skip = a.label("nostat")
                a(f"""
                s_cmp_lg_u32 s{sW}, 0
                s_cbranch_scc1 {skip}
                ds_read_b128 {vr(vPK + 4)}, v6
                v_mov_b32 v{vPK}, v{vMX}
                v_mov_b32 v{vPK + 2}, s{sTAG}
                v_mov_b32 v{vPK + 3}, s{sTAG}
                v_lshlrev_b32 v4, 7, v{vHD}
                s_lshr_b32 s3, s{sI}, 3
                s_lshl_b32 s3, s3, 8
                s_and_b32 s{sA}, s{sI}, 7
                s_add_u32 s3, s3, s{sA}
                s_lshl_b32 s3, s3, 4
                s_add_u32 s3, s3, {WS_STATB}
                s_waitcnt lgkmcnt(0)
                v_add_f32 v{vPK + 1}, v{vPK + 4}, v{vPK + 5}
                v_add_f32 v{vPK + 1}, v{vPK + 1}, v{vPK + 6}
                v_add_f32 v{vPK + 1}, v{vPK + 1}, v{vPK + 7}
                s_mov_b32 exec_hi, 0
                """)
                self.gstore(f"buffer_store_dwordx4 {vr(vPK)}, v4, {sr(RWS)}, s3 offen")
                a(f"s_mov_b64 exec, -1\n{skip}:")
            if o.get("fine"): self.stamp((6, 2)[rnd])
            bg(o["bs"][rnd], rnd)
            def bump(d):
                for i in range(8):
                    a(f"v_add_u32 v{vTR + i}, {d}, v{vTR + i}")
            if rnd == 0:
                bufs = [(72, 76), (92, 96), (vD, vQQ)]
                def reads(ks):
                    pb, cb = bufs[ks % 3]
                    L = [f"ds_read_b128 {vr(pb)}, v7 offset:{1024 * ks}"]
                    for T in range(4):
                        for z in range(2):
                            L.append(f"ds_read_b64_tr_b16 {vr(cb + 4 * T + 2 * z, 2)}, v{vTR + 2 * T + z} offset:{16384 * (ks % 4)}")
                    return L
                for t in reads(0) + reads(1): a(t)
                prev = 9
                for ks in range(8):
                    a(f"s_waitcnt lgkmcnt({prev})")
                    if ks == 2: bump("0x10000")
                    nx = reads(ks + 2) if ks < 6 else []
                    wr = [f"ds_write_b128 v{vW1 + j // 16}, {ar(128 + 4 * j)} offset:{4096 * (j % 16)}" for j in range(4 * ks, 4 * ks + 4)]
                    c1load(4 * ks + 4 - c1[0])
                    a.vmwait(f"c{4 * ks + 3}")
                    prev = min(15, len(nx) + (8 if o["w64"] else 4))
                    pb, cb = bufs[ks % 3]
                    cut = [0, 3, 5, 7, 9]
                    for T in range(4):
                        c = "0" if ks == 0 else vr(vO + 16 * T, 16)
                        a(f"v_mfma_f32_32x32x16_bf16 {vr(vO + 16 * T, 16)}, {vr(cb + 4 * T)}, {vr(pb)}, {c}")
                        if o["w64"]:
                            j = 4 * ks + T
                            for z in range(2):
                                a(f"ds_write_b64 v{vW1 + j // 16}, {ar(128 + 4 * j + 2 * z, 2)} offset:{4096 * (j % 16) + 8 * z}")
                        else:
                            a(wr[T])
                        for t in nx[cut[T]:cut[T + 1]]: a(t)
                        if o["bp"][0] and (4 * ks + T) % (32 // o["bp"][0]) == 0: bg(1, 0, ks)
                bump("0xffff0000")
                a("s_waitcnt lgkmcnt(0)\ns_barrier")
            else:
                vPF, ring = 72, [104, 108, vQQ, vQQ + 4, vA0, vA0 + 4]
                for ks in range(8):
                    a(f"ds_read_b128 {vr(vPF + 4 * ks)}, v7 offset:{1024 * ks}")
                for i in range(8):
                    a(f"v_add_u32 v{vQK + i}, 0x10000, v{vTR + i}")
                def rd2(n):
                    T, ks = divmod(n, 8)
                    base = vTR if ks < 4 else vQK
                    for z in range(2):
                        a(f"ds_read_b64_tr_b16 {vr(ring[n % 6] + 2 * z, 2)}, v{base + 2 * T + z} offset:{16384 * (ks % 4)}")
                    lg.extend([n, n])
                def scale(T):
                    return [f"v_pk_mul_f32 {vr(vO + 16 * T + i, 2)}, {vr(vO + 16 * T + i, 2)}, v[8:9] op_sel_hi:[1,0]" for i in range(0, 16, 2)]
                def pack(T):
                    L = []
                    for rq in range(4):
                        r = vO + 16 * T + 4 * rq
                        L += [f"v_cvt_pk_bf16_f32 v{r}, v{r}, v{r + 1}", f"v_cvt_pk_bf16_f32 v{r + 1}, v{r + 2}, v{r + 3}",
                              f"v_xor_b32 v{r + 2}, {16 * (4 * T + rq)}, v{vH1}", f"ds_write_b64 v{r + 2}, {vr(r, 2)}"]
                    return L
                lg = []
                for n in range(3): rd2(n)
                a(f"""
                v_and_b32 v4, 3, v{vL}
                v_bfe_u32 v5, v{vL}, 2, 2
                v_lshl_add_u32 v4, v4, 2, v5
                v_lshlrev_b32 v5, 10, v{vHD}
                v_lshl_add_u32 v5, v{vHL}, 3, v5
                v_lshl_add_u32 v4, v4, 4, v5
                v_add_u32 v{vH1}, s{sC}, v4
                """)
                for T in range(4 if o["sc"] == 0 else 1):
                    for t in scale(T): a(t)
                def scale1(T):
                    return [f"v_mul_f32 v{vO + 16 * T + i}, v{vO + 16 * T + i}, v8" for i in range(16)]
                for n in range(3, 5): rd2(n)
                for n in range(32):
                    T, ks = divmod(n, 8)
                    if n + 5 < 32: rd2(n + 5)
                    last = max(i for i, x in enumerate(lg) if x == n)
                    a(f"s_waitcnt lgkmcnt({min(15, len(lg) - 1 - last)})")
                    del lg[:last + 1]
                    a(f"v_mfma_f32_32x32x16_bf16 {vr(vO + 16 * T, 16)}, {vr(ring[n % 6])}, {vr(vPF + 4 * ks)}, {vr(vO + 16 * T, 16)}")
                    if ks == 0:
                        sc = [] if (T == 3 or o["sc"] == 0) else scale(T + 1) if o["sc"] == 1 else scale1(T + 1)
                        fill = (sc or [None] * 6) + (pack(T - 1) if T else [])
                        per = (len(fill) + 7) // 8
                    for t in fill[per * ks:per * ks + per]:
                        if t:
                            a(t)
                            if t.startswith("ds_"): lg.append(None)
                tail_pack = pack(3)
            self.stamp(5 + 2 * rnd)

        a(f"""
        s_lshl_b32 s{sS}, s{sI}, 2
        s_add_u32 s{sS}, s{sS}, s{sW}
        s_lshl_b32 s3, s{sS}, 7
        s_add_u32 s{sOF2}, s3, {WS_STATB}
        v_and_b32 v5, 1, v{vN}
        v_lshl_add_u32 v5, v5, 2, v{vG}
        v_lshlrev_b32 v5, 4, v5
        """)
        stld = f"buffer_load_dwordx4 {vr(vPK)}, v5, {sr(RWS)}, s{sOF2} offen sc1"
        a(f"""
        v_lshlrev_b32 v4, 2, v{vG}
        v_xor_b32 v4, v4, v{vN}
        v_lshlrev_b32 v7, 10, v{vG}
        v_lshl_add_u32 v7, v4, 4, v7
        v_add_u32 v{vQK}, s{sC}, v7
        """)
        for q in range(1, 4):
            a(f"v_xor_b32 v{vQK + q}, {16 * q}, v{vQK}")
        for t in tail_pack: a(t)
        for jj in range(8):
            a(f"ds_read_b128 {vr(vSS + 4 * jj)}, v{vQK + jj % 4} offset:{4096 * jj}")
        NP = o["NP"]; HJ = 8 // NP
        sST, sFL, sPH = R4, R4 + 1, R4 + 2
        vST, vFA, vPA, vGD = vQK + 4, vQK + 5, vQK + 6, vO + 16
        a(f"""
        s_lshr_b32 s{sFL}, s{sI}, 3
        s_lshl_b32 s{sST}, s{sFL}, 7
        s_add_u32 s{sST}, s{sST}, s{sW}
        s_and_b32 s3, s{sI}, 7
        s_lshl3_add_u32 s{sST}, s{sST}, s3
        s_lshl_b32 s{sST}, s{sST}, 8
        s_add_u32 s{sST}, s{sST}, {WS_PART}
        s_lshr_b32 s{sPH}, s3, {HJ.bit_length() - 1}
        s_lshl_b32 s{sFL}, s{sFL}, 11
        s_add_u32 s{sFL}, s{sFL}, {WS_RDY}
        v_lshlrev_b32 v{vST}, 13, v{vG}
        v_lshl_add_u32 v{vST}, v{vN}, 4, v{vST}
        s_and_b32 s3, s{sS}, 31
        s_lshl_b32 s3, s3, 3
        v_mov_b32 v{vFA}, s3
        v_mov_b32 v8, s{sTAG}
        """)
        a.vm(stld, "st")
        def flag(kind, pol):
            a(f"s_mov_b64 exec, 1\nbuffer_store_dwordx2 v[8:9], v{vFA}, {sr(RWS)}, s{sFL} offen offset:{256 * kind}{pol}\ns_mov_b64 exec, -1")
        def both(f):
            far, join = a.label("far"), a.label("join")
            a(f"s_cmp_eq_u32 s{sLOC}, 0\ns_cbranch_scc1 {far}")
            f("")
            a(f"s_branch {join}\n{far}:")
            f(" sc1")
            a(f"{join}:")
        def send(p):
            def f(pol):
                for jj in range(p * HJ, p * HJ + HJ):
                    if p == 0: a(f"s_waitcnt lgkmcnt({7 - jj})")
                    a(f"s_add_u32 s3, s{sST}, {0x8000 * (jj % HJ)}")
                    a(f"buffer_store_dwordx4 {vr(vSS + 4 * jj)}, v{vST}, {sr(RWS)}, s3 offen{pol}")
                a("s_waitcnt vmcnt(0) lgkmcnt(0)")
                flag(2 * p, pol)
            both(f)
        def wait_flags(kind):
            self.poll(lambda: a(f"buffer_load_dwordx2 {vr(vQQ, 2)}, v{vPA}, {sr(RWS)}, s{sFL} offen offset:{256 * kind} sc1"), [vQQ, vQQ + 1], True)
        send(0)
        self.stamp(8)
        assert wl[0] >= 16
        a(f"""
        s_andn2_b32 s{sOFF}, s{sS}, {32 - 4 * HJ}
        s_lshl_b32 s{sOFF}, s{sOFF}, 13
        s_add_u32 s{sOFF}, s{sOFF}, {WS_PART}
        """)
        a.q.append(None)
        self.poll(lambda: a(stld), [vPK + 2, vPK + 3], True, "st")
        a(f"s_add_u32 s{sOF2}, s{sOFF}, 0x1000")
        def pld(tr=False):
            for j in range(8):
                t = f"buffer_load_dwordx4 {vr(vGD + 4 * j)}, v{vL16}, {sr(RWS)}, s{(sOFF, sOF2)[j // 4]} offen offset:{1024 * (j % 4)} sc1"
                if tr: a.vm(t, "p")
                else: a(t)
        vR = vPK + 4
        a(f"v_max_f32_dpp v{vR}, v{vPK}, v{vPK} quad_perm:[1,0,3,2] {dm}:0xf")
        self.allrows("v_max_f32", vR, 6)
        a(f"v_sub_f32 v5, v{vPK}, v{vR}\nv_exp_f32 v5, v5\nv_mul_f32 v{vR + 1}, v5, v{vPK + 1}")
        a(f"v_add_f32_dpp v{vR + 1}, v{vR + 1}, v{vR + 1} quad_perm:[1,0,3,2] {dm}:0xf")
        self.allrows("v_add_f32", vR + 1, 6)
        a(f"""
        v_cvt_pk_bf16_f32 v{vPK}, v5, v5
        v_mov_b32 v{vR + 2}, s{sTAG}
        v_mov_b32 v{vR + 3}, s{sTAG}
        s_and_b32 s3, s{sS}, 31
        s_lshl_b32 s3, s3, 5
        s_lshr_b32 s{sA}, s{sI}, 3
        s_add_u32 s3, s3, s{sA}
        s_lshl_b32 s3, s3, 4
        s_add_u32 s3, s3, {WS_STAT2}
        v_mov_b32 v6, s3
        s_and_b32 s3, s{sS}, 31
        s_lshl_b32 s3, s3, 5
        s_add_u32 s3, s3, s{sA}
        s_lshl_b32 s3, s3, {8 + o['l2']}
        s_add_u32 s{sS}, s3, {WS_PART2}
        v_lshlrev_b32 v7, {11 + o['l2']}, v{vG}
        v_lshl_add_u32 v7, v{vN}, 4, v7
        """)
        bd = self.build_dpp(lambda j: (vPK, j))
        bd(0, vA0); bd(1, vA0 + 4)
        for p in range(NP):
            other = a.label("other")
            if NP > 1: a(f"s_cmp_lg_u32 s{sPH}, {p}\ns_cbranch_scc1 {other}")
            a(f"v_lshlrev_b32 v{vPA}, 3, v{vHD}")
            wait_flags(2 * p)
            self.stamp(4)
            pld()
            if p < NP - 1:
                a("s_waitcnt vmcnt(0)")
                both(lambda pol: flag(2 * p + 1, pol))
            a(f"{other}:")
            if p < NP - 1:
                a(f"v_and_b32 v{vPA}, {4 * HJ - 1}, v{vL}\nv_add_u32 v{vPA}, {4 * HJ * p}, v{vPA}\nv_lshlrev_b32 v{vPA}, 3, v{vPA}")
                wait_flags(2 * p + 1)
                send(p + 1)
        for q in range(8):
            d = vO + 4 * (q // 2)
            a(f"s_waitcnt vmcnt({7 - q})")
            a(f"v_mfma_f32_16x16x32_bf16 {vr(d)}, {vr(vA0 + 4 * (q % 2))}, {vr(vGD + 4 * q)}, {'0' if q % 2 == 0 else vr(d)}")
        self.stamp(10)
        a(f"s_mov_b64 exec, 1\nbuffer_store_dwordx4 {vr(vR)}, v6, {sr(RWS)}, 0 offen sc1\ns_mov_b64 exec, -1")
        a(f"v_cmp_eq_u32 vcc, 1, v{vHL}")
        for i in range(8):
            a(f"v_cndmask_b32 v{vO + i}, v{vO + i}, v{vO + 8 + i}, vcc")
        for i in range(4):
            a(f"v_cvt_pk_bf16_f32 v{vD + i}, v{vO + 2 * i}, v{vO + 2 * i + 1}")
        a(f"v_permlane16_swap_b32 v{vD}, v{vD + 2}\nv_permlane16_swap_b32 v{vD + 1}, v{vD + 3}")
        self.tag_bits(vD, vTB, 4)
        a(f"buffer_store_dwordx4 {vr(vD)}, v7, {sr(RWS)}, s{sS} offen sc1")
        wload(32, o["w2"][0])
        P = self.p_setup(vO + 16, R5, XT)
        vIN = vQK + 2
        a(f"""
        s_lshl_b32 s3, s{sEX + 1}, 8
        v_lshlrev_b32 v{vIN}, 9, v{vG}
        v_lshl_add_u32 v{vIN}, v{vN}, 4, v{vIN}
        v_add_u32 v{vIN}, s3, v{vIN}
        """)
        a(f"""
        s_lshr_b32 s{sA}, s{sW}, 1
        s_lshl_b32 s3, s{sH}, 3
        s_add_u32 s3, s3, s{sA}
        s_lshl_b32 s3, s3, 6
        s_add_u32 s{sOF2}, s3, {WS_STAT2}
        v_mul_u32_u24 v{vQK}, {256 * o['l2']}, v{vG}
        v_add_u32 v{vQK}, v{vQK}, v{vL16}
        v_lshlrev_b32 v5, 4, v{vG}
        s_and_b32 s3, s{sW}, 1
        s_lshl_b32 s{sOFF}, s{sI}, 1
        s_add_u32 s{sOFF}, s{sOFF}, s3
        s_lshl_b32 s{sOFF}, s{sOFF}, 1
        s_add_u32 s{sOFF}, s{sOFF}, s{sA}
        s_lshl_b32 s{sOFF}, s{sOFF}, {10 + o['l2']}
        s_add_u32 s{sOFF}, s{sOFF}, {WS_PART2}
        s_lshl_b32 s3, s{sW}, 8
        s_add_u32 s3, s3, {XC}
        v_and_b32 v6, 1, v{vG}
        v_lshlrev_b32 v6, 3, v6
        v_lshl_add_u32 v6, v{vN}, 4, v6
        v_add_u32 v7, s3, v6
        s_lshl_b32 s3, s{sW}, 7
        s_add_u32 s3, s3, {XC}
        v_lshrrev_b32 v4, 3, v{vN}
        v_lshlrev_b32 v4, 9, v4
        v_lshl_add_u32 v4, v{vG}, 5, v4
        v_add_u32 v8, s3, v4
        """)
        def l2ld():
            a(f"buffer_load_dwordx4 {vr(vPK)}, v5, {sr(RWS)}, s{sOF2} offen sc1")
            a(f"buffer_load_dwordx4 {vr(vSS)}, v{vQK}, {sr(RWS)}, s{sOFF} offen sc1")
        self.poll_bits(l2ld, vSS, 4, vTB, None, [vPK + 2, vPK + 3])
        self.stamp(9)
        wload(32, o["w2"][1])
        a(f"v_mov_b32 v4, v{vPK}")
        self.allrows("v_max_f32", 4, vR)
        a(f"v_sub_f32 v4, v{vPK}, v4\nv_exp_f32 v4, v4\nv_mul_f32 v5, v4, v{vPK + 1}")
        self.allrows("v_add_f32", 5, vR)
        a(f"v_rcp_f32 v5, v5\nv_mul_f32 v4, v4, v5\nv_cvt_pk_bf16_f32 v{vPK}, v4, v4")
        for jj in range(4):
            a(f"v_and_b32 v{vA0 + jj}, v{vPK}, v{vM + jj}")
        a(f"v_mfma_f32_16x16x32_bf16 {vr(vD)}, {vr(vA0)}, {vr(vSS)}, 0")
        a(f"""
        v_cvt_pk_bf16_f32 v{vD}, v{vD}, v{vD + 1}
        v_cvt_pk_bf16_f32 v{vD + 1}, v{vD + 2}, v{vD + 3}
        ds_write_b64 v7, {vr(vD, 2)}
        s_waitcnt lgkmcnt(0)
        s_barrier
        ds_read_b128 {vr(vSS)}, v8
        ds_read_b128 {vr(vSS + 4)}, v8 offset:16
        """)
        skip = a.label("noepoch")
        a(f"""
        s_or_b32 s3, s{sI}, s{sW}
        s_cmp_lg_u32 s3, 0
        s_cbranch_scc1 {skip}
        v_mov_b32 v4, 0
        s_mov_b64 exec, 1
        buffer_store_dword v{vTAG}, v4, {sr(RWS)}, 0 offen sc1
        s_mov_b64 exec, -1
        {skip}:
        s_lshl_b32 s3, s{sW}, 10
        s_add_u32 s3, s3, {RED}
        v_add_u32 v7, s3, v{vL16}
        v_add_u32 v8, {RED}, v{vL16}
        v_lshrrev_b32 v4, 1, v{vG}
        v_lshlrev_b32 v6, 1, v6
        v_lshl_add_u32 v6, v4, 9, v6
        s_lshl_b32 s{sOFF}, s{sI}, 10
        s_add_u32 s{sOFF}, s{sOFF}, {WS_CREC}
        s_waitcnt lgkmcnt(0)
        """)
        self.stamp(11)
        self.selgemv(0, 16, self.build_perm(vSS), lambda j: vr(vUV + 4 * j), vD, True)
        skip = a.label("nopub")
        a(f"ds_write_b128 v7, {vr(vD)}\ns_waitcnt lgkmcnt(0)\ns_barrier\ns_cmp_lg_u32 s{sW}, 0\ns_cbranch_scc1 {skip}")
        for q in range(4):
            a(f"ds_read_b128 {vr(vSS + 4 * q)}, v8 offset:{1024 * q}")
        a("s_waitcnt lgkmcnt(0)")
        for i in range(4):
            a(f"v_add_f32 v{vSS + i}, v{vSS + i}, v{vSS + 4 + i}\nv_add_f32 v{vSS + 8 + i}, v{vSS + 8 + i}, v{vSS + 12 + i}")
        for i in range(4):
            a(f"v_add_f32 v{vSS + i}, v{vSS + i}, v{vSS + 8 + i}")
        self.tag4(vSS)
        self.gstore(f"buffer_store_dwordx4 {vr(vSS)}, v6, {sr(RWS)}, s{sOFF} offen")
        a(f"{skip}:")

        wload(32, 32)
        a(f"s_lshl_b32 s{sOF2}, s{sH}, 11\ns_add_u32 s{sOF2}, s{sOF2}, {WS_CREC}")
        self.poll(lambda: a(f"buffer_load_dwordx4 {vr(vSS)}, v{vIN}, {sr(RWS)}, s{sOF2} offen sc1"), list(range(vSS, vSS + 4)), False)
        for q in range(4):
            a(f"v_and_b32 v{vSS + q}, s{sHIGH}, v{vSS + q}")
        a(f"""
        v_permlane32_swap_b32 v{vSS}, v{vSS + 2}
        v_permlane32_swap_b32 v{vSS + 1}, v{vSS + 3}
        v_add_f32 v{vSS}, v{vSS}, v{vSS + 2}
        v_add_f32 v{vSS + 1}, v{vSS + 1}, v{vSS + 3}
        v_permlane16_swap_b32 v{vSS}, v{vSS + 1}
        v_cvt_pk_bf16_f32 v{vSS}, v{vSS}, v{vSS + 1}
        """)
        self.p_run(P, vSS, 128, 1, 12)
        if o["help"] and o["bhelp"]:
            self.helper(o["help"])
        if o["fl"]:
            a(f"s_lshl_b32 s3, s{sI}, 2\ns_add_u32 s3, s3, s{sW}\ns_lshl_b32 s3, s3, 13\ns_add_u32 s3, s3, {WS_PART}")
            for j in range(8):
                if j == 4: a("s_add_u32 s3, s3, 0x1000")
                a(f"buffer_store_dwordx4 {vr(vTB)}, v{vL16}, {sr(RWS)}, s3 offen offset:{1024 * (j % 4)} sc1")
        self.finish()

    def build(self, header):
        a = self.a
        a(f"""
        s_load_dwordx16 s[8:23], s[0:1], 0
        s_load_dwordx8 s[24:31], s[0:1], 64
        s_load_dwordx4 s[32:35], s[0:1], 96
        s_cmp_ge_u32 s2, 256
        s_cbranch_scc1 L_exit
        """)
        self.traces = {}
        if self.o.get("hold") or self.o.get("trace"):
            a(f"s_memrealtime s[{sSTAMP}:{sSTAMP + 1}]")
        if self.o["stamps"]:
            for i in range(1, 15):
                a(f"s_mov_b32 s{sSTAMP + 2 * i}, 0")
            a(f"s_memrealtime s[{sSTAMP}:{sSTAMP + 1}]")
        if self.o["pf"]:
            a(f"""
            s_getpc_b64 s[{R1}:{R1 + 1}]
            L_pc:
            s_lshr_b32 s{sC}, s2, 3
            v_lshl_add_u32 v4, s{sC}, 4, v0
            v_lshlrev_b32 v4, 7, v4
            v_min_u32 v4, L_code_end - L_pc - 4, v4
            v_mov_b32 v7, s{R1 + 1}
            v_add_co_u32 v6, vcc, s{R1}, v4
            v_addc_co_u32 v7, vcc, 0, v7, vcc
            v_cmp_gt_u32 vcc, 16, v0
            s_and_saveexec_b64 s[{sEX}:{sEX + 1}], vcc
            s_cbranch_execz L_nopf
            global_load_dword v71, v[6:7], off
            L_nopf:
            s_mov_b64 exec, s[{sEX}:{sEX + 1}]
            """)
        a(f"""
        v_lshrrev_b32 v4, 6, v0
        v_and_b32 v{vL}, 63, v0
        v_readfirstlane_b32 s{sW}, v4
        v_and_b32 v{vN}, 15, v0
        v_bfe_u32 v{vG}, v0, 4, 2
        s_and_b32 s{sA}, s2, 7
        s_lshr_b32 s{sC}, s2, 3
        s_mul_i32 s3, s{sC}, 43
        s_lshr_b32 s3, s3, 8
        s_lshl2_add_u32 s{sH}, s{sA}, s3
        s_mul_i32 s3, s3, 6
        s_sub_u32 s{sI}, s{sC}, s3
        s_lshr_b32 s{sT3}, s{sI}, 1
        s_mov_b32 s{R0 + 2}, 0x400000
        s_mov_b32 s{R0 + 3}, 0x20000
        s_lshl_b32 s{sOF2}, s{sW}, 14
        s_add_u32 s{sOF2}, s{sOF2}, 0x4000
        s_mov_b32 s{sOFF}, 0
        s_cmp_lt_u32 s{sC}, 24
        s_cbranch_scc1 L_is_a
        s_lshl3_add_u32 s{sI}, s{sA}, s{sC}
        s_sub_u32 s{sI}, s{sI}, 24
        s_lshr_b32 s{sH}, s{sI}, 1
        s_lshl_b32 s{sOF2}, s{sW}, 13
        s_bitset1_b32 s{sOF2}, 17
        s_bitset1_b32 s{sOFF}, 18
        s_mov_b32 s{sT3}, 0
        L_is_a:
        s_and_b32 s{sB}, s{sI}, 1
        s_lshl_b32 s{sA}, s{sH}, 8
        s_cmp_lg_u32 s{sT3}, 0
        s_cbranch_scc1 L_role_a1
        s_lshl2_add_u32 s3, s{sB}, s{sW}
        s_lshl_b32 s3, s3, 19
        s_add_u32 s{sOFF}, s{sOFF}, s3
        s_add_u32 s{sOFF}, s{sOFF}, s{sA}
        v_xor_b32 v4, v{vG}, v{vN}
        v_lshlrev_b32 v5, 13, v{vG}
        v_lshl_add_u32 v36, v4, 4, v5
        v_xor_b32 v37, 64, v36
        v_xor_b32 v38, 0x80, v36
        v_xor_b32 v39, 64, v38
        s_mov_b32 m0, s{sOF2}
        s_movk_i32 s{sLOW}, 0x400
        s_lshl_b32 s{sHIGH}, s{sLOW}, 5
        s_waitcnt lgkmcnt(0)
        s_mov_b32 s{R0}, s{P_UK}
        s_and_b32 s{R0 + 1}, s{P_UK + 1}, 0xffff
        """)
        for j in range(8):
            a(f"buffer_load_dwordx4 v{36 + j % 4}, {sr(R0)}, s{sOFF} offen {self.o['upol']} lds\ns_add_u32 m0, m0, s{sLOW}\ns_add_u32 s{sOFF}, s{sOFF}, s{sHIGH}")
        a(f"""
        s_load_dword s{sTAG}, s[{P_WS}:{P_WS + 1}], 0
        s_cmp_lt_u32 s{sC}, 24
        s_cbranch_scc1 L_role_a2
        s_branch L_role_b
        L_role_a1:
        """)
        self.role = '1'
        self.role_a(1)
        a("L_exit:\ns_endpgm\nL_role_a2:")
        self.role = '2'
        self.role_a(2)
        a("L_role_b:")
        self.role = 'B'
        self.role_b()
        a("L_code_end:")
        body = a.text()
        return (header + f"""; @launch grid=(256,1,1) block=(256,1,1) lds=163840
.amdgcn_target "amdgcn-amd-amdhsa--gfx950"
.text
.globl {KERNEL}
.p2align 8
.type {KERNEL},@function
{KERNEL}:
""" + body + f""".section .rodata,"a"
.p2align 6
.amdhsa_kernel {KERNEL}
  .amdhsa_next_free_vgpr 512
  .amdhsa_next_free_sgpr 102
  .amdhsa_accum_offset 256
  .amdhsa_group_segment_fixed_size 0
  .amdhsa_kernarg_size 112
  .amdhsa_user_sgpr_count 2
  .amdhsa_user_sgpr_kernarg_segment_ptr 1
  .amdhsa_system_sgpr_workgroup_id_x 1
.end_amdhsa_kernel
""")


def header():
    ref = open(f"cdna_kernels/{NAME}.s.ref").read().split("\n")
    return "\n".join(l for l in ref if l.startswith(";") and "@launch" not in l) + "\n"


if __name__ == "__main__":
    out = sys.argv[1]
    kw = eval("dict(" + (sys.argv[2] if len(sys.argv) > 2 else "") + ")")
    g = Gen(**kw)
    open(out, "w").write(g.build(header()))
    if kw.get("trace"):
        import json
        json.dump(g.traces, open(out + ".json", "w"))
```
